```python
import torch

def _softmax(x, axis=-1):
    return torch.softmax(x, dim=axis)

def _gelu(x):
    return torch.nn.functional.gelu(x, approximate='tanh')

def _silu(x):
    return torch.nn.functional.silu(x)

def _sigmoid(x):
    return torch.sigmoid(x)

def _layernorm(x, axis=-1, eps=1e-05):
    m = x.mean(dim=axis, keepdim=True)
    v = x.var(dim=axis, keepdim=True, unbiased=False)
    return (x - m) / torch.sqrt(v + eps)

def _scatter_add(tgt, idx, src, axis=0):
    return tgt.clone().index_add_(axis, idx, src)

def _segment_sum(src, seg, n):
    out = torch.zeros((n,) + src.shape[1:], dtype=src.dtype)
    return out.index_add_(0, seg, src)

def _pad(x, pw):
    flat = tuple((v for pair in reversed(pw) for v in pair))
    return torch.nn.functional.pad(x, flat)
kernel_name = 'concat_heads__spectral_gfnet__memory_aug_recurrent_mem_tr__prompt'

def setup_inputs():

    _w = lambda a: (lambda t: t.to(torch.bfloat16) if t.is_floating_point() else t)(torch.as_tensor(a))

    def _A_setup():
        B, S, D = (1, 2048, 512)
        Df = D // 2 + 1
        return {'x': _w((lambda *s: torch.randn(*s, dtype=torch.bfloat16) * 0.05)(B, S, D)), 'w_r': _w((lambda *s: torch.randn(*s, dtype=torch.bfloat16) * 3.2)(S, Df) * 0.02), 'w_i': _w((lambda *s: torch.randn(*s, dtype=torch.bfloat16) * 3.2)(S, Df) * 0.02)}
    _A_in = _A_setup()

    def _B_setup():
        B, S, Dm = (1, 2048, 512)
        H, Dh = (32, 128)
        M, seg = (8, 32)
        seg = min(seg, S)
        S = S // seg * seg
        return {'x': _w((lambda *s: torch.randn(*s, dtype=torch.bfloat16) * 0.05)(B, S, Dm)), 'mem0': _w((lambda *s: torch.randn(*s, dtype=torch.bfloat16) * 0.4)(B, M, Dm)), 'Wq': _w((lambda *s: torch.randn(*s, dtype=torch.bfloat16) * 6.4)(Dm, H, Dh) * Dm ** (-0.5)), 'Wk': _w((lambda *s: torch.randn(*s, dtype=torch.bfloat16) * 6.4)(Dm, H, Dh) * Dm ** (-0.5)), 'Wv': _w((lambda *s: torch.randn(*s, dtype=torch.bfloat16) * 0.4)(Dm, H, Dh) * Dm ** (-0.5)), 'Wo': _w((lambda *s: torch.randn(*s, dtype=torch.bfloat16) * 0.4)(H, Dh, Dm) * (H * Dh) ** (-0.5)), 'seg_len': seg}
    _B_in = _B_setup()
    return {'A_x': _A_in['x'], 'A_w_r': _A_in['w_r'], 'A_w_i': _A_in['w_i'], 'B_x': _B_in['x'], 'B_mem0': _B_in['mem0'], 'B_Wq': _B_in['Wq'], 'B_Wk': _B_in['Wk'], 'B_Wv': _B_in['Wv'], 'B_Wo': _B_in['Wo'], 'B_seg_len': _B_in['seg_len']}

def reference(A_x, A_w_r, A_w_i, B_x, B_mem0, B_Wq, B_Wk, B_Wv, B_Wo, B_seg_len):

    def _A_ref(x, w_r, w_i):
        B, S, D = x.shape
        X = (lambda x, axes=(-2, -1): torch.fft.rfft2(x.float(), dim=axes))(x, axes=(-2, -1))
        W = w_r + 1j * w_i
        X = X * W
        y = (lambda x, s, axes=(-2, -1): torch.fft.irfft2(x, s=s, dim=axes).to(torch.bfloat16))(X, (S, D), axes=(-2, -1))
        return y

    def _B_ref(x, mem0, Wq, Wk, Wv, Wo, seg_len):
        B, S, Dm = x.shape
        H, Dh = (Wq.shape[1], Wq.shape[2])
        M = mem0.shape[1]
        scale = Dh ** (-0.5)
        n_seg = S // seg_len
        L = M + seg_len
        idx = torch.arange(L)
        mask = (idx[:, None] < M) | (idx[:, None] >= idx[None, :])
        mem = mem0
        outs = []
        for s in range(n_seg):
            xs = x[:, s * seg_len:(s + 1) * seg_len, :].clone()
            h = torch.concatenate([mem, xs], axis=1)
            q = torch.einsum('btd,dhe->bhte', h, Wq)
            k = torch.einsum('btd,dhe->bhte', h, Wk)
            v = torch.einsum('btd,dhe->bhte', h, Wv)
            scores = torch.einsum('bhqe,bhke->bhqk', q, k) * scale
            scores = torch.where(mask[None, None], scores, -1000000000.0)
            p = _softmax(scores, axis=-1)
            o = torch.einsum('bhqk,bhke->bhqe', p, v)
            o = torch.einsum('bhte,hed->btd', o, Wo)
            mem = o[:, :M, :].clone()
            outs.append(o[:, M:, :])
        return torch.concatenate(outs, axis=1)
    a = _A_ref(A_x, A_w_r, A_w_i)
    b = _B_ref(B_x, B_mem0, B_Wq, B_Wk, B_Wv, B_Wo, B_seg_len)
    return torch.concatenate([a, b], axis=-1)
```

```python
import re

class Asm:
    def __init__(self):
        self.lines = []
        self._uid = 0
    def __call__(self, s):
        for ln in s.split("\n"):
            ln = ln.strip()
            if ln:
                self.lines.append(ln)
    def label(self, name):
        self.lines.append(name + ":")
    def uid(self, base):
        self._uid += 1
        return f"{base}_{self._uid}"
    def extend(self, other):
        self.lines.extend(other.lines)

def vr(b, n=1, p="v"):
    return f"{p}{b}" if n == 1 else f"{p}[{b}:{b+n-1}]"
def ar(b, n=1):
    return vr(b, n, "a")
def sr(b, n=1):
    return vr(b, n, "s")
def wr(b, n=1):
    return vr(b, n) if b < 256 else vr(b - 256, n, "a")

_REG = re.compile(r"^(-?)(?:abs\()?([vas])(?:(\d+)|\[(\d+):(\d+)\])\)?$")
def regs_of(op):
    op = op.strip()
    if op in ("vcc", "exec"):
        return {(op, 0), (op, 1)}
    if op in ("vcc_lo", "exec_lo"):
        return {(op[:-3], 0)}
    if op in ("vcc_hi", "exec_hi"):
        return {(op[:-3], 1)}
    if op == "m0":
        return {("m0", 0)}
    m = _REG.match(op)
    if not m:
        return set()
    k = m.group(2)
    if m.group(3) is not None:
        lo = hi = int(m.group(3))
    else:
        lo, hi = int(m.group(4)), int(m.group(5))
    return {(k, i) for i in range(lo, hi + 1)}

TRANS = ("v_exp_f32", "v_log_f32", "v_rcp_f32", "v_rsq_f32", "v_sqrt_f32", "v_sin_f32", "v_cos_f32", "v_rcp_iflag_f32")

class Ins:
    def __init__(self, text):
        self.text = text
        t = text.split(";")[0].strip()
        self.is_label = t.endswith(":")
        self.is_dir = t.startswith(".") and not self.is_label
        self.op = ""
        self.W = set(); self.R = set()
        self.kind = None
        if self.is_label or self.is_dir or not t:
            self.kind = "none"; self.name = t[:-1] if self.is_label else None
            return
        parts = t.split(None, 1)
        self.op = op = parts[0]
        rest = parts[1] if len(parts) > 1 else ""
        brk = " ".join(re.findall(r"\b[a-z_0-9]+:\[[^\]]*\]", rest))
        rest = re.sub(r"\b[a-z_0-9]+:\[[^\]]*\]", "", rest)
        rest = re.sub(r"hwreg\([^)]*\)", "hwreg", rest)
        ops = []
        for o in rest.split(","):
            o = o.strip()
            if o:
                ops.append(o)
        mods = ""
        if ops:
            last = ops[-1].split()
            ops[-1] = last[0]
            mods = " ".join(last[1:]) + " " + brk
        self.ops = ops; self.mods = mods
        R = lambda i: regs_of(ops[i]) if i < len(ops) else set()
        allr = lambda a: set().union(*[R(i) for i in range(a, len(ops))]) if len(ops) > a else set()
        self.dpp = "_dpp" in op or "row_" in mods or "quad_perm" in mods
        if op.startswith("v_mfma") or op.startswith("v_smfmac"):
            self.kind = "mfma"
            self.W = R(0)
            if op.startswith("v_smfmac"):
                self.AB = R(1) | R(2) | R(3); self.C = R(0)
            else:
                self.AB = R(1) | R(2); self.C = R(3)
            self.R = self.AB | self.C
            self.passes = 8 if "32x32" in op else 4
            assert "_f32_f32" not in op and "x2_f32" not in op and "x4_f32" not in op
        elif op.startswith("v_"):
            self.kind = "valu"
            if op.startswith("v_permlane") and "swap" in op:
                self.W = R(0) | R(1); self.R = R(0) | R(1)
            elif op.startswith("v_cmpx"):
                self.W = R(0) | regs_of("exec"); self.R = allr(1)
            elif op.startswith(("v_add_co", "v_sub_co", "v_subrev_co", "v_addc_co", "v_subb_co", "v_mad_u64_u32", "v_div_scale")):
                self.W = R(0) | R(1); self.R = allr(2)
            else:
                self.W = R(0); self.R = allr(1)
                if op.startswith(("v_fmac", "v_pk_fmac", "v_writelane", "v_dot2c")) or self.dpp:
                    self.R |= R(0)
                if op.startswith("v_cndmask") and len(ops) == 3:
                    self.R |= regs_of("vcc")
            self.trans = op.replace("_e32", "").replace("_e64", "").replace("_dpp", "") in TRANS
        elif op.startswith("ds_"):
            self.kind = "ds"
            if op.startswith(("ds_read", "ds_bpermute", "ds_permute", "ds_swizzle")) or "_rtn" in op:
                self.W = R(0); self.R = allr(1)
            else:
                self.R = allr(0)
        elif op.startswith(("global_", "buffer_", "flat_")):
            self.kind = "vmem"
            self.ldsdma = (" lds" in (" " + mods)) or "load_lds" in op
            if op in ("buffer_inv", "buffer_wbl2"):
                pass
            elif "load" in op and not self.ldsdma:
                self.W = R(0); self.R = allr(1)
            elif "atomic" in op and "sc0" in mods:
                if op.startswith("buffer_"):
                    self.W = R(0); self.R = allr(0)
                else:
                    self.W = R(0); self.R = allr(1)
            else:
                self.R = allr(0)
            if self.ldsdma:
                self.R |= {("m0", 0)}
            self.wide_store = ("store" in op) and (op.endswith("x3") or op.endswith("x4"))
            if self.wide_store:
                self.data = R(0) if op.startswith("buffer_") else R(1)
        elif op.startswith("s_"):
            self.kind = "salu"
            if op.startswith(("s_cmp", "s_bitcmp", "s_cbranch", "s_branch", "s_waitcnt", "s_nop", "s_barrier",
                              "s_endpgm", "s_sleep", "s_setprio", "s_setreg")):
                self.R = allr(0)
            else:
                self.W = R(0); self.R = allr(1)
                if "saveexec" in op:
                    self.W |= regs_of("exec")
        else:
            raise ValueError("unknown instruction: " + text)
    def states(self):
        if self.kind == "none":
            return 0
        if self.op == "s_nop":
            return int(self.ops[0], 0) + 1
        return 1

def vec(S):
    return {r for r in S if r[0] in "va" and r[0] != "vcc"}
def sca(S):
    return {r for r in S if r[0] in ("s", "vcc")}

def need(p, c):
    n = 0
    if p.kind == "valu":
        pw = vec(p.W)
        if c.kind == "mfma" and pw & c.R:
            n = max(n, 2)
        if c.kind == "valu":
            if p.trans and (pw & c.R) and not c.trans:
                n = max(n, 1)
            if (c.op.startswith("v_permlane") or c.dpp) and (pw & c.R):
                n = max(n, 2)
            if c.op.startswith(("v_readlane", "v_readfirstlane")) and (pw & c.R):
                n = max(n, 1)
            if sca(p.W) & c.R:
                n = max(n, 4 if c.op.startswith(("v_readlane", "v_writelane", "v_div_fmas")) else 2)
            if ("exec", 0) in p.W:
                n = max(n, 5)
        if c.kind == "mfma" and ("exec", 0) in p.W:
            n = max(n, 4)
        if c.kind == "vmem" and sca(p.W) & c.R:
            n = max(n, 5)
        if c.kind == "salu" and sca(p.W) & c.R:
            n = max(n, 1)
    elif p.kind == "mfma":
        full = 8 if p.passes == 4 else 12
        if c.kind == "mfma":
            if p.W & c.AB:
                n = max(n, full)
            if p.W & c.C:
                if not (p.W == c.C and p.passes == c.passes):
                    n = max(n, 6 if p.passes == 4 else 10)
            elif p.W & c.W:
                n = max(n, full)
        elif c.kind in ("valu", "ds", "vmem"):
            if p.W & (c.R | c.W):
                n = max(n, full)
            if c.kind == "valu" and (p.C & c.W):
                n = max(n, 3 if p.passes == 4 else 7)
    elif p.kind == "salu":
        if ("m0", 0) in p.W and c.kind == "vmem" and c.ldsdma:
            n = max(n, 1)
    elif p.kind == "vmem":
        if p.wide_store and c.kind != "none" and (p.data & c.W):
            n = max(n, 2 if c.kind == "valu" else 1)
    return n

def fix_hazards(lines, verbose=False, pipe_aware=True):
    ins = [Ins(l) for l in lines]
    MAXD = 12
    out = []
    labels = {}
    for i, x in enumerate(ins):
        if x.is_label:
            labels[x.name] = i
    branches_to = {}
    for i, x in enumerate(ins):
        if x.op.startswith(("s_cbranch", "s_branch")):
            branches_to.setdefault(labels[x.ops[0]], []).append(i)
    pad = [0] * len(ins)
    def required(ci):
        c = ins[ci]
        best = 0
        seen = {}
        stack = [(ci, 0, True, None)]
        while stack:
            k, dist, first, lm = stack.pop()
            d = dist + (0 if first else pad[k])
            preds = []
            if k > 0 and ins[k-1].op not in ("s_branch", "s_endpgm", "s_setpc_b64"):
                preds.append(k - 1)
            if ins[k].is_label:
                preds += branches_to.get(k, [])
            for p in preds:
                if seen.get(p, 99) <= d:
                    continue
                seen[p] = d
                x = ins[p]
                dd = d
                nm = lm
                if x.kind == "mfma":
                    if pipe_aware and lm is not None:
                        dd = max(d, lm + x.passes)
                    nm = dd
                if x.kind != "none":
                    n = need(x, c)
                    if n - dd > best:
                        best = n - dd
                nd = dd + x.states()
                if nd < MAXD:
                    stack.append((p, nd, False, nm))
        return best
    total = 0
    for i, x in enumerate(ins):
        if x.kind in ("none",):
            continue
        r = required(i)
        if r > 0:
            pad[i] = r
            total += r
    res = []
    for i, x in enumerate(ins):
        if pad[i]:
            res.append(f"s_nop {pad[i]-1}")
        res.append(x.text)
    if verbose:
        print("inserted wait states:", total)
    return res

def render(lines):
    o = []
    for l in lines:
        if l.endswith(":") or l.startswith(".") or l.startswith(";"):
            o.append(l)
        else:
            o.append("    " + l)
    return "\n".join(o) + "\n"
```

```python
from asmlib import *
from layout import *
import os

S_AX, S_WR, S_WI, S_BX, S_MEM0, S_WQ, S_WK, S_WV, S_WO, S_SEG, S_OUT, S_DBG, S_WS = 8,10,12,14,16,18,20,22,24,26,28,30,32
SRD_WS = 36
SRD_T  = 40
sW, sROLE, sXCC = 44, 45, 46
sLKX = 47
sC2, sONE2 = 48, 50
sH, sS, sT0, sT1, sT2, sCNT, sINB_R, sINB_R2, sKXO, sFREE0, sMR, sKX, sVX, sKM, sTAG, sPOM, sPROF, sPF = range(52, 70)
sXM = 90
sINW = 98
sMODE = 35
sHW, sHR, sFM, sRDY = 4, 5, 6, 7
sKVA = 0
sKV = 8

SPIN_MAX = 1 << 18
CFG = {k: int(os.environ.get(k.upper(), v)) for k, v in dict(d1=64, d2=0, adv=1, advp=1, dep=3, gap=64, pub=1, pad=256, bar=8, light=0, only=6, at=-1, e1=0, e2=0, e3=1, e4=1, hm=0, pg=32, pd=4, hr=8, hb=4, p0=128, np=0, ps=32, pf=4, hd=128, init=1024, gate=1).items()}
INB_STRIDE = 8192 + CFG["pad"]

L_WL = 0
L_MB = 131072
L_OX = L_MB
L_KXB = L_MB + 8192
L_X = L_KXB + 16384
XP = 1088
L_SEL = L_X + 4 * XP
L_JUNK = L_SEL + 1024

vLB, vG, vWL1, vG2, vXW, vXR, vOW, vIDX, vPS, vMS, vHR, vT = range(12)
PM = 12
aQK, aV, X, VX, MA, RING = 16, 32, 40, 56, 64, 96

QKSEQ = [(m, T, kk) for kk in range(2) for (m, T) in ((0, 0), (1, 0), (0, 1), (1, 1), (2, 0), (2, 1))] + \
        [(m, T, kk) for kk in range(2, 8) for (m, T) in ((0, 0), (1, 0), (0, 1))] + [(1, 1, kk) for kk in range(2, 8)]
VSEQ = [(2, T, kk) for kk in range(2, 8) for T in range(2)]
OSEQ = [(3, p, 0) for p in range(4)] + [(3, p, kk) for p in range(4) for kk in range(1, 4)]
RB0 = 23
def wfrag_map():
    m = {}
    for i in range(4):
        m[QKSEQ[i]] = ("lds", i, i)
        m[QKSEQ[RB0 + i]] = ("lds", 4 + i, i)
        m[VSEQ[2 + i]] = ("lds", 8 + i, i)
        m[OSEQ[12 + i]] = ("lds", 12 + i, i)
    nxt = 128
    for k in QKSEQ + VSEQ + OSEQ:
        if k not in m:
            m[k] = ("reg", nxt); nxt += 8
    assert nxt == 512
    return m
WF = wfrag_map()
def wop(key):
    e = WF[key]
    return wr(e[1], 8) if e[0] == "reg" else vr(RING + 8 * e[2], 8)

class LdsQ:
    def __init__(self, a): self.a = a; self.n = 0
    def op(self, text):
        self.a(text); self.n += 1; return self.n
    def wait(self, tok):
        k = self.n - tok
        self.a(f"s_waitcnt lgkmcnt({min(k, 15)})")

def ring_load(rnd):
    L = []
    for slot in range(4):
        f = 4 * rnd + slot
        base, off = (vG, f * 8192) if f < 8 else (vWL1, (f - 8) * 8192)
        for hh in range(2):
            L.append(f"ds_read_b128 {vr(RING + 8*slot + 4*hh, 4)}, v{base} offset:{off + 1024*hh}")
    return L

def set_srd(a, srd, sptr, nbytes):
    a(f"""s_mov_b32 s{srd}, s{sptr}
    s_mov_b32 s{srd+1}, s{sptr+1}
    s_mov_b32 s{srd+2}, {nbytes}
    s_mov_b32 s{srd+3}, 0x20000""")

W = f"s[{SRD_WS}:{SRD_WS+3}]"

def delay(a, cyc):
    n = cyc // 4
    while n > 0:
        k = min(n, 16); a(f"s_nop {k-1}"); n -= k

def hint_addr(a, dst, tmp, lane):
    per = CFG["hb"] // 4
    sh = per.bit_length() - 1
    a(f"""v_lshrrev_b32 v{dst}, {sh}, v{lane}
    v_mul_u32_u24 v{dst}, {32 * CFG["hb"]}, v{dst}
    v_and_b32 v{tmp}, {per - 1}, v{lane}
    v_lshl_add_u32 v{dst}, v{tmp}, 2, v{dst}
    v_mov_b32 v{tmp}, 0x80000000
    v_cmp_le_u32 vcc, {CFG["hr"] * per}, v{lane}
    v_cndmask_b32 v{dst}, v{dst}, v{tmp}, vcc""")

def chain_startup(a):
    t0, t1, t2, t3, t4, t5, t6, t7 = 16, 17, 18, 19, 20, 21, 22, 23
    vLane, vDQ, vDO, vTR, vTA, vM0, vTO = 24, 25, 26, 27, 28, 30, 31
    a(f"""
    v_and_b32 v{vLane}, 63, v0
    v_lshlrev_b32 v{vLB}, 4, v{vLane}
    s_lshl_b32 s{sT0}, s{sW}, 11
    v_add_u32 v{vG}, s{sT0}, v{vLB}
    v_add_u32 v{vLB}, {L_MB}, v{vLB}
    v_add_u32 v{vWL1}, 0x10000, v{vG}
    v_add_u32 v{vG2}, {L_MB}, v{vG}
    """)
    a(f"""
    v_mov_b64 v[{t4}:{t5}], -1
    v_mov_b64 v[{t6}:{t7}], -1
    s_mul_i32 s{sINB_R}, s{sH}, {INB_STRIDE}
    s_add_u32 s{sINB_R}, s{sINB_R}, {WS_INBOX}
    s_add_u32 s{sINB_R2}, s{sINB_R}, 4096
    buffer_store_dwordx4 v[{t4}:{t7}], v{vG}, {W}, s{sINB_R} offen sc1
    buffer_store_dwordx4 v[{t4}:{t7}], v{vG}, {W}, s{sINB_R} offen offset:1024 sc1
    s_lshl_b32 s{sT0}, s{sW}, 13
    s_lshl_b32 s{sT1}, s{sH}, 8
    s_add_u32 s{sT0}, s{sT0}, s{sT1}
    s_add_u32 s{sT0}, s{sT0}, {WS_MBUF}
    v_lshlrev_b32 v{t0}, 2, v{vLane}
    buffer_store_dword v{t4}, v{t0}, {W}, s{sT0} offen sc1
    s_mul_i32 s{sHW}, s{sH}, {CFG["hb"]}
    s_add_u32 s{sHW}, s{sHW}, {WS_HINT}
    s_and_b32 s{sHR}, s{sH}, {CFG["hr"] - 1}
    s_mul_i32 s{sHR}, s{sHR}, {32 * CFG["hb"]}
    s_add_u32 s{sHR}, s{sHR}, {WS_HINT}
    """)
    hint_addr(a, t0, t1, vLane)
    a(f"""buffer_store_dword v{t4}, v{t0}, {W}, s{sHW} offen sc1
    s_lshl_b32 s{sFM}, s{sH}, 7
    s_add_u32 s{sKVA}, s{S_WS}, s{sFM}
    s_addc_u32 s{sKVA+1}, s{S_WS+1}, 0
    s_add_u32 s{sFM}, s{sFM}, {WS_FLAGS + F_M}
    s_mov_b32 s{sRDY}, 0
    v_mov_b32 v{t0}, 0
    s_mov_b64 exec, 1
    buffer_store_dword v{t0}, v{t0}, {W}, s{sFM} offen sc1
    s_mov_b64 exec, -1""")
    a(f"""
    v_lshrrev_b32 v{t0}, 4, v{vLane}
    s_and_b32 s{sT0}, s{sW}, 1
    s_lshl_b32 s{sT1}, s{sT0}, 2
    v_add_u32 v{t1}, s{sT1}, v{t0}
    v_lshlrev_b32 v{t1}, 1, v{t1}
    v_and_b32 v{t2}, 15, v{vLane}
    v_xor_b32 v{t1}, v{t1}, v{t2}
    v_lshlrev_b32 v{t1}, 4, v{t1}
    v_lshrrev_b32 v{t2}, 1, v{t0}
    v_and_b32 v{t3}, 1, v{t0}
    v_lshl_add_u32 v{vDQ}, v{t2}, 4, v{t3}
    s_lshl_b32 s{sT1}, s{sW}, 2
    v_add_u32 v{vDQ}, s{sT1}, v{vDQ}
    v_lshl_add_u32 v{vDQ}, v{vDQ}, 13, v{t1}
    s_lshl_b32 s{sT1}, s{sH}, 8
    v_add_u32 v{vDQ}, s{sT1}, v{vDQ}
    v_lshl_add_u32 v{t2}, v{t2}, 5, v{t3}
    s_lshl_b32 s{sT0}, s{sT0}, 4
    s_lshr_b32 s{sT1}, s{sW}, 1
    s_lshl_b32 s{sT1}, s{sT1}, 2
    s_add_u32 s{sT0}, s{sT0}, s{sT1}
    v_add_u32 v{t2}, s{sT0}, v{t2}
    v_and_b32 v{t3}, 128, v{t1}
    v_add_u32 v{t1}, v{t1}, v{t3}
    v_lshl_add_u32 v{vDO}, v{t2}, 10, v{t1}
    s_lshl_b32 s{sT1}, s{sH}, 17
    v_add_u32 v{vDO}, s{sT1}, v{vDO}
    """)
    a(f"""
    v_lshrrev_b32 v{t0}, 4, v{vLane}
    v_bfe_u32 v{t1}, v{vLane}, 2, 2
    v_and_b32 v{t2}, 3, v{vLane}
    v_and_b32 v{t3}, 1, v{t0}
    v_lshl_add_u32 v{t3}, v{t3}, 2, v{t1}
    v_lshlrev_b32 v{t3}, 5, v{t3}
    v_lshl_add_u32 v{t3}, v{t2}, 3, v{t3}
    v_lshl_add_u32 v{t3}, v{t1}, 8, v{t3}
    v_lshl_add_u32 v{vTR}, v{t0}, 10, v{t3}
    v_and_b32 v{t4}, 1, v{t1}
    v_lshrrev_b32 v{t5}, 1, v{t1}
    v_xor_b32 v{t5}, v{t5}, v{t4}
    v_and_b32 v{t3}, 1, v{t0}
    v_lshl_add_u32 v{t5}, v{t3}, 2, v{t5}
    v_lshlrev_b32 v{t5}, 5, v{t5}
    v_lshl_add_u32 v{t5}, v{t2}, 3, v{t5}
    v_lshl_add_u32 v{t5}, v{t4}, 8, v{t5}
    v_lshl_add_u32 v{vTO}, v{t0}, 10, v{t5}
    s_lshl_b32 s{sT2}, s{sW}, 10
    """)
    ptrs = [S_WQ, S_WK, S_WV, S_WO]
    def issue(c):
        mat, half = c >> 1, c & 1
        set_srd(a, SRD_T, ptrs[mat], 4 * MB)
        for tl in range(4):
            for m in range(4):
                if mat < 3:
                    so = (64 * (2 * tl + half) + 32 * (m >> 1) + 2 * (m & 1)) * 8192
                    v = vDQ
                else:
                    so = (64 * (tl & 1) + 8 * (m >> 1) + 2 * (m & 1)) * 1024 + (tl >> 1) * 512 + half * 128
                    v = vDO
                a(f"""s_add_u32 m0, s{sT2}, {(c & 1) * 65536 + (tl * 4 + m) * 4096}
                s_mov_b32 s{sT0}, {so}
                buffer_load_dwordx4 v{v}, s[{SRD_T}:{SRD_T+3}], s{sT0} offen lds""")
    def hold(f): return 32 + 8 * (f if f < 12 else f - 12)
    def dest(key):
        e = WF[key]
        return e[1] if e[0] == "reg" else hold(e[1])
    def consume(c):
        mat, half = c >> 1, c & 1
        n = 0
        if mat < 3:
            for T in range(2):
                for lo in range(4):
                    va = vTA + (n & 1); n += 1
                    a(f"""s_lshl_b32 s{sT0}, s{sW}, 6
                    s_add_u32 s{sT0}, s{sT0}, {32 * T}
                    s_xor_b32 s{sT1}, s{sW}, {lo}
                    s_lshl_b32 s{sT1}, s{sT1}, 14
                    s_add_u32 s{sT1}, s{sT1}, {half * 65536}
                    v_xor_b32 v{va}, s{sT0}, v{vTR}
                    v_add_u32 v{va}, s{sT1}, v{va}""")
                    d = dest((mat, T, 2 * lo + half))
                    for m in range(4):
                        a(f"ds_read_b64_tr_b16 {wr(d + 2*m, 2)}, v{va} offset:{m*4096}")
        else:
            for pl in range(2):
                for kk in range(4):
                    va = vTA + (n & 1); n += 1
                    a(f"""s_xor_b32 s{sT1}, s{sW}, {kk}
                    s_and_b32 s{sT0}, s{sT1}, 1
                    s_lshl_b32 s{sCNT}, s{sT0}, 9
                    s_lshl_b32 s{sT0}, s{sT0}, 6
                    s_xor_b32 s{sT0}, s{sT0}, {64 * pl}
                    s_and_b32 s{sS}, s{sW}, 1
                    s_lshl_b32 s{sS}, s{sS}, 7
                    s_add_u32 s{sT0}, s{sT0}, s{sS}
                    s_lshr_b32 s{sT1}, s{sT1}, 1
                    s_and_b32 s{sS}, s{sW}, 2
                    s_add_u32 s{sT1}, s{sT1}, s{sS}
                    s_lshl_b32 s{sT1}, s{sT1}, 14
                    s_add_u32 s{sT1}, s{sT1}, s{sCNT}
                    s_add_u32 s{sT1}, s{sT1}, {half * 65536}
                    v_xor_b32 v{va}, s{sT0}, v{vTO}
                    v_add_u32 v{va}, s{sT1}, v{va}""")
                    d = dest((3, 2 * half + pl, kk))
                    for m in range(4):
                        a(f"ds_read_b64_tr_b16 {wr(d + 2*m, 2)}, v{va} offset:{m*4096}")
        a("s_waitcnt lgkmcnt(0)")
    def spill(fs):
        for f in fs:
            base, off = (vG, f * 8192) if f < 8 else (vWL1, (f - 8) * 8192)
            for hh in range(2):
                a(f"ds_write_b128 v{base}, {vr(hold(f) + 4*hh, 4)} offset:{off + 1024*hh}")
        a("s_waitcnt lgkmcnt(0)")
    issue(0); issue(1)
    a(f"""
    v_and_b32 v{t0}, 15, v{vLane}
    v_lshrrev_b32 v{t1}, 4, v{vLane}
    v_and_b32 v{t2}, 3, v{vLane}
    v_bfe_u32 v{t3}, v{vLane}, 2, 2
    """)
    a(f"""
    s_lshl_b32 s{sT0}, s{sW}, 8
    s_add_u32 s{sT1}, s{sT0}, {L_X}
    v_mul_u32_u24 v{t5}, {XP}, v{t1}
    v_lshl_add_u32 v{t5}, v{t0}, 3, v{t5}
    v_add_u32 v{vXW}, s{sT1}, v{t5}
    """)
    a(f"""
    v_and_b32 v{t4}, 1, v{t1}
    v_lshl_add_u32 v{t4}, v{t4}, 2, v{t3}
    v_lshrrev_b32 v{t5}, 1, v{t1}
    v_lshl_add_u32 v{t4}, v{t5}, 4, v{t4}
    v_mul_u32_u24 v{t5}, {XP}, v{t2}
    v_lshl_add_u32 v{t4}, v{t4}, 3, v{t5}
    v_add_u32 v{vXR}, {L_X}, v{t4}
    v_and_b32 v{vHR}, 31, v{vLane}
    v_lshlrev_b32 v{vHR}, 2, v{vHR}
    v_cmp_lt_u32 vcc, 1, v{t2}
    v_mov_b32 v{t5}, 0x4444
    v_mov_b32 v{t6}, 0xeeee
    v_cndmask_b32 v{vIDX}, v{t5}, v{t6}, vcc
    """)
    a(f"""
    v_and_b32 v{t4}, 1, v{vLane}
    v_lshl_add_u32 v{t7}, v{t3}, 1, v{t4}
    v_lshlrev_b32 v{t4}, 4, v{t7}
    v_lshl_add_u32 v{t4}, v{t1}, 7, v{t4}
    s_lshl_b32 s{sT0}, s{sW}, 9
    s_add_u32 s{sT0}, s{sT0}, {L_OX}
    v_add_u32 v{vOW}, s{sT0}, v{t4}
    v_mov_b32 v{t6}, 0x80000000
    """)
    a(f"""
    v_lshl_add_u32 v{t4}, v{t1}, 2, v{t2}
    v_lshlrev_b32 v{t4}, 4, v{t4}
    v_bfe_u32 v{t5}, v{vLane}, 2, 1
    v_lshl_add_u32 v{t4}, v{t5}, 3, v{t4}
    s_lshl_b32 s{sT0}, s{sH}, 8
    v_add_u32 v{t4}, s{sT0}, v{t4}
    v_cmp_lt_u32 vcc, 7, v{t0}
    v_cndmask_b32 v{vMS}, v{t4}, v{t6}, vcc
    s_lshl_b32 s{sT1}, s{sW}, 3
    v_bfe_u32 v{t5}, v{vLane}, 3, 1
    v_add_u32 v{t5}, s{sT1}, v{t5}
    v_mul_u32_u24 v{t5}, {INB_STRIDE}, v{t5}
    v_add_u32 v{vPS}, v{t5}, v{t4}
    """)
    a(f"""
    v_lshlrev_b32 v{t4}, 10, v{t7}
    v_bfe_u32 v{t5}, v{vLane}, 1, 1
    v_lshl_add_u32 v{t4}, v{t5}, 5, v{t4}
    v_lshrrev_b32 v{t5}, 1, v{t1}
    v_lshl_add_u32 v{t4}, v{t5}, 6, v{t4}
    v_and_b32 v{t5}, 1, v{t1}
    v_lshl_add_u32 v{vM0}, v{t5}, 4, v{t4}
    """)
    a(f"""
    v_and_b32 v{t5}, 1, v{vLane}
    v_lshlrev_b32 v{t5}, 4, v{t5}
    v_mov_b32 v{t6}, 0x3f80
    v_lshlrev_b32 v{t5}, v{t5}, v{t6}
    v_bfe_u32 v{t6}, v{vLane}, 1, 2
    """)
    for d in range(4):
        a(f"""v_cmp_eq_u32 vcc, {d}, v{t6}
        v_cndmask_b32 v{PM+d}, 0, v{t5}, vcc""")
    a(f"""ds_write_b128 v{vLB}, v[{PM}:{PM+3}] offset:{L_SEL-L_MB}
    s_waitcnt lgkmcnt(0)
    v_mov_b64 v[{PM}:{PM+1}], 0
    v_mov_b64 v[{PM+2}:{PM+3}], 0
    """)
    for c in range(8):
        a(f"s_waitcnt vmcnt({16 if c < 7 else 0})")
        a("s_barrier")
        if c == 0:
            a(f"""s_cmp_eq_u32 s{sXCC}, 0
            s_cselect_b32 s{sT0}, 1, 0x10001
            v_mov_b32 v{t0}, s{sT0}
            v_mov_b32 v{t1}, 8
            s_mov_b64 exec, 1
            global_atomic_add v{t1}, v{t0}, s[{S_DBG}:{S_DBG+1}]
            s_mov_b64 exec, -1""")
        consume(c)
        a("s_barrier")
        if c + 2 < 8: issue(c + 2)
        if c == 6: spill(range(0, 8))
    spill(range(8, 16))
    set_srd(a, SRD_T, S_MEM0, 8192)
    a(f"""
    s_lshl_b32 s{sT0}, s{sW}, 8
    buffer_load_dwordx4 {vr(MA,4)}, v{vM0}, s[{SRD_T}:{SRD_T+3}], s{sT0} offen
    buffer_load_dwordx4 {vr(MA+4,4)}, v{vM0}, s[{SRD_T}:{SRD_T+3}], s{sT0} offen offset:128
    s_mov_b32 s{sS}, -1
    s_lshl_b32 s{sT0}, s{sH}, 13
    s_add_u32 s{sKX}, s{sT0}, {WS_KX}
    s_add_u32 s{sVX}, s{sT0}, {WS_VX}
    s_lshl_b32 s{sT0}, s{sH}, 12
    s_add_u32 s{sKM}, s{sT0}, {WS_KM - 128*KB}
    s_lshl_b32 s{sT0}, s{sW}, 10
    s_sub_u32 s{sKM}, s{sKM}, s{sT0}
    s_mov_b32 s{sXM}, 0x33333333
    s_mov_b32 s{sXM+1}, 0x33333333
    s_mov_b32 s{sC2}, 0x3e0293ee
    s_mov_b32 s{sC2+1}, 0x3e0293ee
    s_mov_b32 s{sONE2}, 0x3f803f80
    s_mov_b32 s{sONE2+1}, 0x3f803f80
    """)
    for p in range(4): a(f"s_mov_b32 s{sINW+p}, {WS_INBOX + 2 * p * INB_STRIDE}")

def zlist(b, n):
    return [f"v_mov_b64 v[{b+i}:{b+i+1}], 0" for i in range(0, n, 2)]

def smf(acc, A, B):
    return f"v_smfmac_f32_16x16x64_bf16 {vr(acc,4)}, {vr(A,4)}, {B}, v{vIDX}"

NST = 10
def stamp(a, prof, k):
    if prof:
        if CFG["light"] and k not in (7, 8, 9, CFG["only"]): return
        if k == 9: a(f"s_memrealtime s[{70+2*k}:{71+2*k}]")
        else: a(f"s_memtime s[{70+2*k}:{71+2*k}]")

PUB = X + 12
def pub_prepare(a):
    a(f"""s_lshl_b32 s{sT0}, s{sW}, 8
    v_add_u32 v{vT}, s{sT0}, v{vXR}
    ds_read_b64_tr_b16 {vr(PUB,2)}, v{vT}
    ds_read_b64_tr_b16 {vr(PUB+2,2)}, v{vT} offset:64
    v_mov_b32_dpp v{aV+2}, v{aV} quad_perm:[2,3,2,3] row_mask:0xf bank_mask:0xf
    v_mov_b32_dpp v{aV+3}, v{aV+1} quad_perm:[2,3,2,3] row_mask:0xf bank_mask:0xf
    s_waitcnt lgkmcnt(0)
    s_mov_b64 exec, s[{sXM}:{sXM+1}]
    v_mov_b64 {vr(PUB,2)}, {vr(aV,2)}
    v_mov_b64 {vr(PUB+2,2)}, {vr(aV+2,2)}
    s_mov_b64 exec, -1""")
PUBST = f"buffer_store_dwordx4 {vr(PUB,4)}, v{vG}, {W}, s{sKM} offen sc1"
MR = X + 4
FLG = X + 10
def kv_gate(a, name, need_expr):
    a(need_expr)
    a(f"s_min_u32 s{sT1}, s{sT1}, 64")
    a.label(name)
    a(f"""s_cmp_ge_u32 s{sRDY}, s{sT1}
    s_cbranch_scc1 {name}_OK
    s_load_dwordx4 s[{sKV}:{sKV+3}], s[{sKVA}:{sKVA+1}], {WS_FLAGS + F_KV} glc
    s_add_u32 s{sCNT}, s{sCNT}, 1
    s_cmp_gt_u32 s{sCNT}, {SPIN_MAX}
    s_cbranch_scc1 CH_DONE
    s_waitcnt lgkmcnt(0)""")
    for j in range(NG):
        a(f"s_lshl_b32 s{sKV+j}, s{sKV+j}, 2")
        if j: a(f"s_add_u32 s{sKV+j}, s{sKV+j}, {j}\ns_min_u32 s{sKV}, s{sKV}, s{sKV+j}")
    a(f"""s_mov_b32 s{sRDY}, s{sKV}
    s_branch {name}""")
    a.label(name + "_OK")
def hop_prep(a, wait=True):
    for l in ring_load(0): a(l)
    pub_prepare(a)
    for l in zlist(aQK + 10, 14): a(l)
    hop_prep2(a)
def hop_prep2(a):
    for lo in range(1, 4): a(f"v_xor_b32 v{MR+lo}, {2048*lo}, v{vG2}")
    a(f"""v_lshlrev_b32 v{MR}, 1, v{vLB}
    v_mov_b32 v{FLG}, s{sS}
    v_sub_u32 v{FLG+1}, 0, v{vG}
    v_lshrrev_b32 v{FLG+1}, 1, v{FLG+1}
    s_add_u32 s{sKX}, s{sKX}, {256*KB*CFG["adv"]}
    s_add_u32 s{sPF}, s{sPF}, {256*KB*CFG["adv"]}
    s_add_u32 m0, s{sKXO}, s{sLKX}
    s_xor_b32 s{sKXO}, s{sKXO}, {8192 ^ 16384}""")

def chain_loop(a, tag, stf, prof=False):
    q = LdsQ(a)
    ck = vT
    a.label(f"CH_TOP_{tag}")
    Q0, K0, Q1, K1 = aQK, aQK + 4, aQK + 8, aQK + 12
    acc = lambda mat, T: (aQK + 8 * T + 4 * mat) if mat < 2 else aV + 4 * T
    N = len(QKSEQ)
    pre = {i: [] for i in range(N)}
    post = {i: [] for i in range(N)}
    post[0] = [f"v_max3_u32 v{ck}, v{MA}, v{MA+1}, v{MA+2}"]
    pre[1] = [("x", "s_waitcnt vmcnt(0)", None)]
    post[1] = [f"v_max3_u32 v{ck}, v{ck}, v{MA+3}, v{MA+4}", f"v_max3_u32 v{ck}, v{ck}, v{MA+5}, v{MA+6}",
               f"v_max_u32 v{ck}, v{ck}, v{MA+7}", f"v_cmp_eq_u32 vcc, -1, v{ck}"]
    pre[2] = [("x", f"s_cbranch_vccnz CH_RETRY_{tag}", None), ("lds", f"ds_write_b128 v{vG2}, {vr(MA,4)}", "mw0")]
    pre[3] = [("lds", f"ds_write_b128 v{vG2}, {vr(MA+4,4)} offset:1024", "mw1")]
    if prof: pre[4] += [("x", f"s_mov_b64 exec, 0xffff\nbuffer_store_dword v{MA+8}, v{MA+9}, {W}, s34 offen\ns_mov_b64 exec, -1", None)]
    sc = step_scalars()
    BAR = CFG["bar"]
    pre[BAR] = [("w", "mw1", None), ("x", "s_barrier", None)]
    mr = [("lds", f"ds_read_b128 {vr(MA+4*kk,4)}, v{MR+(kk>>1)} offset:{1024*(kk&1)}", f"m{kk}") for kk in range(2, 8)]
    pre[BAR] += mr[0:2]; pre[BAR+1] = mr[2:4]; pre[BAR+2] = mr[4:6]
    for kk in range(2, 8): pre[11 + 3 * (kk - 2)].append(("w", f"m{kk}", None))
    rB, rC = ring_load(1), ring_load(2)
    for i in range(8): pre[12 + i].insert(0, ("lds", rB[i], f"rB{i}"))
    pre[RB0 - 1].append(("w", "rB7", None))
    for i in range(8): pre[RB0 + 1 + i].insert(0, ("lds", rC[i], f"rC{i}"))
    pre[11].insert(0, ("x", f"buffer_load_dwordx4 v{vG}, {W}, s{sKX} offen sc1 lds", None))
    pre[12].append(("x", f"buffer_load_dwordx4 v{vG}, {W}, s{sKX} offen offset:1024 sc1 lds", None))
    pre[13].insert(0, ("x", f"s_mov_b32 m0, {L_JUNK}", None))
    pre[13].append(("x", f"buffer_load_dword v{MR}, {W}, s{sPF} offen lds", None))
    if CFG["pub"]:
        pre[20].insert(0, ("x", PUBST, None))
        pre[21].insert(0, ("x", f"buffer_store_dword v{FLG}, v{FLG+1}, {W}, s{sFM} offen sc1", None))
    for i, l in zip((4, 4, 4, 5, 5, 5, 6, 6, 6, 7, 22), sc): pre[i].append(("x", l, None))
    assert len(sc) <= 11
    post[21].append(f"v_add_u32 v{vT}, s{sKXO}, v{vLB}")
    def fin2(b, dst): return [f"v_add_f32 v{b}, v{b}, v{b+2}", f"v_add_f32 v{b+1}, v{b+1}, v{b+3}", f"v_cvt_pk_bf16_f32 v{dst}, v{b}, v{b+1}"]
    f = fin2(Q0, Q0) + fin2(K0, Q0 + 1) + fin2(Q1, Q1)
    for i, l in enumerate(f[:7]): post[29 + i].append(l)
    tok = {}
    a("s_waitcnt vmcnt(1)")
    stamp(a, prof, 0)
    for i, key in enumerate(QKSEQ):
        a(smf(acc(key[0], key[1]), MA + 4 * key[2], wop(key)))
        for kind, l, name in pre[i]:
            if kind == "lds": tok[name] = q.op(l)
            elif kind == "w": q.wait(tok[l])
            else: a(l)
        for l in post[i]: a(l)
        if prof and i == CFG["at"]: a("s_memtime s[72:73]")
    if CFG["at"] < 0: stamp(a, prof, 1)
    vi = 0
    def vnext(n=1):
        nonlocal vi
        for _ in range(n):
            key = VSEQ[vi]; vi += 1
            a(smf(aV + 4*key[1], MA + 4*key[2], wop(key)))
    vnext()
    q.op(f"ds_write_b64 v{vXW}, {vr(Q0,2)}")
    a(f[7])
    vnext()
    q.wait(tok["rC7"])
    a(f[8])
    for l in fin2(K1, Q1 + 1): a(l)
    xw = q.op(f"ds_write_b64 v{vXW}, {vr(Q1,2)} offset:128")
    vnext(5)
    q.wait(xw)
    a("s_barrier")
    xr = []
    for k in range(8):
        xr.append(q.op(f"ds_read_b64_tr_b16 {vr(X+2*k,2)}, v{vXR} offset:{(k>>1)*256 + (k&1)*64}"))
        if k in (1, 3, 5, 7): vnext()
    kxl = [f"ds_read_b128 {vr(RING+4*i,4)}, v{vT} offset:{1024*i}" for i in range(8)]
    kx = [q.op(kxl[0]), q.op(kxl[1])]
    vnext()
    kx += [q.op(kxl[2])]
    assert vi == 12
    stamp(a, prof, 2)
    SX, SM, m_, t_ = aQK, aQK + 8, aQK + 12, aQK + 14
    OACC, OA, ONES, LA = MA, MA + 16, MA + 16, X + 4
    sfill = [f"v_mov_b64 {vr(ONES,2)}, s[{sONE2}:{sONE2+1}]", f"v_mov_b64 {vr(ONES+2,2)}, s[{sONE2}:{sONE2+1}]"] + zlist(OACC, 16)
    vfin = fin2(aV, aV) + fin2(aV + 4, aV + 1)
    def sm(acc_, A, ks):
        c = "0" if ks == 0 else vr(acc_, 4)
        a(f"v_mfma_f32_16x16x32_bf16 {vr(acc_,4)}, {vr(A,4)}, {vr(X+4*ks,4)}, {c}")
    q.wait(xr[1])
    for ks in range(4):
        sm(SM, X + 4*ks, ks)
        kx.append(q.op(kxl[3 + ks]))
        if ks == 3: kx.append(q.op(kxl[7]))
        q.wait(xr[2*ks+3] if ks < 3 else kx[0])
    fl = sfill + vfin
    for j in range(8):
        kt, ks = j >> 2, j & 3
        sm(SX + 4*kt, RING + 4*j, ks)
        if j < 7: q.wait(kx[j + 1])
        if j == 6:
            a(f"v_max3_f32 v{m_}, v{SM+2}, v{SM+3}, v{SX}")
            a(f"v_max3_f32 v{m_}, v{m_}, v{SX+1}, v{SX+2}")
        else:
            a(fl.pop(0)); a(fl.pop(0))
    rD = ring_load(3)
    for l in fl: a(l)
    a(f"v_max_f32 v{m_}, v{m_}, v{SX+3}")
    stamp(a, prof, 3)
    a(f"v_max3_f32 v{m_}, v{m_}, v{SX+4}, v{SX+5}")
    a(f"v_max3_f32 v{t_}, v{m_}, v{SX+6}, v{SX+7}")
    a(f"v_max3_f32 v{m_}, v{m_}, v{SX+6}, v{SX+7}")
    a(f"v_permlane16_swap_b32 v{m_}, v{t_}")
    a(f"v_max_f32 v{t_+1}, v{m_}, v{t_}")
    a(f"v_max_f32 v{m_}, v{m_}, v{t_}")
    a(f"v_permlane32_swap_b32 v{m_}, v{t_+1}")
    a(f"v_max_f32 v{m_}, v{m_}, v{t_+1}")
    a(f"v_mul_f32 v{m_}, s{sC2}, v{m_}")
    def pf(r): a(f"v_pk_fma_f32 {vr(r,2)}, {vr(r,2)}, s[{sC2}:{sC2+1}], {vr(m_,2)} op_sel_hi:[1,1,0] neg_lo:[0,0,1] neg_hi:[0,0,1]")
    P, OAc = X, X + 8
    pf(SM + 2)
    for i in range(4): pf(SX + 2*i)
    a(f"v_exp_f32 v{SM+2}, v{SM+2}")
    a(f"v_exp_f32 v{SM+3}, v{SM+3}")
    a(f"v_exp_f32 v{SX}, v{SX}")
    a(f"v_cvt_pk_bf16_f32 v{PM}, v{SM+2}, v{SM+3}")
    a(f"v_cvt_pk_bf16_f32 v{PM+3}, v{SM+2}, v{SM+3}")
    a(f"v_exp_f32 v{SX+1}, v{SX+1}")
    a(f"v_mfma_f32_16x16x16_bf16 {vr(LA,4)}, {vr(ONES,2)}, {vr(PM,2)}, 0")
    a(f"s_cmp_eq_u32 s{sS}, 63")
    a(f"v_exp_f32 v{SX+2}, v{SX+2}")
    a(f"v_mfma_f32_16x16x16_bf16 {vr(OAc,4)}, {vr(aV,2)}, {vr(PM,2)}, 0")
    a(f"s_cbranch_scc1 CH_LAST")
    a(f"v_exp_f32 v{SX+3}, v{SX+3}")
    a(f"v_mfma_f32_16x16x16_bf16 {vr(OAc+4,4)}, {vr(aV,2)}, {vr(PM+2,2)}, 0")
    for i in range(4, 8): a(f"v_exp_f32 v{SX+i}, v{SX+i}")
    for i in range(4): a(f"v_cvt_pk_bf16_f32 v{P+i}, v{SX+2*i}, v{SX+2*i+1}")
    a(f"v_mfma_f32_16x16x32_bf16 {vr(LA,4)}, {vr(ONES,4)}, {vr(P,4)}, {vr(LA,4)}")
    a(f"v_mfma_f32_16x16x32_bf16 {vr(OAc,4)}, {vr(VX,4)}, {vr(P,4)}, {vr(OAc,4)}")
    a(f"v_mfma_f32_16x16x32_bf16 {vr(OAc+4,4)}, {vr(VX+4,4)}, {vr(P,4)}, {vr(OAc+4,4)}")
    DP = "quad_perm:[0,1,0,1] row_mask:0xf bank_mask:0xf"
    a(f"v_rcp_f32_dpp v{t_}, v{LA} {DP}")
    for i in range(8):
        a(f"v_mul_f32_dpp v{OAc+i}, v{OAc+i}, v{t_} {DP}")
        if i == 3:
            a(f"v_cvt_pk_bf16_f32 v{OA}, v{OAc}, v{OAc+1}")
            a(f"v_cvt_pk_bf16_f32 v{OA+1}, v{OAc+2}, v{OAc+3}")
    a(f"v_cvt_pk_bf16_f32 v{OA+2}, v{OAc+4}, v{OAc+5}")
    a(f"v_cvt_pk_bf16_f32 v{OA+3}, v{OAc+6}, v{OAc+7}")
    stamp(a, prof, 4)
    if CFG["e1"]: a(f"s_mov_b64 exec, s[{sXM}:{sXM+1}]")
    ow = q.op(f"ds_write_b128 v{vOW}, {vr(OA,4)}")
    if CFG["e1"]: a(f"s_mov_b64 exec, -1")
    PK = X + 4
    SEL = aQK
    def fin(p):
        b = OACC + 4 * p
        return [f"v_cvt_pk_bf16_f32 v{PK+2*p}, v{b}, v{b+1}", f"v_cvt_pk_bf16_f32 v{PK+2*p+1}, v{b+2}, v{b+3}",
                f"v_bfi_b32 v{PK+2*p}, 1, s{sTAG}, v{PK+2*p}"]
    def pst(p): return f"buffer_store_dwordx2 {vr(PK+2*p,2)}, v{vPS}, {W}, s{sINW+p} offen {stf}"
    def osm(i): a(smf(OACC + 4*OSEQ[i][1], OA + 4*OSEQ[i][2], wop(OSEQ[i])))
    HV, PR = aQK + 4, aQK + 6
    NP = CFG["np"]
    osm(0)
    a(f"buffer_load_dwordx4 {vr(VX,4)}, v{vG}, {W}, s{sVX} offen sc1")
    a(f"v_xor_b32 v{X+1}, 512, v{vOW}")
    osm(1)
    a(f"buffer_load_dwordx4 {vr(VX+4,4)}, v{vG}, {W}, s{sVX} offen offset:1024 sc1")
    a(f"v_xor_b32 v{X+2}, 1024, v{vOW}")
    osm(2)
    a(f"v_xor_b32 v{X+3}, 1536, v{vOW}")
    for l in zlist(aQK + 4, 6): a(l)
    q.wait(ow)
    a("s_barrier")
    oa = [q.op(f"ds_read_b128 {vr(OA+4*k,4)}, v{X+k}") for k in range(1, 4)]
    late = rD + [f"ds_read_b128 {vr(SEL,4)}, v{vLB} offset:{L_SEL-L_MB}"]
    rd = []
    osm(3)
    q.wait(oa[0])
    stamp(a, prof, 5)
    post = {8: fin(0)[0:2], 9: fin(0)[2:], 11: fin(1)[0:2], 12: fin(1)[2:], 14: fin(2)[0:2], 15: fin(2)[2:]}
    vm = []
    pslots = [CFG["pf"] + (k * CFG["ps"]) // 16 for k in range(NP)]
    for i in range(4, 16):
        osm(i)
        if i < 6: q.wait(oa[i - 3])
        n = 0
        if i in pslots:
            k = pslots.index(i)
            a(f"buffer_load_dword v{PR+k}, v{vHR}, {W}, s{sHR} offen sc1"); vm.append(k); n += 1
        while late and n < (1 if (i < 6 or i in post) else 2):
            rd.append(q.op(late.pop(0))); n += 1
        if i == 11: q.wait(rd[1])
        if i in (12, 13, 14):
            while len(rd) <= 2 * (i - 11) + 1: rd.append(q.op(late.pop(0)))
            q.wait(rd[2 * (i - 11) + 1])
        if i in (10, 13): a(pst((i - 10) // 3)); vm.append("s")
        if i == 15: a(f"s_cmp_lg_u32 s{sW}, 0")
        for l in post.get(i, []): a(l)
    a(pst(2)); vm.append("s")
    for l in fin(3): a(l)
    a(pst(3)); vm.append("s")
    for l in late: q.op(l)
    stamp(a, prof, 6)
    a(f"s_cbranch_scc1 CH_HK_{tag}")
    HV = X + 8
    a(f"""v_mov_b32 v{HV}, s{sS}
    v_lshlrev_b32 v{HV+1}, 5, v{vHR}""")
    hop_prep(a, wait=False)
    delay(a, CFG["d1"])
    for k in range(NP):
        a(f"""s_waitcnt vmcnt({len(vm) - 1 - vm.index(k)})
        v_cmp_ne_u32 vcc, s{sS}, v{PR+k}
        s_cbranch_vccz CH_GO_{tag}""")
        if prof: a(f"s_add_u32 s{sPROF}, s{sPROF}, 0x100")
        delay(a, CFG["ps"] - 16 - (4 if prof else 0))
    a.label(f"CH_GO_{tag}")
    RA = X
    def sweep():
        for m in range(8):
            a(f"buffer_load_dwordx4 {vr(MA+4*m,4)}, v{vG}, {W}, s{sINB_R if m < 4 else sINB_R2} offen offset:{1024*(m&3)} sc1")
    sweep()
    delay(a, CFG["hd"])
    a.label(f"CH_RED_{tag}")
    a(f"""s_mov_b64 exec, 0xff
    buffer_store_dword v{HV}, v{HV+1}, {W}, s{sHW} offen {stf}
    s_mov_b64 exec, -1""")
    for m in range(8):
        b = MA + 4 * m
        a(f"s_waitcnt vmcnt({8 - m})")
        a(f"v_mfma_f32_16x16x32_bf16 {vr(RA,4)}, {vr(b,4)}, {vr(SEL,4)}, {'0' if m == 0 else vr(RA,4)}")
        if m == 0: a(f"v_xor_b32 v{ck}, s{sTAG}, v{b}")
        else: a(f"v_bitop3_b32 v{ck}, v{ck}, v{b}, s{sTAG} bitop3:0xf6")
        a(f"v_bitop3_b32 v{ck}, v{ck}, v{b+2}, s{sTAG} bitop3:0xf6")
    a(f"""v_and_b32 v{ck}, 1, v{ck}
    v_cmp_ne_u32 vcc, 0, v{ck}
    s_cbranch_vccnz CH_RED2_{tag}
    v_cvt_pk_bf16_f32 v{RA}, v{RA}, v{RA+1}
    v_cvt_pk_bf16_f32 v{RA+1}, v{RA+2}, v{RA+3}
    buffer_store_dwordx2 {vr(RA,2)}, v{vMS}, {W}, s{sMR} offen {stf}""")
    a.label(f"CH_POLL_{tag}")
    a("s_barrier")
    stamp(a, prof, 7)
    for l in zlist(aQK, 4): a(l)
    ld = f"""buffer_load_dwordx4 {vr(MA,4)}, v{vG}, {W}, s{sMR} offen sc1
    buffer_load_dwordx4 {vr(MA+4,4)}, v{vG}, {W}, s{sMR} offen offset:1024 sc1"""
    delay(a, CFG["d2"])
    a(ld)
    if prof:
        stamp(a, prof, 8)
        stamp(a, prof, 9)
        a(f"""s_waitcnt lgkmcnt(0)
        s_lshl_b32 s{sT0}, s{sS}, 6
        s_lshl_b32 s{sT1}, s{sW}, 12
        s_add_u32 s{sT0}, s{sT0}, s{sT1}
        v_mov_b32 v{MA+8}, 0""")
        for k in range(NST): a(f"v_writelane_b32 v{MA+8}, s{70+2*k}, {k}")
        a(f"v_writelane_b32 v{MA+8}, s{sPROF}, {NST}")
        a(f"v_writelane_b32 v{MA+8}, s{sCNT}, {NST+1}")
        a(f"""s_mov_b32 s{sPROF}, 0
        s_lshl_b32 s{sT1}, s{sH}, 14
        s_add_u32 s{sT0}, s{sT0}, s{sT1}
        s_add_u32 s34, s{sT0}, {WS_PROF - (L_MB >> 2)}
        v_lshrrev_b32 v{MA+9}, 2, v{vLB}""")
    a(f"s_branch CH_TOP_{tag}")
    a.label(f"CH_RED2_{tag}")
    sweep()
    a(f"""s_add_u32 s{sCNT}, s{sCNT}, 1
    s_cmp_gt_u32 s{sCNT}, {SPIN_MAX}
    s_cbranch_scc1 CH_DONE
    s_branch CH_RED_{tag}""")
    a.label(f"CH_RETRY_{tag}")
    DEP = CFG["dep"]
    a("s_mov_b64 exec, vcc")
    for k in range(DEP - 1):
        a(ld); delay(a, CFG["gap"])
    a.label(f"CH_RETRY2_{tag}")
    a(f"""s_mov_b64 exec, vcc
    {ld}
    s_add_u32 s{sCNT}, s{sCNT}, 1""")
    if prof: a(f"s_add_u32 s{sPROF}, s{sPROF}, 1")
    a(f"""s_cmp_gt_u32 s{sCNT}, {SPIN_MAX}
    s_cbranch_scc1 CH_DONE
    s_waitcnt vmcnt({2*(DEP-1)})
    v_max3_u32 v{ck}, v{MA}, v{MA+1}, v{MA+2}
    v_max3_u32 v{ck}, v{ck}, v{MA+3}, v{MA+4}
    v_max3_u32 v{ck}, v{ck}, v{MA+5}, v{MA+6}
    v_max_u32 v{ck}, v{ck}, v{MA+7}
    v_cmp_eq_u32 vcc, -1, v{ck}
    s_cbranch_vccnz CH_RETRY2_{tag}
    s_mov_b64 exec, -1""")
    for l in zlist(aQK, 16): a(l)
    a(f"s_branch CH_TOP_{tag}")
    a.label(f"CH_HK_{tag}")
    hop_prep(a)
    a(f"""s_cmp_eq_u32 s{sW}, 2
    s_cbranch_scc1 CH_HK2_{tag}
    s_cmp_eq_u32 s{sW}, 3
    s_cbranch_scc1 CH_HK3_{tag}
    v_mov_b32 v{HV}, -1""")
    delay(a, CFG["d1"] + CFG["p0"])
    a.label(f"CH_PROBE_{tag}")
    for u in range(4):
        a(f"""buffer_load_dword v{HV}, v{vHR}, {W}, s{sHR} offen sc1
        s_waitcnt vmcnt({CFG["pd"]})
        v_cmp_ne_u32 vcc, s{sS}, v{HV}
        s_cbranch_vccz CH_POLL_{tag}""")
        if u < 3: delay(a, CFG["pg"])
    a(f"""s_add_u32 s{sCNT}, s{sCNT}, 1
    s_cmp_gt_u32 s{sCNT}, {SPIN_MAX}
    s_cbranch_scc0 CH_PROBE_{tag}
    s_branch CH_DONE""")
    a.label(f"CH_HK2_{tag}")
    if CFG["gate"]: kv_gate(a, f"CH_KV_{tag}", f"s_add_u32 s{sT1}, s{sS}, 4")
    a(f"s_branch CH_POLL_{tag}")
    a.label(f"CH_HK3_{tag}")
    a(f"""v_mov_b32 v{X}, -1
    v_lshrrev_b32 v{ck}, 2, v{vLB}
    buffer_store_dword v{X}, v{ck}, {W}, s{sPOM} offen {stf}
    s_branch CH_POLL_{tag}""")

def step_scalars():
    return f"""s_add_u32 s{sS}, s{sS}, 1
    s_add_u32 s{sVX}, s{sVX}, {256*KB*CFG["adv"]}
    s_and_b32 s{sTAG}, s{sS}, 1
    s_mov_b32 s{sCNT}, 0
    s_add_u32 s{sT2}, s{sS}, 3
    s_and_b32 s{sT2}, s{sT2}, 3
    s_lshl_b32 s{sT0}, s{sT2}, 13
    s_add_u32 s{sPOM}, s{sT0}, s{sFREE0}
    s_xor_b32 s{sT0}, s{sT0}, 16384
    s_add_u32 s{sMR}, s{sT0}, {WS_MBUF}
    s_add_u32 s{sKM}, s{sKM}, {128*KB*CFG["advp"]}""".split("\n")

def chain_role(a, prof=False):
    a.label("CHAIN")
    if prof: a("s_memrealtime s[92:93]")
    chain_startup(a)
    a(f"""s_mov_b32 s{sCNT}, 0
    v_mov_b32 v{X}, 8""")
    a.label("CH_ROSTER")
    a(f"""global_load_dword v{X+1}, v{X}, s[{S_DBG}:{S_DBG+1}] sc1
    s_add_u32 s{sCNT}, s{sCNT}, 1
    s_waitcnt vmcnt(0)
    v_readfirstlane_b32 s{sT0}, v{X+1}
    s_cmp_gt_u32 s{sCNT}, {SPIN_MAX}
    s_cbranch_scc1 CH_DONE
    s_and_b32 s{sT1}, s{sT0}, 0xffff
    s_cmp_lt_u32 s{sT1}, {CFG['init']}
    s_cbranch_scc1 CH_ROSTER""")
    a(f"s_mov_b32 s{sMODE}, s{sT0}")
    if CFG["gate"]: kv_gate(a, "CH_KV0", f"s_mov_b32 s{sT1}, 3")
    a(f"""s_lshl_b32 s{sT0}, s{sW}, 11
    s_add_u32 s{sLKX}, s{sT0}, {L_MB}
    s_add_u32 m0, s{sLKX}, 8192
    s_mov_b32 s{sKXO}, 16384
    buffer_load_dwordx4 v{vG}, {W}, s{sKX} offen sc1 lds
    buffer_load_dwordx4 v{vG}, {W}, s{sKX} offen offset:1024 sc1 lds
    buffer_load_dwordx4 {vr(VX,4)}, v{vG}, {W}, s{sVX} offen sc1
    buffer_load_dwordx4 {vr(VX+4,4)}, v{vG}, {W}, s{sVX} offen offset:1024 sc1
    s_add_u32 s{sPF}, s{sVX}, s{sT0}
    s_add_u32 s{sPF}, s{sPF}, {256*KB - 2*L_MB}
    v_lshlrev_b32 v{X+2}, 1, v{vLB}
    buffer_load_dword v{X+3}, v{X+2}, {W}, s{sPF} offen
    s_lshl_b32 s{sFREE0}, s{sH}, 8
    s_add_u32 s{sFREE0}, s{sFREE0}, {WS_MBUF - (L_MB >> 2)}
    s_mov_b32 s{sMR}, {WS_MBUF}
    s_mov_b32 s34, {WS_PROF + 600*KB}
    v_mov_b32 v{MA+9}, 0
    s_mov_b32 s{sPROF}, 0""")
    for l in ring_load(0): a(l)
    for l in zlist(aQK, 24): a(l)
    hop_prep2(a)
    a("s_waitcnt vmcnt(0)")
    if prof: a("s_memrealtime s[94:95]")
    a(f"""s_waitcnt lgkmcnt(0)
    s_cmp_eq_u32 s{sMODE}, {CFG['init']}
    s_cbranch_scc0 CH_TOP_slow""")
    chain_loop(a, "fast", "", prof is True)
    chain_loop(a, "slow", "sc1", prof is True)
    a.label("CH_LAST")
    pub_prepare(a)
    a(PUBST)
    a(f"""v_mov_b32 v{MA+4}, 64
    v_sub_u32 v{MA+5}, 0, v{vG}
    v_lshrrev_b32 v{MA+5}, 1, v{MA+5}
    s_waitcnt vmcnt(0)
    s_barrier
    buffer_store_dword v{MA+4}, v{MA+5}, {W}, s{sFM} offen sc1""")
    if prof:
        a(f"""s_memrealtime s[96:97]
        s_waitcnt lgkmcnt(0)
        v_mov_b32 v{MA}, s92
        v_mov_b32 v{MA+1}, s94
        v_mov_b32 v{MA+2}, s96
        v_mov_b32 v{MA+3}, 0
        s_lshl_b32 s{sT0}, s{sH}, 4
        s_add_u32 s{sT0}, s{sT0}, {WS_PROF + 512*KB}
        buffer_store_dwordx4 {vr(MA,4)}, v{MA+3}, {W}, s{sT0} offen""")
    a.label("CH_DONE")
    a("""s_waitcnt vmcnt(0)
    s_endpgm""")
```

```python
KB = 1024; MB = 1024*1024
WS_FLAGS = 0
WS_MBUF  = 64*KB
WS_HINT  = 96*KB
WS_PROF  = 128*KB
WS_INBOX = 1*MB
WS_KX    = 2*MB
WS_VX    = 18*MB
WS_MH    = 35*MB
WS_O     = 43*MB
WS_A1    = 59*MB
WS_A2    = 61*MB
WS_END   = 63*MB
NG = 4
F_KV = 0
F_O  = 4096
F_M  = 8192
D_TICK = 128
D_OVF = 8
D_INIT = 4
```

```python
from asmlib import *
from layout import *
from chain import (S_WO, S_OUT, S_DBG, SRD_WS, SRD_T, sW, sROLE, W, set_srd, LdsQ, SPIN_MAX)
from qa import wait_dbg, INIT_TARGET

sCB, sTQ, sS, sT0, sT1, sT2, sCNT, sOo, sOUT, sF, sNEED = range(48, 59)
T = f"s[{SRD_T}:{SRD_T+3}]"
vL16, vIDX, vFL, vRW, vST, vTR, vD = range(7)
A, ACC, TMP = 16, 80, 96

def op_role(a, first_role):
    a.label("OP")
    lane, t0, t1, t2 = 8, 9, 10, 11
    a(f"""s_sub_u32 s{sT0}, s{sROLE}, {first_role}
    s_and_b32 s{sCB}, s{sT0}, 15
    s_lshr_b32 s{sTQ}, s{sT0}, 4
    v_mbcnt_lo_u32_b32 v{lane}, -1, 0
    v_mbcnt_hi_u32_b32 v{lane}, -1, v{lane}
    v_lshlrev_b32 v{vL16}, 4, v{lane}""")
    a(f"""v_bfe_u32 v{t0}, v{lane}, 3, 1
    v_lshlrev_b32 v{t0}, 5, v{t0}
    v_bfe_u32 v{t1}, v{lane}, 2, 1
    v_add_u32 v{t0}, v{t0}, v{t1}
    v_bfe_u32 v{t1}, v{lane}, 4, 1
    v_lshl_add_u32 v{t0}, v{t1}, 3, v{t0}
    v_lshrrev_b32 v{t1}, 5, v{lane}
    v_lshl_add_u32 v{t0}, v{t1}, 2, v{t0}
    v_and_b32 v{t1}, 3, v{lane}
    v_lshlrev_b32 v{t2}, 4, v{t1}
    v_lshl_add_u32 v{vD}, v{t0}, 10, v{t2}
    s_lshl_b32 s{sT0}, s{sW}, 20
    s_lshl_b32 s{sT1}, s{sCB}, 6
    s_add_u32 s{sT0}, s{sT0}, s{sT1}
    v_add_u32 v{vD}, s{sT0}, v{vD}
    v_lshrrev_b32 v{t0}, 2, v{lane}
    v_lshlrev_b32 v{t0}, 6, v{t0}
    v_lshl_add_u32 v{vTR}, v{t1}, 3, v{t0}
    s_lshl_b32 s{sT2}, s{sW}, 15
    v_add_u32 v{vTR}, s{sT2}, v{vTR}""")
    set_srd(a, SRD_T, S_WO, 4 * MB)
    def issue(c):
        for i in range(16):
            kk, m = 4 * c + (i >> 2), i & 3
            a(f"""s_add_u32 m0, s{sT2}, {(c & 1) * 16384 + i * 1024}
            s_mov_b32 s{sT0}, {(64 * kk + 16 * (m >> 1) + 2 * (m & 1)) * 1024}
            buffer_load_dwordx4 v{vD}, {T}, s{sT0} offen lds""")
    a("s_barrier")
    issue(0); issue(1)
    a(f"""v_mov_b32 v{t0}, 0x4444
    v_mov_b32 v{t1}, 0xeeee
    v_and_b32 v{t2}, 8, v{lane}
    v_cmp_ne_u32 vcc, 0, v{t2}
    v_cndmask_b32 v{vIDX}, v{t0}, v{t1}, vcc
    v_and_b32 v{t0}, 7, v{lane}
    s_lshl_b32 s{sT0}, s{sW}, 5
    v_lshlrev_b32 v{vFL}, 2, v{t0}
    v_add_u32 v{vFL}, s{sT0}, v{vFL}
    s_lshl_b32 s{sT0}, s{sW}, 10
    s_add_u32 s{sT0}, s{sT0}, 131072
    v_add_u32 v{vRW}, s{sT0}, v{vL16}""")
    a(f"""v_bfe_u32 v{t0}, v{lane}, 4, 1
    v_and_b32 v{t1}, 1, v{lane}
    v_lshl_add_u32 v{t0}, v{t0}, 1, v{t1}
    v_lshlrev_b32 v{t0}, 12, v{t0}
    v_lshrrev_b32 v{t1}, 5, v{lane}
    v_lshl_add_u32 v{t0}, v{t1}, 5, v{t0}
    v_and_b32 v{t1}, 14, v{lane}
    v_lshl_add_u32 v{vST}, v{t1}, 1, v{t0}
    s_lshl_b32 s{sOUT}, s{sTQ}, 14
    s_lshl_b32 s{sT1}, s{sCB}, 6
    s_add_u32 s{sOUT}, s{sOUT}, s{sT1}
    s_add_u32 s{sOUT}, s{sOUT}, 1024
    s_lshl_b32 s{sOo}, s{sTQ}, 16
    s_lshl_b32 s{sT1}, s{sW}, 14
    s_add_u32 s{sOo}, s{sOo}, s{sT1}
    s_add_u32 s{sOo}, s{sOo}, {WS_O}
    s_mov_b32 s{sS}, 0""")
    for c in range(4):
        a(f"s_waitcnt vmcnt({16 if c < 3 else 0})")
        for i in range(16):
            kk, m = 4 * c + (i >> 2), i & 3
            for Tt in range(2):
                a(f"ds_read_b64_tr_b16 {ar((2*kk + Tt)*8 + 2*m, 2)}, v{vTR} offset:{(c & 1)*16384 + i*1024 + Tt*32}")
        a("s_waitcnt lgkmcnt(0)")
        if c + 2 < 4: issue(c + 2)
    set_srd(a, SRD_T, S_OUT, 4 * MB)
    wait_dbg(a, "OP_INIT", 8, INIT_TARGET, t0, t1, sCNT, sT0, "EXIT", mask=True)
    a.label("OP_LOOP")
    a(f"""s_and_b32 s{sF}, s{sS}, {NG - 1}
    s_lshl_b32 s{sF}, s{sF}, 7
    s_add_u32 s{sF}, s{sF}, {WS_FLAGS + F_O}
    s_lshr_b32 s{sNEED}, s{sS}, {NG.bit_length() - 1}
    s_mov_b32 s{sCNT}, 0""")
    for l in [f"v_mov_b64 v[{ACC+i}:{ACC+i+1}], 0" for i in range(0, 8, 2)]: a(l)
    a.label("OP_W")
    a(f"""buffer_load_dword v{TMP}, v{vFL}, {W}, s{sF} offen sc1
    s_add_u32 s{sCNT}, s{sCNT}, 1
    s_cmp_gt_u32 s{sCNT}, {SPIN_MAX}
    s_cbranch_scc1 EXIT
    s_waitcnt vmcnt(0)
    v_cmp_ge_u32 vcc, s{sNEED}, v{TMP}
    s_cbranch_vccz OP_GO
    s_sleep 2
    s_branch OP_W""")
    a.label("OP_GO")
    for kk in range(16):
        if kk & 3 == 0: a(f"s_add_u32 s{sT0}, s{sOo}, {1024 * kk}")
        a(f"buffer_load_dwordx4 {vr(A+4*kk,4)}, v{vL16}, {W}, s{sT0} offen offset:{1024*(kk&3)} sc1")
    for kk in range(16):
        a(f"s_waitcnt vmcnt({15-kk})")
        for Tt in range(2):
            a(f"v_smfmac_f32_16x16x64_bf16 {vr(ACC+4*Tt,4)}, {vr(A+4*kk,4)}, {ar((2*kk+Tt)*8,8)}, v{vIDX}")
    for r in range(4): a(f"v_permlane32_swap_b32 v{ACC+r}, v{ACC+4+r}")
    for r in range(4): a(f"v_add_f32 v{ACC+r}, v{ACC+r}, v{ACC+4+r}")
    a(f"""ds_write_b128 v{vRW}, {vr(ACC,4)}
    s_waitcnt lgkmcnt(0)
    s_barrier
    s_cmp_lg_u32 s{sW}, 0
    s_cbranch_scc1 OP_NEXT""")
    for w in range(1, 4): a(f"ds_read_b128 {vr(TMP+4*w,4)}, v{vRW} offset:{1024*w}")
    a("s_waitcnt lgkmcnt(0)")
    for r in range(4):
        a(f"v_add_f32 v{ACC+r}, v{ACC+r}, v{TMP+4+r}")
        a(f"v_add_f32 v{TMP+8+r}, v{TMP+8+r}, v{TMP+12+r}")
    for r in range(4): a(f"v_add_f32 v{ACC+r}, v{ACC+r}, v{TMP+8+r}")
    for r in range(4): a(f"v_mov_b32_dpp v{TMP+r}, v{ACC+r} quad_perm:[1,0,3,2] row_mask:0xf bank_mask:0xf")
    a(f"""v_cvt_pk_bf16_f32 v{TMP+4}, v{ACC}, v{TMP}
    v_cvt_pk_bf16_f32 v{TMP+5}, v{ACC+1}, v{TMP+1}
    v_cvt_pk_bf16_f32 v{TMP+6}, v{TMP+2}, v{ACC+2}
    v_cvt_pk_bf16_f32 v{TMP+7}, v{TMP+3}, v{ACC+3}
    s_mov_b32 vcc_lo, 0xaaaaaaaa
    s_mov_b32 vcc_hi, 0xaaaaaaaa
    v_cndmask_b32 v{TMP+4}, v{TMP+4}, v{TMP+6}, vcc
    v_cndmask_b32 v{TMP+5}, v{TMP+5}, v{TMP+7}, vcc
    buffer_store_dword v{TMP+4}, v{vST}, {T}, s{sOUT} offen
    buffer_store_dword v{TMP+5}, v{vST}, {T}, s{sOUT} offen offset:2048""")
    a.label("OP_NEXT")
    a(f"""v_xor_b32 v{vRW}, 4096, v{vRW}
    s_add_u32 s{sOo}, s{sOo}, {256 * KB}
    s_add_u32 s{sOUT}, s{sOUT}, 65536
    s_add_u32 s{sS}, s{sS}, 1
    s_cmp_lt_u32 s{sS}, 64
    s_cbranch_scc1 OP_LOOP
    s_waitcnt vmcnt(0)
    s_endpgm""")
```

```python
from asmlib import *
from layout import *
from chain import (S_AX, S_WR, S_WI, S_OUT, S_DBG, SRD_WS, SRD_T, sW, sROLE, W, set_srd, LdsQ, SPIN_MAX)
import qa
from qa import wait_dbg, stage_consts, x_consts, x_issue, vXS, vA, sT0, sT1, sT2, sCNT

sR, sK, sRE, sIM, sSC, sPASS, sB0, sL = 48, 49, 50, 55, 56, 57, 58, 59
SRD_U = 60
T = f"s[{SRD_T}:{SRD_T+3}]"
U = f"s[{SRD_U}:{SRD_U+3}]"
lane, vO = 2, 3
ACC, FR, TM, CN = 16, 80, 112, 128
def perm(r): return 16 * (r >> 3) + 8 * ((r & 7) >> 2) + (r & 3)
def fbits(x):
    import struct
    return "0x%08x" % struct.unpack("<I", struct.pack("<f", x))[0]

def arrive(a, off, t0, t1):
    lab = a.uid("PA_ARR")
    a(f"""s_waitcnt vmcnt(0)
    s_barrier
    s_cmp_lg_u32 s{sW}, 0
    s_cbranch_scc1 {lab}
    buffer_wbl2 sc1
    s_waitcnt vmcnt(0)
    v_mov_b32 v{t0}, 1
    v_mov_b32 v{t1}, {off}
    s_mov_b64 exec, 1
    global_atomic_add v{t1}, v{t0}, s[{S_DBG}:{S_DBG+1}]
    s_mov_b64 exec, -1""")
    a.label(lab)

def stage1(a):
    t0, t1, t2, kf, base = TM, TM + 1, TM + 2, TM + 3, TM + 4
    P = TM + 8
    x_consts(a, lane, t0, t1)
    set_srd(a, SRD_T, S_AX, 2 * MB)
    a(f"""s_lshr_b32 s{sB0}, s{sR}, 2
    s_lshl_b32 s{sB0}, s{sB0}, 2
    s_lshl_b32 s{sT2}, s{sW}, 19
    s_lshl_b32 s{sT0}, s{sB0}, 10
    s_add_u32 s{sT2}, s{sT2}, s{sT0}
    s_lshl_b32 s{sL}, s{sW}, 13""")
    for i in range(4):
        x_issue(a, sT2, 65536, sL, t0)
        a(f"""s_add_u32 s{sT2}, s{sT2}, 1024
        s_add_u32 s{sL}, s{sL}, 32768""")
    a(f"""s_and_b32 s{sT0}, s{sR}, 3
    s_lshl_b32 s{sT0}, s{sT0}, 2
    s_add_u32 s{sT0}, s{sT0}, s{sW}
    s_lshl_b32 s{sT0}, s{sT0}, 5
    v_and_b32 v{t0}, 31, v{lane}
    v_add_u32 v{t0}, s{sT0}, v{t0}
    v_lshrrev_b32 v{t1}, 5, v{lane}
    v_lshlrev_b32 v{vO}, 12, v{t0}
    v_lshl_add_u32 v{vO}, v{t1}, 10, v{vO}
    v_lshrrev_b32 v{kf}, 1, v{t0}
    v_and_b32 v{base}, 1, v{t0}
    v_lshlrev_b32 v{base}, 7, v{base}
    v_cmp_eq_u32 vcc, 1, v{t0}
    v_mov_b32 v{t2}, 256
    v_cndmask_b32 v{kf}, v{kf}, v{t2}, vcc
    v_cndmask_b32 v{base}, v{base}, 0, vcc
    v_lshlrev_b32 v{t1}, 3, v{t1}
    v_mad_u32_u24 v{base}, v{kf}, v{t1}, v{base}
    v_cvt_f32_u32 v{kf}, v{kf}
    v_cvt_f32_u32 v{base}, v{base}
    v_mul_f32 v{kf}, {fbits(1/512)}, v{kf}
    v_mul_f32 v{base}, {fbits(1/512)}, v{base}
    v_mul_f32 v{t2}, {fbits(16.0)}, v{kf}""")
    for ks in range(32):
        a(f"v_fract_f32 v{P}, v{base}")
        for j in range(1, 8): a(f"v_add_f32 v{P+j}, v{P+j-1}, v{kf}")
        a(f"v_add_f32 v{base}, v{P}, v{t2}")
        for j in range(8): a(f"v_cos_f32 v{P+j}, v{P+j}")
        for j in range(4): a(f"v_cvt_pk_bf16_f32 v{CN+4*ks+j}, v{P+2*j}, v{P+2*j+1}")
    a(f"""s_lshl_b32 s{sT2}, s{sB0}, 4
    s_add_u32 s{sT2}, s{sT2}, {WS_A1}
    s_waitcnt vmcnt(0)
    s_barrier""")
    for i in range(4):
        q = LdsQ(a)
        if i == 2:
            for v in range(8): a(f"v_add_u32 v{vA+v}, 0x10000, v{vA+v}")
        rd = lambda ks: f"ds_read_b128 {vr(FR + 4*(ks & 7), 4)}, v{vA + (ks & 7)} offset:{256 * (ks >> 3) + 32768 * (i & 1)}"
        tk = {}
        for ks in range(6): tk[ks] = q.op(rd(ks))
        acc = vr(ACC + 16 * i, 16)
        for ks in range(32):
            q.wait(tk[ks])
            a(f"v_mfma_f32_32x32x16_bf16 {acc}, {vr(FR+4*(ks&7),4)}, {vr(CN+4*ks,4)}, {'0' if ks == 0 else acc}")
            if ks + 6 < 32: tk[ks + 6] = q.op(rd(ks + 6))
    for i in range(4):
        for j in range(8): a(f"v_cvt_pk_bf16_f32 v{FR+8*i+j}, v{ACC+16*i+2*j}, v{ACC+16*i+2*j+1}")
        for k in range(2): a(f"buffer_store_dwordx4 {vr(FR+8*i+4*k,4)}, v{vO}, {W}, s{sT2} offen offset:{2048*k + 16*i}")
    arrive(a, 12, t0, t1)

C32, C64 = CN, CN + 24
def c32(t, k): return vr(C32 + 8 * t + 4 * k, 4)
def c64(t, tile, b): return vr(C64 + 32 * t + 16 * tile + 4 * b, 4)

def gen_consts(a):
    f, h4, p = TM, TM + 1, TM + 2
    def block(dst_c, dst_s, dst_n, k0):
        for jj in range(8):
            a(f"v_add_f32 v{p}, {fbits(float(k0 + 8*(jj>>2) + (jj&3)))}, v{h4}")
            a(f"v_mul_f32 v{p}, v{p}, v{f}")
            a(f"v_fract_f32 v{p}, v{p}")
            a(f"v_cos_f32 v{p+2+(jj&1)}, v{p}")
            a(f"v_sin_f32 v{p+4+(jj&1)}, v{p}")
            if jj & 1:
                a(f"v_cvt_pk_bf16_f32 v{dst_c+(jj>>1)}, v{p+2}, v{p+3}")
                a(f"v_cvt_pk_bf16_f32 v{dst_s+(jj>>1)}, v{p+4}, v{p+5}")
                a(f"v_xor_b32 v{dst_n+(jj>>1)}, 0x80008000, v{dst_s+(jj>>1)}")
    a(f"""v_lshrrev_b32 v{h4}, 5, v{lane}
    v_lshlrev_b32 v{h4}, 2, v{h4}
    v_cvt_f32_u32 v{h4}, v{h4}
    v_and_b32 v{f}, 31, v{lane}
    v_cvt_f32_u32 v{f}, v{f}
    v_mul_f32 v{f}, {fbits(1/32)}, v{f}""")
    for k in range(2): block(C32 + 4*k, C32 + 8 + 4*k, C32 + 16 + 4*k, 16 * k)
    a(f"v_mul_f32 v{f}, 0.5, v{f}")
    for tile in range(2):
        if tile: a(f"v_add_f32 v{f}, 0.5, v{f}")
        for b in range(4): block(C64 + 16*tile + 4*b, C64 + 32 + 16*tile + 4*b, C64 + 64 + 16*tile + 4*b, 16 * b)

def stage2(a):
    t0, t1, vW, vLD, vIM, vSI = 4, 5, 6, 7, 8, 9
    R = lambda tile: ACC + 32 * tile
    I = lambda tile: ACC + 32 * tile + 16
    fr = lambda part, beta: FR + 16 * part + 4 * beta
    set_srd(a, SRD_T, S_WR, 2048 * 257 * 2)
    set_srd(a, SRD_U, S_WI, 2048 * 257 * 2)
    a(f"""s_lshl_b32 s{sK}, s{sR}, 2
    s_add_u32 s{sK}, s{sK}, s{sW}
    s_mov_b32 s{sPASS}, 0
    v_and_b32 v{t0}, 31, v{lane}
    v_lshrrev_b32 v{t1}, 5, v{lane}
    v_lshl_add_u32 v{vW}, v{t1}, 7, v{t0}
    v_mul_u32_u24 v{vW}, 514, v{vW}
    v_lshlrev_b32 v{vLD}, 4, v{t0}
    v_lshl_add_u32 v{vLD}, v{t1}, 10, v{vLD}
    v_lshlrev_b32 v{vO}, 4, v{lane}""")
    a.label("PA2_COL")
    for i in range(64): a(f"v_accvgpr_write_b32 a{i}, 0")
    a(f"s_lshl_b32 s{sT2}, s{sK}, 1")
    for et in range(2):
        for r in range(16):
            a(f"""s_add_u32 s{sT0}, s{sT2}, {32 * (32 * et + perm(r)) * 514}
            buffer_load_short_d16_hi a{16*et+r}, v{vW}, {T}, s{sT0} offen
            buffer_load_short_d16_hi a{32+16*et+r}, v{vW}, {U}, s{sT0} offen""")
        if et == 0: a("s_waitcnt vmcnt(20)")
    a(f"""s_lshl_b32 s{sRE}, s{sK}, 13
    s_mov_b32 s{sSC}, {fbits(2.0**-19)}
    s_mov_b32 s{sIM}, 4096
    s_and_b32 s{sT0}, s{sK}, 255
    s_cmp_eq_u32 s{sT0}, 0
    s_cselect_b32 s{sSC}, {fbits(2.0**-20)}, s{sSC}
    s_cselect_b32 s{sIM}, 0x40000000, s{sIM}
    s_cmp_eq_u32 s{sK}, 256
    s_cselect_b32 s{sRE}, 4096, s{sRE}
    v_add_u32 v{vIM}, s{sIM}, v{vLD}
    v_add_u32 v{vSI}, s{sIM}, v{vO}
    s_cmp_lg_u32 s{sPASS}, 0
    s_cbranch_scc1 PA2_GO""")
    gen_consts(a)
    wait_dbg(a, "PA2_W", 12, 64, t0, t1, sCNT, sT0, "EXIT")
    a.label("PA2_GO")
    a(f"s_add_u32 s{sT0}, s{sRE}, {WS_A1}")
    for part in range(2):
        for bt in range(2):
            for k in range(2):
                a(f"buffer_load_dwordx4 {vr(fr(part, 2*bt+k),4)}, v{vIM if part else vLD}, {W}, s{sT0} offen offset:{2048*k + 512*bt} sc1")
    a("s_waitcnt vmcnt(0)")
    def mm(acc, terms):
        for n, (x, y) in enumerate(terms):
            a(f"v_mfma_f32_32x32x16_bf16 {vr(acc,16)}, {x}, {y}, {'0' if n == 0 else vr(acc,16)}")
    F = lambda part, beta: vr(fr(part, beta), 4)
    def small(sgn):
        for bt in range(2):
            mm(R(bt), [(F(0, 2*bt+k), c32(0, k)) for k in range(2)] + [(F(1, 2*bt+k), c32(2 if sgn else 1, k)) for k in range(2)])
            mm(I(bt), [(F(1, 2*bt+k), c32(0, k)) for k in range(2)] + [(F(0, 2*bt+k), c32(1 if sgn else 2, k)) for k in range(2)])
    def pack():
        for tile in range(2):
            for j in range(8):
                a(f"v_cvt_pk_bf16_f32 v{FR+8*tile+j}, v{R(tile)+2*j}, v{R(tile)+2*j+1}")
                a(f"v_cvt_pk_bf16_f32 v{FR+16+8*tile+j}, v{I(tile)+2*j}, v{I(tile)+2*j+1}")
    def cmul(x, y, c, s, t, conj):
        a(f"v_mul_f32 v{t}, v{y}, v{s}")
        a(f"v_mul_f32 v{y}, v{y}, v{c}")
        a(f"v_fma_f32 v{y}, {'-' if conj else ''}v{x}, v{s}, v{y}")
        a(f"v_fma_f32 v{x}, v{x}, v{c}, {'' if conj else '-'}v{t}")
    def twiddle(fwd):
        f, h4 = TM, TM + 1
        a(f"""v_lshrrev_b32 v{h4}, 5, v{lane}
        v_lshlrev_b32 v{h4}, 2, v{h4}
        v_cvt_f32_u32 v{h4}, v{h4}
        v_and_b32 v{f}, 31, v{lane}
        v_cvt_f32_u32 v{f}, v{f}
        v_mul_f32 v{f}, {fbits(1/2048)}, v{f}""")
        for tile in range(2):
            if tile and not fwd: a(f"v_add_f32 v{f}, {fbits(32/2048)}, v{f}")
            for r in range(16):
                p = TM + 4 + 4 * (r & 1)
                x = perm(r) + (32 * tile if fwd else 0)
                a(f"v_add_f32 v{p}, {fbits(float(x))}, v{h4}")
                a(f"v_mul_f32 v{p}, v{p}, v{f}")
                a(f"v_cos_f32 v{p+1}, v{p}")
                a(f"v_sin_f32 v{p+2}, v{p}")
                cmul(R(tile) + r, I(tile) + r, p + 1, p + 2, p + 3, conj=fwd)
    small(0)
    twiddle(True)
    pack()
    for et in range(2):
        mm(R(et), [(c64(0, et, b), F(0, b)) for b in range(4)] + [(c64(1, et, b), F(1, b)) for b in range(4)])
        mm(I(et), [(c64(0, et, b), F(1, b)) for b in range(4)] + [(c64(2, et, b), F(0, b)) for b in range(4)])
    for et in range(2):
        for r in range(16):
            p = TM + 4 + 4 * (r & 1)
            a(f"v_accvgpr_read_b32 v{p+1}, a{16*et+r}")
            a(f"v_accvgpr_read_b32 v{p+2}, a{32+16*et+r}")
            cmul(R(et) + r, I(et) + r, p + 1, p + 2, p + 3, conj=False)
    pack()
    for bt in range(2):
        mm(R(bt), [(F(0, e), c64(0, bt, e)) for e in range(4)] + [(F(1, e), c64(2, bt, e)) for e in range(4)])
        mm(I(bt), [(F(1, e), c64(0, bt, e)) for e in range(4)] + [(F(0, e), c64(1, bt, e)) for e in range(4)])
    twiddle(False)
    pack()
    small(1)
    for i in range(64): a(f"v_mul_f32 v{ACC+i}, s{sSC}, v{ACC+i}")
    pack()
    a(f"s_add_u32 s{sT0}, s{sRE}, {WS_A2}")
    for part in range(2):
        for b in range(4):
            a(f"buffer_store_dwordx4 {F(part, b)}, v{vSI if part else vO}, {W}, s{sT0} offen offset:{1024*b} sc1")
    a(f"""s_cmp_lg_u32 s{sK}, 0
    s_cbranch_scc1 PA2_END
    s_mov_b32 s{sK}, 256
    s_mov_b32 s{sPASS}, 1
    s_branch PA2_COL""")
    a.label("PA2_END")
    arrive(a, 16, t0, t1)

def stage3(a):
    t0, t1, t2, vD, vTR = 4, 5, 6, 7, 8
    df, base, P = TM, TM + 1, TM + 8
    stage_consts(a, vD, vTR, lane, t0, t1, t2, 12)
    for tt in range(1, 4): a(f"v_xor_b32 v{vTR+tt}, {64*tt}, v{vTR}")
    for tt in range(4): a(f"v_add_u32 v{vTR+4+tt}, 0x10000, v{vTR+tt}")
    a(f"""s_and_b32 s{sT0}, s{sR}, 3
    s_lshl_b32 s{sT0}, s{sT0}, 2
    s_add_u32 s{sT0}, s{sT0}, s{sW}
    s_lshl_b32 s{sB0}, s{sT0}, 5
    v_and_b32 v{t0}, 3, v{lane}
    v_bfe_u32 v{t1}, v{lane}, 2, 1
    v_lshl_add_u32 v{t2}, v{t1}, 4, v{t0}
    v_bfe_u32 v{df}, v{lane}, 3, 2
    v_lshl_add_u32 v{t2}, v{df}, 2, v{t2}
    v_add_u32 v{t2}, s{sB0}, v{t2}
    v_lshl_add_u32 v{vO}, v{t1}, 3, v{t0}
    v_lshl_add_u32 v{vO}, v{df}, 6, v{vO}
    v_lshrrev_b32 v{t1}, 5, v{lane}
    v_lshlrev_b32 v{vO}, 11, v{vO}
    v_lshl_add_u32 v{vO}, v{t1}, 5, v{vO}
    v_cvt_f32_u32 v{df}, v{t2}
    v_mul_f32 v{df}, {fbits(1/512)}, v{df}
    v_lshlrev_b32 v{t1}, 2, v{t1}
    v_cvt_f32_u32 v{base}, v{t1}
    v_mul_f32 v{base}, v{base}, v{df}
    v_mul_f32 v{t2}, {fbits(8.0)}, v{df}
    v_mul_f32 v{t0}, {fbits(256.0)}, v{df}
    v_fract_f32 v{t0}, v{t0}
    v_cmp_gt_u32 vcc, 32, v{lane}""")
    for ks in range(32):
        a(f"v_fract_f32 v{P}, v{base}")
        for j in range(1, 4): a(f"v_add_f32 v{P+2*j}, v{P+2*j-2}, v{df}")
        for j in range(4): a(f"v_add_f32 v{P+2*j+1}, {fbits(0.25)}, v{P+2*j}")
        a(f"v_add_f32 v{base}, v{P}, v{t2}")
        if ks == 0: a(f"v_cndmask_b32 v{P+1}, v{P+1}, v{t0}, vcc")
        for j in range(8): a(f"v_cos_f32 v{P+j}, v{P+j}")
        for j in range(4): a(f"v_cvt_pk_bf16_f32 v{CN+4*ks+j}, v{P+2*j}, v{P+2*j+1}")
    wait_dbg(a, "PA3_W", 16, 64, t0, t1, sCNT, sT0, "EXIT")
    a(f"""s_lshr_b32 s{sT1}, s{sR}, 2
    s_lshl_b32 s{sT2}, s{sT1}, 8
    s_add_u32 s{sT2}, s{sT2}, {WS_A2}
    s_lshl_b32 s{sL}, s{sW}, 10""")
    for i in range(32):
        a(f"""s_add_u32 m0, s{sL}, {4096*i}
        s_add_u32 s{sT0}, s{sT2}, {65536*i}
        buffer_load_dwordx4 v{vD}, {W}, s{sT0} offen sc1 lds""")
    set_srd(a, SRD_T, S_OUT, 4 * MB)
    a(f"""s_and_b32 s{sT0}, s{sT1}, 1
    s_lshl_b32 s{sT2}, s{sT0}, 10
    s_lshr_b32 s{sT0}, s{sT1}, 2
    s_lshl_b32 s{sT0}, s{sT0}, 4
    s_add_u32 s{sT2}, s{sT2}, s{sT0}
    s_and_b32 s{sT0}, s{sT1}, 2
    s_lshl_b32 s{sT0}, s{sT0}, 1
    s_add_u32 s{sT2}, s{sT2}, s{sT0}
    s_lshl_b32 s{sT2}, s{sT2}, 11
    s_lshl_b32 s{sT0}, s{sB0}, 1
    s_add_u32 s{sT2}, s{sT2}, s{sT0}
    s_waitcnt vmcnt(0)
    s_barrier""")
    for tt in range(4):
        q = LdsQ(a)
        def rd(ks):
            for m in range(2):
                t = q.op(f"ds_read_b64_tr_b16 {vr(FR + 4*(ks & 7) + 2*m, 2)}, v{vTR + tt + 4*(ks >> 4)} offset:{4096*(ks & 15) + 1024*m}")
            return t
        tk = {}
        for ks in range(6): tk[ks] = rd(ks)
        acc = vr(ACC + 16 * tt, 16)
        for ks in range(32):
            q.wait(tk[ks])
            a(f"v_mfma_f32_32x32x16_bf16 {acc}, {vr(CN+4*ks,4)}, {vr(FR+4*(ks&7),4)}, {'0' if ks == 0 else acc}")
            if ks + 6 < 32: tk[ks + 6] = rd(ks + 6)
    for tt in range(4):
        for j in range(8): a(f"v_cvt_pk_bf16_f32 v{FR+8*tt+j}, v{ACC+16*tt+2*j}, v{ACC+16*tt+2*j+1}")
        for k in range(2): a(f"buffer_store_dwordx4 {vr(FR+8*tt+4*k,4)}, v{vO}, {T}, s{sT2} offen offset:{16*k}")
        a(f"s_add_u32 s{sT2}, s{sT2}, 524288")

def pa_role(a, first_role):
    a(f"""s_sub_u32 s{sR}, s{sROLE}, {first_role}
    v_and_b32 v{lane}, 63, v0""")
    stage1(a)
    stage2(a)
    stage3(a)
```

```python
from asmlib import *
from layout import *
from chain import (S_BX, S_WQ, S_WK, S_WV, S_DBG, SRD_WS, SRD_T, sW, sROLE, W, set_srd, LdsQ, SPIN_MAX)

sH, sJ, sN, sT0, sT1, sT2, sCNT, sXO, sPA, sPB, sC, sFKV, sFO, sFM, sKXo, sMo, sOo, sL = range(48, 66)
sMASK = 66
T = f"s[{SRD_T}:{SRD_T+3}]"

vL16, vXS, vKS, vVS, vKM, vVM, vOS, vZ = range(8)
vA = 8
ACC, XR, TMP = 16, 64, 96
L_PEND = 65536

def join_init(a, t0, t1, val="1"):
    a(f"""v_mov_b32 v{t0}, {val}
    v_mov_b32 v{t1}, 8
    s_mov_b64 exec, 1
    global_atomic_add v{t1}, v{t0}, s[{S_DBG}:{S_DBG+1}]
    s_mov_b64 exec, -1""")

INIT_TARGET = 1024

def wait_dbg(a, name, off, target, t0, t1, sC_, sT_, fail, mask=False):
    a(f"""s_mov_b32 s{sC_}, 0
    v_mov_b32 v{t0}, {off}""")
    a.label(name)
    a(f"""global_load_dword v{t1}, v{t0}, s[{S_DBG}:{S_DBG+1}] sc1
    s_add_u32 s{sC_}, s{sC_}, 1
    s_cmp_gt_u32 s{sC_}, {SPIN_MAX}
    s_cbranch_scc1 {fail}
    s_waitcnt vmcnt(0)
    v_readfirstlane_b32 s{sT_}, v{t1}""")
    if mask: a(f"s_and_b32 s{sT_}, s{sT_}, 0xffff")
    a(f"""s_cmp_ge_u32 s{sT_}, {target}
    s_cbranch_scc1 {name}_OK
    s_sleep 4
    s_branch {name}""")
    a.label(name + "_OK")

def stage_consts(a, vD, vTR, lane, t0, t1, t2, rowshift):
    a(f"""v_lshrrev_b32 v{t0}, 4, v{lane}
    v_lshlrev_b32 v{t1}, 2, v{t0}
    v_and_b32 v{t2}, 15, v{lane}
    v_xor_b32 v{t1}, v{t1}, v{t2}
    v_lshlrev_b32 v{t1}, 4, v{t1}
    s_lshl_b32 s{sT0}, s{sW}, 2
    v_add_u32 v{t2}, s{sT0}, v{t0}
    v_lshl_add_u32 v{vD}, v{t2}, {rowshift}, v{t1}
    v_bfe_u32 v{t1}, v{lane}, 2, 2
    v_and_b32 v{t2}, 1, v{t0}
    v_lshl_add_u32 v{t2}, v{t1}, 1, v{t2}
    v_lshlrev_b32 v{t2}, 5, v{t2}
    v_lshl_add_u32 v{t2}, v{t1}, 8, v{t2}
    v_and_b32 v{t1}, 3, v{lane}
    v_lshl_add_u32 v{t2}, v{t1}, 3, v{t2}
    v_lshrrev_b32 v{t0}, 1, v{t0}
    v_lshl_add_u32 v{vTR}, v{t0}, 11, v{t2}""")

def x_consts(a, lane, t0, t1):
    a(f"""s_and_b32 s{sT0}, s{sW}, 1
    s_lshl_b32 s{sT0}, s{sT0}, 3
    v_xor_b32 v{vXS}, s{sT0}, v{lane}
    v_lshlrev_b32 v{vXS}, 4, v{vXS}
    v_and_b32 v{t0}, 15, v{lane}
    v_lshrrev_b32 v{t1}, 5, v{lane}
    v_xor_b32 v{t0}, v{t0}, v{t1}
    v_lshlrev_b32 v{t0}, 4, v{t0}
    v_and_b32 v{t1}, 31, v{lane}
    v_lshl_add_u32 v{vA}, v{t1}, 10, v{t0}""")
    for v in range(1, 8): a(f"v_xor_b32 v{vA+v}, {32*v}, v{vA}")

def x_issue(a, sRow0, rowstride, sLds, tmp):
    for r in range(8):
        a(f"""v_xor_b32 v{tmp+(r&1)}, {16*r}, v{vXS}
        s_add_u32 m0, s{sLds}, {1024*r}
        s_add_u32 s{sT1}, s{sRow0}, {rowstride*r}
        buffer_load_dwordx4 v{tmp+(r&1)}, {T}, s{sT1} offen lds""")

def wf(mat, ks): return wr(128 + (mat * 32 + ks) * 4, 4)

def flag_store(a, name, sOff, sVal, t0):
    a(f"""s_cmp_lg_u32 s{sW}, 0
    s_cbranch_scc1 {name}
    v_mov_b32 v{t0}, s{sVal}
    s_mov_b64 exec, 1
    buffer_store_dword v{t0}, v{vZ}, {W}, s{sOff} offen sc1
    s_mov_b64 exec, -1""")
    a.label(name)

def phase_a(a, tag):
    q = LdsQ(a)
    a(f"""s_waitcnt vmcnt(0)
    s_barrier
    s_cmp_ge_u32 s{sN}, {64 // NG - 1}
    s_cbranch_scc1 QA_NOX_{tag}
    s_add_u32 s{sXO}, s{sXO}, {NG * 32 * 1024}
    s_xor_b32 s{sL}, s{sL}, 32768""")
    x_issue(a, sXO, 1024, sL, TMP)
    a.label(f"QA_NOX_{tag}")
    rd = lambda ks: f"ds_read_b128 {vr(XR + 4*(ks & 7), 4)}, v{vA + (ks & 7)} offset:{256 * (ks >> 3)}"
    tk = {}
    for ks in range(6): tk[ks] = q.op(rd(ks))
    for ks in range(32):
        q.wait(tk[ks])
        x = vr(XR + 4*(ks & 7), 4)
        for mat in range(3):
            acc = vr(ACC + 16*mat, 16)
            c = "0" if ks == 0 else acc
            if mat < 2: a(f"v_mfma_f32_32x32x16_bf16 {acc}, {wf(mat, ks)}, {x}, {c}")
            else: a(f"v_mfma_f32_32x32x16_bf16 {acc}, {x}, {wf(mat, ks)}, {c}")
            if mat == 0 and ks + 6 < 32: tk[ks + 6] = q.op(rd(ks + 6))
    for v in range(8): a(f"v_xor_b32 v{vA+v}, 0x8000, v{vA+v}")
    a(f"v_add_u32 v{XR}, s{sPA}, v{vL16}")
    ORD = (0, 1, 4, 5, 2, 3, 6, 7)
    for mat in range(3):
        for i in range(8):
            d = ORD[i] if mat == 2 else i
            a(f"v_cvt_pk_bf16_f32 v{TMP + 8*mat + i}, v{ACC + 16*mat + 2*d}, v{ACC + 16*mat + 2*d + 1}")
        for h in range(2):
            if mat == 1: a(f"buffer_store_dwordx4 {vr(TMP+8+4*h,4)}, v{vKS}, {W}, s{sKXo} offen offset:{512*h} sc1")
            if mat == 2: a(f"buffer_store_dwordx4 {vr(TMP+16+4*h,4)}, v{vVS}, {W}, s{sKXo} offen offset:{512*h} sc1")
            a(f"ds_write_b128 v{XR}, {vr(TMP+8*mat+4*h,4)} offset:{8192*mat + 1024*h}")
    a(f"""s_add_u32 s{sKXo}, s{sKXo}, {NG * 256 * KB}
    s_add_u32 s{sPA}, s{sPA}, 24576
    s_cmp_ge_u32 s{sPA}, {L_PEND + 3 * 24576}
    s_cbranch_scc0 QA_PA_{tag}
    s_sub_u32 s{sPA}, s{sPA}, {3 * 24576}""")
    a.label(f"QA_PA_{tag}")
    a(f"""s_add_u32 s{sN}, s{sN}, 1
    s_waitcnt vmcnt(0) lgkmcnt(0)
    s_barrier""")
    flag_store(a, f"QA_FA_{tag}", sFKV, sN, TMP)

def phase_b(a, tag):
    SX, SM, O = ACC, ACC + 16, ACC + 32
    q = LdsQ(a)
    a(f"""s_lshl_b32 s{sT0}, s{sW}, 11
    s_sub_u32 s{sT0}, s{sPB}, s{sT0}
    v_add_u32 v{O}, s{sT0}, v{vL16}
    v_add_u32 v{O+1}, s{sPB}, v{vL16}""")
    QF, KF = XR, TMP
    tk = []
    for k in range(8):
        q.op(f"ds_read_b128 {vr(QF+4*k,4)}, v{O} offset:{1024*k}")
        tk.append(q.op(f"ds_read_b128 {vr(KF+4*k,4)}, v{O} offset:{8192 + 1024*k}"))
        if k == 5:
            for kk in range(3):
                q.wait(tk[kk])
                a(f"v_mfma_f32_32x32x16_bf16 {vr(SX,16)}, {vr(KF+4*kk,4)}, {vr(QF+4*kk,4)}, {'0' if kk == 0 else vr(SX,16)}")
    for kk in range(3, 8):
        q.wait(tk[kk])
        a(f"v_mfma_f32_32x32x16_bf16 {vr(SX,16)}, {vr(KF+4*kk,4)}, {vr(QF+4*kk,4)}, {vr(SX,16)}")
    a(f"""s_mul_i32 s{sT1}, s{sT2}, {NG}
    s_add_u32 s{sT1}, s{sT1}, s{sJ}
    s_cmp_lg_u32 s{sW}, 0
    s_cbranch_scc1 QA_W2_{tag}
    s_mov_b32 s{sCNT}, 0""")
    a.label(f"QA_W1_{tag}")
    a(f"""buffer_load_dword v{O+2}, v{vZ}, {W}, s{sFM} offen sc1
    s_add_u32 s{sCNT}, s{sCNT}, 1
    s_cmp_gt_u32 s{sCNT}, {SPIN_MAX}
    s_cbranch_scc1 EXIT
    s_waitcnt vmcnt(0)
    v_readfirstlane_b32 s{sT0}, v{O+2}
    s_cmp_gt_i32 s{sT0}, s{sT1}
    s_cbranch_scc1 QA_W2_{tag}
    s_sleep 2
    s_branch QA_W1_{tag}""")
    a.label(f"QA_W2_{tag}")
    a("s_barrier")
    for k in range(8):
        a(f"buffer_load_dwordx4 {vr(KF+4*k,4)}, v{vKM}, {W}, s{sMo} offen offset:{512*k} sc1")
    VM = O + 4
    a(f"""buffer_load_dword v{VM}, v{vVM}, {W}, s{sMo} offen sc1
    buffer_load_dword v{VM+1}, v{vVM}, {W}, s{sMo} offen offset:256 sc1
    v_mov_b32 v{O+2}, 0xff800000""")
    for r in range(16): a(f"v_cndmask_b32 v{SX+r}, v{O+2}, v{SX+r}, s[{sMASK+2*r}:{sMASK+2*r+1}]")
    m_, t_, l_ = O + 8, O + 9, O + 10
    a(f"v_max3_f32 v{m_}, v{SX}, v{SX+1}, v{SX+2}")
    for i in range(3, 15, 2): a(f"v_max3_f32 v{m_}, v{m_}, v{SX+i}, v{SX+i+1}")
    a(f"v_max_f32 v{m_}, v{m_}, v{SX+15}")
    for k in range(8):
        a(f"s_waitcnt vmcnt({9-k})")
        a(f"v_mfma_f32_32x32x16_bf16 {vr(SM,16)}, {vr(KF+4*k,4)}, {vr(QF+4*k,4)}, {'0' if k == 0 else vr(SM,16)}")
    VF = XR
    q.op(f"ds_read_b128 {vr(VF,4)}, v{O+1} offset:16384")
    tv = q.op(f"ds_read_b128 {vr(VF+4,4)}, v{O+1} offset:17408")
    a(f"""v_max3_f32 v{m_}, v{m_}, v{SM}, v{SM+1}
    v_max3_f32 v{m_}, v{m_}, v{SM+2}, v{SM+3}
    v_mov_b32 v{t_}, v{m_}
    v_permlane32_swap_b32 v{m_}, v{t_}
    v_max_f32 v{m_}, v{m_}, v{t_}
    v_mul_f32 v{m_}, s{sC}, v{m_}""")
    for r in range(20): a(f"v_fma_f32 v{SX+r}, v{SX+r}, s{sC}, -v{m_}")
    for r in range(20): a(f"v_exp_f32 v{SX+r}, v{SX+r}")
    P = TMP
    ORD = (0, 1, 4, 5, 2, 3, 6, 7)
    for i in range(8): a(f"v_cvt_pk_bf16_f32 v{P+i}, v{SX+2*ORD[i]}, v{SX+2*ORD[i]+1}")
    a(f"""v_cvt_pk_bf16_f32 v{P+8}, v{SM}, v{SM+1}
    v_cvt_pk_bf16_f32 v{P+9}, v{SM+2}, v{SM+3}
    v_mov_b64 {vr(P+10,2)}, 0
    s_waitcnt vmcnt(0)
    v_mov_b64 {vr(VF+8,2)}, {vr(VM,2)}
    v_mov_b64 {vr(VF+10,2)}, 0""")
    L = SM + 4
    a(f"v_add_f32 v{L}, v{SX}, v{SX+1}")
    for r in range(2, 20): a(f"v_add_f32 v{L}, v{L}, v{SX+r}")
    q.wait(tv)
    for k in range(3):
        a(f"v_mfma_f32_32x32x16_bf16 {vr(O,16)}, {vr(VF+4*k,4)}, {vr(P+4*k,4)}, {'0' if k == 0 else vr(O,16)}")
    a(f"""v_mov_b32 v{L+1}, v{L}
    v_permlane32_swap_b32 v{L}, v{L+1}
    v_add_f32 v{L}, v{L}, v{L+1}
    v_rcp_f32 v{L}, v{L}""")
    for r in range(16): a(f"v_mul_f32 v{O+r}, v{O+r}, v{L}")
    for i in range(8): a(f"v_cvt_pk_bf16_f32 v{SX+i}, v{O+2*i}, v{O+2*i+1}")
    a(f"""buffer_store_dwordx4 {vr(SX,4)}, v{vOS}, {W}, s{sOo} offen sc1
    buffer_store_dwordx4 {vr(SX+4,4)}, v{vOS}, {W}, s{sOo} offen offset:512 sc1
    s_add_u32 s{sOo}, s{sOo}, {NG * 256 * KB}
    s_add_u32 s{sMo}, s{sMo}, {NG * 128 * KB}
    s_add_u32 s{sPB}, s{sPB}, 24576
    s_cmp_ge_u32 s{sPB}, {L_PEND + 3 * 24576}
    s_cbranch_scc0 QA_PB_{tag}
    s_sub_u32 s{sPB}, s{sPB}, {3 * 24576}""")
    a.label(f"QA_PB_{tag}")
    a(f"""s_add_u32 s{sT2}, s{sT2}, 1
    s_waitcnt vmcnt(0)
    s_barrier""")
    flag_store(a, f"QA_FB_{tag}", sFO, sT2, TMP)

def qa_role(a):
    a.label("QA")
    lane, vD, vTR, t0, t1, t2, vTA = 16, 17, 18, 19, 20, 21, 22
    a(f"""s_sub_u32 s{sT0}, s{sROLE}, 32
    s_and_b32 s{sH}, s{sT0}, 31
    s_lshr_b32 s{sJ}, s{sT0}, 5
    v_and_b32 v{lane}, 63, v0
    v_mov_b32 v{vZ}, 0
    s_lshl_b32 s{sFM}, s{sH}, 7
    s_lshl_b32 s{sT0}, s{sJ}, 2
    s_add_u32 s{sFKV}, s{sFM}, s{sT0}
    s_add_u32 s{sFKV}, s{sFKV}, {WS_FLAGS + F_KV}
    s_add_u32 s{sFM}, s{sFM}, {WS_FLAGS + F_M}
    s_lshl_b32 s{sFO}, s{sJ}, 7
    s_lshl_b32 s{sT0}, s{sH}, 2
    s_add_u32 s{sFO}, s{sFO}, s{sT0}
    s_add_u32 s{sFO}, s{sFO}, {WS_FLAGS + F_O}
    s_mov_b64 exec, 1
    buffer_store_dword v{vZ}, v{vZ}, {W}, s{sFKV} offen sc1
    buffer_store_dword v{vZ}, v{vZ}, {W}, s{sFO} offen sc1
    s_mov_b64 exec, -1""")
    stage_consts(a, vD, vTR, lane, t0, t1, t2, 13)
    a(f"""s_lshl_b32 s{sT0}, s{sH}, 8
    v_add_u32 v{vD}, s{sT0}, v{vD}
    s_lshl_b32 s{sT0}, s{sW}, 6
    v_xor_b32 v{vTR}, s{sT0}, v{vTR}
    v_add_u32 v{vTA}, 0x10000, v{vTR}
    s_lshl_b32 s{sT2}, s{sW}, 10""")
    order = [1, 2, 0]
    ptrs = [S_WQ, S_WK, S_WV]
    def issue(c):
        set_srd(a, SRD_T, ptrs[order[c >> 1]], 4 * MB)
        for i in range(16):
            a(f"""s_add_u32 m0, s{sT2}, {(c & 1) * 65536 + i * 4096}
            s_mov_b32 s{sT0}, {(256 * (c & 1) + 16 * i) * 8192}
            buffer_load_dwordx4 v{vD}, {T}, s{sT0} offen lds""")
    issue(0); issue(1)
    x_consts(a, lane, t0, t1)
    a(f"""v_lshlrev_b32 v{vL16}, 4, v{lane}
    v_and_b32 v{t0}, 15, v{lane}
    v_lshrrev_b32 v{t1}, 5, v{lane}
    v_lshlrev_b32 v{t0}, 4, v{t0}
    v_lshl_add_u32 v{t0}, v{t1}, 8, v{t0}
    v_bfe_u32 v{t2}, v{lane}, 4, 1
    v_lshl_add_u32 v{vKS}, v{t2}, 12, v{t0}
    v_add_u32 v{vKS}, s{sT2}, v{vKS}
    v_lshl_add_u32 v{vVS}, v{t2}, 10, v{t0}
    s_lshl_b32 s{sT0}, s{sW}, 11
    s_add_u32 s{sPA}, s{sT0}, {L_PEND}
    s_mov_b32 s{sPB}, s{sPA}
    s_add_u32 s{sT0}, s{sT0}, {WS_VX - WS_KX}
    v_add_u32 v{vVS}, s{sT0}, v{vVS}
    """)
    a(f"""v_bfe_u32 v{t0}, v{lane}, 1, 2
    v_lshlrev_b32 v{t0}, 6, v{t0}
    v_lshl_add_u32 v{t0}, v{t1}, 8, v{t0}
    v_and_b32 v{vVM}, 1, v{lane}
    v_lshlrev_b32 v{vVM}, 4, v{vVM}
    v_add3_u32 v{vKM}, v{t0}, v{vVM}, 32
    v_lshl_add_u32 v{vVM}, v{t2}, 2, v{vVM}
    v_bfe_u32 v{t0}, v{lane}, 1, 1
    v_lshl_add_u32 v{vVM}, v{t0}, 3, v{vVM}
    v_bfe_u32 v{t0}, v{lane}, 2, 2
    v_lshl_add_u32 v{vVM}, v{t0}, 6, v{vVM}
    v_lshl_add_u32 v{vVM}, v{t1}, 9, v{vVM}
    v_add_u32 v{vVM}, s{sT2}, v{vVM}
    v_and_b32 v{t0}, 7, v{lane}
    v_lshlrev_b32 v{t0}, 4, v{t0}
    v_lshl_add_u32 v{t0}, v{t1}, 8, v{t0}
    v_bfe_u32 v{vOS}, v{lane}, 3, 2
    v_lshl_add_u32 v{vOS}, v{vOS}, 16, v{t0}
    s_lshr_b32 s{sT0}, s{sW}, 1
    s_lshl_b32 s{sT0}, s{sT0}, 10
    s_and_b32 s{sT1}, s{sW}, 1
    s_lshl_b32 s{sT1}, s{sT1}, 7
    s_add_u32 s{sT0}, s{sT0}, s{sT1}
    v_add_u32 v{vOS}, s{sT0}, v{vOS}
    v_and_b32 v{t0}, 31, v{lane}
    v_lshlrev_b32 v{t1}, 2, v{t1}
    v_sub_u32 v{t0}, v{t0}, v{t1}""")
    for r in range(16): a(f"v_cmp_le_i32 s[{sMASK+2*r}:{sMASK+2*r+1}], {8*(r>>2) + (r&3)}, v{t0}")
    a(f"""s_lshl_b32 s{sT0}, s{sJ}, 5
    s_add_u32 s{sT0}, s{sT0}, s{sH}
    s_lshl_b32 s{sKXo}, s{sT0}, 13
    s_add_u32 s{sKXo}, s{sKXo}, {WS_KX}
    s_lshl_b32 s{sMo}, s{sT0}, 12
    s_add_u32 s{sMo}, s{sMo}, {WS_KM}
    s_lshl_b32 s{sOo}, s{sJ}, 18
    s_lshl_b32 s{sT0}, s{sH}, 11
    s_add_u32 s{sOo}, s{sOo}, s{sT0}
    s_add_u32 s{sOo}, s{sOo}, {WS_O}
    s_mov_b32 s{sC}, 0x3e0293ee
    s_lshl_b32 s{sL}, s{sW}, 13
    s_lshl_b32 s{sXO}, s{sJ}, 15
    s_add_u32 s{sXO}, s{sXO}, s{sL}
    s_mov_b32 s{sN}, 0""")
    for c in range(6):
        a(f"s_waitcnt vmcnt({16 if c < 5 else 8})")
        a("s_barrier")
        if c == 0: join_init(a, t0, t1)
        mat = order[c >> 1]
        for i in range(16):
            d = 128 + (mat * 32 + 16 * (c & 1) + i) * 4
            for m in range(2):
                a(f"ds_read_b64_tr_b16 {wr(d + 2*m, 2)}, v{vTA if c & 1 else vTR} offset:{i*4096 + m*1024}")
        a("s_waitcnt lgkmcnt(0)")
        a("s_barrier")
        if c + 2 < 6: issue(c + 2)
        if c == 4:
            set_srd(a, SRD_T, S_BX, 2 * MB)
            x_issue(a, sXO, 1024, sL, t0)
    wait_dbg(a, "QA_INIT", 8, INIT_TARGET, t0, t1, sCNT, sT0, "EXIT", mask=True)
    a(f"s_mov_b32 s{sT2}, 0")
    a.label("QA_LOOP")
    a(f"""s_cmp_ge_u32 s{sN}, {64 // NG}
    s_cbranch_scc1 QA_B""")
    phase_a(a, "l")
    a(f"""s_cmp_lt_u32 s{sN}, 3
    s_cbranch_scc1 QA_LOOP""")
    a.label("QA_B")
    phase_b(a, "l")
    a(f"""s_cmp_lt_u32 s{sT2}, {64 // NG}
    s_cbranch_scc1 QA_LOOP
    s_waitcnt vmcnt(0)
    s_endpgm""")
```

```python
import sys
from asmlib import *
from layout import *
import chain
from chain import *
import qa, op, pa

KNAME = "concat_heads__spectral_gfnet__memory_aug_recurrent_mem_tr__prompt_kernel"

def prologue(a):
    a(f"""
    s_cmp_ge_u32 s2, 256
    s_cbranch_scc1 EXIT
    s_load_dwordx16 s[8:23], s[0:1], 0
    s_load_dwordx8 s[24:31], s[0:1], 64
    s_load_dwordx2 s[32:33], s[0:1], 96
    v_lshrrev_b32 v1, 6, v0
    s_getreg_b32 s{sXCC}, hwreg(HW_REG_XCC_ID, 0, 4)
    v_readfirstlane_b32 s{sW}, v1
    s_waitcnt lgkmcnt(0)
    """)
    set_srd(a, SRD_WS, S_WS, WS_END)
    a(f"""
    v_mov_b32 v2, 163836
    s_cmp_lg_u32 s{sW}, 0
    s_cbranch_scc1 ROLE_WAIT
    s_mov_b64 exec, 1
    v_mov_b32 v3, 1
    v_mov_b32 v4, 0
    v_mov_b32 v5, 4
    s_cmp_eq_u32 s{sXCC}, 0
    s_cbranch_scc0 ROLE_HELP
    global_atomic_add v6, v4, v3, s[{S_DBG}:{S_DBG+1}] sc0
    s_waitcnt vmcnt(0)
    v_readfirstlane_b32 s{sROLE}, v6
    s_cmp_lt_u32 s{sROLE}, 32
    s_cbranch_scc1 ROLE_SET
    """)
    a.label("ROLE_HELP")
    a(f"""
    global_atomic_add v6, v5, v3, s[{S_DBG}:{S_DBG+1}] sc0
    s_waitcnt vmcnt(0)
    v_readfirstlane_b32 s{sROLE}, v6
    s_add_u32 s{sROLE}, s{sROLE}, 32
    s_cmp_lt_u32 s{sROLE}, 256
    s_cbranch_scc1 ROLE_SET
    global_atomic_add v6, v4, v3, s[{S_DBG}:{S_DBG+1}] sc0
    s_waitcnt vmcnt(0)
    v_readfirstlane_b32 s{sROLE}, v6
    s_and_b32 s{sROLE}, s{sROLE}, 31
    """)
    a.label("ROLE_SET")
    a(f"""
    v_mov_b32 v3, s{sROLE}
    ds_write_b32 v2, v3
    s_waitcnt lgkmcnt(0)
    s_mov_b64 exec, -1
    """)
    a.label("ROLE_WAIT")
    a(f"""
    s_barrier
    ds_read_b32 v3, v2
    s_waitcnt lgkmcnt(0)
    v_readfirstlane_b32 s{sROLE}, v3
    s_barrier
    """)

def build(prof=False, roles=("chain",)):
    a = Asm()
    prologue(a)
    a(f"""s_cmp_ge_u32 s{sROLE}, 160
    s_cbranch_scc1 REST
    s_cmp_ge_u32 s{sROLE}, 32
    s_cbranch_scc1 QA
    s_mov_b32 s{sH}, s{sROLE}
    """)
    chain_role(a, prof)
    qa.qa_role(a)
    a.label("REST")
    qa.join_init(a, 1, 2)
    a(f"""s_cmp_ge_u32 s{sROLE}, 224
    s_cbranch_scc1 EXIT""")
    pa.pa_role(a, 160)
    op.op_role(a, 160)
    a.label("EXIT")
    a("s_endpgm")
    body = render(fix_hazards(a.lines, verbose=True))
    hdr = open("concat_heads__spectral_gfnet__memory_aug_recurrent_mem_tr__prompt.s.ref").read().split("\n")
    head = [l for l in hdr if l.startswith(";") and "@launch" not in l][:15]
    txt = "\n".join(head) + "\n; @launch grid=(256,1,1) block=(256,1,1) lds=163840\n"
    txt += f""".amdgcn_target "amdgcn-amd-amdhsa--gfx950"
.text
.globl {KNAME}
.p2align 8
.type {KNAME},@function
{KNAME}:
""" + body + f""".section .rodata,"a"
.p2align 6
.amdhsa_kernel {KNAME}
  .amdhsa_next_free_vgpr 512
  .amdhsa_next_free_sgpr 102
  .amdhsa_accum_offset 256
  .amdhsa_group_segment_fixed_size 0
  .amdhsa_kernarg_size 104
  .amdhsa_user_sgpr_count 2
  .amdhsa_user_sgpr_kernarg_segment_ptr 1
  .amdhsa_system_sgpr_workgroup_id_x 1
.end_amdhsa_kernel
"""
    return txt

if __name__ == "__main__":
    out = sys.argv[1]
    prof = True if "prof" in sys.argv[2:] else ("rt" if "rt" in sys.argv[2:] else False)
    open(out, "w").write(build(prof=prof))
```

```python
from asmlib import *
from layout import *
import os

S_AX, S_WR, S_WI, S_BX, S_MEM0, S_WQ, S_WK, S_WV, S_WO, S_SEG, S_OUT, S_DBG, S_WS = 8,10,12,14,16,18,20,22,24,26,28,30,32
SRD_WS = 36
SRD_T  = 40
sW, sROLE, sXCC = 44, 45, 46
sLKX = 47
sC2, sONE2 = 48, 50
sH, sS, sT0, sT1, sT2, sCNT, sINB_R, sINB_R2, sKXO, sFREE0, sMR, sKX, sVX, sKM, sTAG, sPOM, sPROF, sPF = range(52, 70)
sXM = 90
sINW = 98
sMODE = 35
sHW, sHR, sFM, sRDY = 4, 5, 6, 7
sKVA = 0
sKV = 8

SPIN_MAX = 1 << 16
CFG = {k: int(os.environ.get(k.upper(), v)) for k, v in dict(d1=64, d2=0, adv=1, advp=1, dep=3, gap=64, pub=1, pad=256, bar=8, light=0, only=6, at=-1, e1=0, e2=0, e3=1, e4=1, hm=0, pg=32, pd=4, hr=8, hb=4, p0=128, np=0, ps=32, pf=4, hd=128, fast=1, gate=1).items()}
INB_STRIDE = 8192 + CFG["pad"]

L_WL = 0
L_MB = 131072
L_OX = L_MB
L_KXB = L_MB + 8192
L_X = L_KXB + 16384
XP = 1088
L_SEL = L_X + 4 * XP
L_JUNK = L_SEL + 1024

vLB, vG, vWL1, vG2, vXW, vXR, vOW, vIDX, vPS, vMS, vHR, vT = range(12)
PM = 12
aQK, aV, X, VX, MA, RING = 16, 32, 40, 56, 64, 96

QKSEQ = [(m, T, kk) for kk in range(2) for (m, T) in ((0, 0), (1, 0), (0, 1), (1, 1), (2, 0), (2, 1))] + \
        [(m, T, kk) for kk in range(2, 8) for (m, T) in ((0, 0), (1, 0), (0, 1))] + [(1, 1, kk) for kk in range(2, 8)]
VSEQ = [(2, T, kk) for kk in range(2, 8) for T in range(2)]
OSEQ = [(3, p, 0) for p in range(4)] + [(3, p, kk) for p in range(4) for kk in range(1, 4)]
RB0 = 23
def wfrag_map():
    m = {}
    for i in range(4):
        m[QKSEQ[i]] = ("lds", i, i)
        m[QKSEQ[RB0 + i]] = ("lds", 4 + i, i)
        m[VSEQ[2 + i]] = ("lds", 8 + i, i)
        m[OSEQ[12 + i]] = ("lds", 12 + i, i)
    nxt = 128
    for k in QKSEQ + VSEQ + OSEQ:
        if k not in m:
            m[k] = ("reg", nxt); nxt += 8
    assert nxt == 512
    return m
WF = wfrag_map()
def wop(key):
    e = WF[key]
    return wr(e[1], 8) if e[0] == "reg" else vr(RING + 8 * e[2], 8)

class LdsQ:
    def __init__(self, a): self.a = a; self.n = 0
    def op(self, text):
        self.a(text); self.n += 1; return self.n
    def wait(self, tok):
        k = self.n - tok
        self.a(f"s_waitcnt lgkmcnt({min(k, 15)})")

def ring_load(rnd):
    L = []
    for slot in range(4):
        f = 4 * rnd + slot
        base, off = (vG, f * 8192) if f < 8 else (vWL1, (f - 8) * 8192)
        for hh in range(2):
            L.append(f"ds_read_b128 {vr(RING + 8*slot + 4*hh, 4)}, v{base} offset:{off + 1024*hh}")
    return L

def set_srd(a, srd, sptr, nbytes):
    a(f"""s_mov_b32 s{srd}, s{sptr}
    s_mov_b32 s{srd+1}, s{sptr+1}
    s_mov_b32 s{srd+2}, {nbytes}
    s_mov_b32 s{srd+3}, 0x20000""")

W = f"s[{SRD_WS}:{SRD_WS+3}]"

RT = {"on": False}
def rt(a, k, vt=126):
    if not RT["on"]: return
    lab = a.uid("RT")
    a(f"""s_cmp_lg_u32 s{sW}, 0
    s_cbranch_scc1 {lab}
    s_memrealtime s[2:3]
    s_waitcnt lgkmcnt(0)
    v_mov_b32 v{vt}, s2
    s_lshl_b32 s2, s{sROLE}, 6
    s_add_u32 s2, s2, {WS_PROF + 640*KB + 4*k}
    v_mov_b32 v{vt+1}, 0
    buffer_store_dword v{vt}, v{vt+1}, {W}, s2 offen
    s_waitcnt vmcnt(0)""")
    a.label(lab)

def delay(a, cyc):
    n = cyc // 4
    while n > 0:
        k = min(n, 16); a(f"s_nop {k-1}"); n -= k

def all_arrived(a, name, va, vd, sC, sT, fail, early=None):
    a(f"""v_mbcnt_lo_u32_b32 v{va}, -1, 0
    v_and_b32 v{va}, 15, v{va}
    v_lshlrev_b32 v{va}, 2, v{va}
    s_mov_b32 s{sC}, 0""")
    a.label(name)
    a(f"""global_load_dword v{vd}, v{va}, s[{S_DBG}:{S_DBG+1}] offset:{D_TICK} sc1
    s_add_u32 s{sC}, s{sC}, 1
    s_cmp_gt_u32 s{sC}, {SPIN_MAX}
    s_cbranch_scc1 {fail}
    s_waitcnt vmcnt(0)
    v_readlane_b32 s{sT}, v{vd}, 0""")
    if early: a(f"s_cmp_ge_u32 s{sT}, 32\ns_cbranch_scc1 {early}")
    for i in range(1, 9): a(f"v_readlane_b32 vcc_lo, v{vd}, {i}\ns_add_u32 s{sT}, s{sT}, vcc_lo")
    a(f"""s_cmp_lt_u32 s{sT}, 256
    s_cbranch_scc1 {name}""")

def init_role(a):
    a.label("INIT")
    a(f"""s_cmp_ge_u32 s{sROLE}, 256
    s_cbranch_scc1 EXIT
    s_sub_u32 s48, s{sROLE}, 224
    v_lshlrev_b32 v1, 4, v0
    v_mov_b64 v[4:5], -1
    v_mov_b64 v[6:7], -1
    s_mul_i32 s49, s48, {INB_STRIDE}
    s_add_u32 s49, s49, {WS_INBOX}
    buffer_store_dwordx4 v[4:7], v1, {W}, s49 offen sc1
    s_add_u32 s49, s49, 4096
    buffer_store_dwordx4 v[4:7], v1, {W}, s49 offen sc1
    v_lshlrev_b32 v2, 2, v0
    s_lshl_b32 s49, s48, 10
    s_add_u32 s50, s49, {WS_MBUF}
    buffer_store_dword v4, v2, {W}, s50 offen sc1
    s_add_u32 s50, s49, {WS_HINT}
    buffer_store_dword v4, v2, {W}, s50 offen sc1
    v_mov_b32 v3, 0
    s_add_u32 s50, s49, {WS_FLAGS}
    buffer_store_dword v3, v2, {W}, s50 offen sc1
    s_waitcnt vmcnt(0)
    v_mov_b32 v4, 1
    v_mov_b32 v5, {D_INIT}
    s_mov_b64 exec, 1
    global_atomic_add v5, v4, s[{S_DBG}:{S_DBG+1}]
    s_mov_b64 exec, -1
    s_cmp_eq_u32 s{sROLE}, 224
    s_cbranch_scc1 PA""")

def chain_startup(a):
    t0, t1, t2, t3, t4, t5, t6, t7 = 16, 17, 18, 19, 20, 21, 22, 23
    vLane, vDQ, vDO, vTR, vTA, vM0, vTO = 24, 25, 26, 27, 28, 30, 31
    a(f"""
    v_and_b32 v{vLane}, 63, v0
    v_lshlrev_b32 v{vLB}, 4, v{vLane}
    s_lshl_b32 s{sT0}, s{sW}, 11
    v_add_u32 v{vG}, s{sT0}, v{vLB}
    v_add_u32 v{vLB}, {L_MB}, v{vLB}
    v_add_u32 v{vWL1}, 0x10000, v{vG}
    v_add_u32 v{vG2}, {L_MB}, v{vG}
    """)
    a(f"""
    s_mul_i32 s{sINB_R}, s{sH}, {INB_STRIDE}
    s_add_u32 s{sINB_R}, s{sINB_R}, {WS_INBOX}
    s_add_u32 s{sINB_R2}, s{sINB_R}, 4096
    s_lshl_b32 s{sHW}, s{sH}, 2
    s_add_u32 s{sHW}, s{sHW}, {WS_HINT}
    s_and_b32 s{sHR}, s{sH}, 7
    s_lshl_b32 s{sHR}, s{sHR}, 7
    s_add_u32 s{sHR}, s{sHR}, {WS_HINT}
    s_lshl_b32 s{sFM}, s{sH}, 7
    s_add_u32 s{sKVA}, s{S_WS}, s{sFM}
    s_addc_u32 s{sKVA+1}, s{S_WS+1}, 0
    s_add_u32 s{sFM}, s{sFM}, {WS_FLAGS + F_M}
    s_mov_b32 s{sRDY}, 0""")
    a(f"""
    v_lshrrev_b32 v{t0}, 4, v{vLane}
    s_and_b32 s{sT0}, s{sW}, 1
    s_lshl_b32 s{sT1}, s{sT0}, 2
    v_add_u32 v{t1}, s{sT1}, v{t0}
    v_lshlrev_b32 v{t1}, 1, v{t1}
    v_and_b32 v{t2}, 15, v{vLane}
    v_xor_b32 v{t1}, v{t1}, v{t2}
    v_lshlrev_b32 v{t1}, 4, v{t1}
    v_lshrrev_b32 v{t2}, 1, v{t0}
    v_and_b32 v{t3}, 1, v{t0}
    v_lshl_add_u32 v{vDQ}, v{t2}, 4, v{t3}
    s_lshl_b32 s{sT1}, s{sW}, 2
    v_add_u32 v{vDQ}, s{sT1}, v{vDQ}
    v_lshl_add_u32 v{vDQ}, v{vDQ}, 13, v{t1}
    s_lshl_b32 s{sT1}, s{sH}, 8
    v_add_u32 v{vDQ}, s{sT1}, v{vDQ}
    v_lshl_add_u32 v{t2}, v{t2}, 5, v{t3}
    s_lshl_b32 s{sT0}, s{sT0}, 4
    s_lshr_b32 s{sT1}, s{sW}, 1
    s_lshl_b32 s{sT1}, s{sT1}, 2
    s_add_u32 s{sT0}, s{sT0}, s{sT1}
    v_add_u32 v{t2}, s{sT0}, v{t2}
    v_and_b32 v{t3}, 128, v{t1}
    v_add_u32 v{t1}, v{t1}, v{t3}
    v_lshl_add_u32 v{vDO}, v{t2}, 10, v{t1}
    s_lshl_b32 s{sT1}, s{sH}, 17
    v_add_u32 v{vDO}, s{sT1}, v{vDO}
    """)
    a(f"""
    v_lshrrev_b32 v{t0}, 4, v{vLane}
    v_bfe_u32 v{t1}, v{vLane}, 2, 2
    v_and_b32 v{t2}, 3, v{vLane}
    v_and_b32 v{t3}, 1, v{t0}
    v_lshl_add_u32 v{t3}, v{t3}, 2, v{t1}
    v_lshlrev_b32 v{t3}, 5, v{t3}
    v_lshl_add_u32 v{t3}, v{t2}, 3, v{t3}
    v_lshl_add_u32 v{t3}, v{t1}, 8, v{t3}
    v_lshl_add_u32 v{vTR}, v{t0}, 10, v{t3}
    v_and_b32 v{t4}, 1, v{t1}
    v_lshrrev_b32 v{t5}, 1, v{t1}
    v_xor_b32 v{t5}, v{t5}, v{t4}
    v_and_b32 v{t3}, 1, v{t0}
    v_lshl_add_u32 v{t5}, v{t3}, 2, v{t5}
    v_lshlrev_b32 v{t5}, 5, v{t5}
    v_lshl_add_u32 v{t5}, v{t2}, 3, v{t5}
    v_lshl_add_u32 v{t5}, v{t4}, 8, v{t5}
    v_lshl_add_u32 v{vTO}, v{t0}, 10, v{t5}
    s_lshl_b32 s{sT2}, s{sW}, 10
    """)
    ptrs = [S_WQ, S_WK, S_WV, S_WO]
    def issue(c):
        mat, half = c >> 1, c & 1
        set_srd(a, SRD_T, ptrs[mat], 4 * MB)
        for tl in range(4):
            for m in range(4):
                if mat < 3:
                    so = (64 * (2 * tl + half) + 32 * (m >> 1) + 2 * (m & 1)) * 8192
                    v = vDQ
                else:
                    so = (64 * (tl & 1) + 8 * (m >> 1) + 2 * (m & 1)) * 1024 + (tl >> 1) * 512 + half * 128
                    v = vDO
                a(f"""s_add_u32 m0, s{sT2}, {(c & 1) * 65536 + (tl * 4 + m) * 4096}
                s_mov_b32 s{sT0}, {so}
                buffer_load_dwordx4 v{v}, s[{SRD_T}:{SRD_T+3}], s{sT0} offen lds""")
    def hold(f): return 32 + 8 * (f if f < 12 else f - 12)
    def dest(key):
        e = WF[key]
        return e[1] if e[0] == "reg" else hold(e[1])
    def consume(c):
        mat, half = c >> 1, c & 1
        n = 0
        if mat < 3:
            for T in range(2):
                for lo in range(4):
                    va = vTA + (n & 1); n += 1
                    a(f"""s_lshl_b32 s{sT0}, s{sW}, 6
                    s_add_u32 s{sT0}, s{sT0}, {32 * T}
                    s_xor_b32 s{sT1}, s{sW}, {lo}
                    s_lshl_b32 s{sT1}, s{sT1}, 14
                    s_add_u32 s{sT1}, s{sT1}, {half * 65536}
                    v_xor_b32 v{va}, s{sT0}, v{vTR}
                    v_add_u32 v{va}, s{sT1}, v{va}""")
                    d = dest((mat, T, 2 * lo + half))
                    for m in range(4):
                        a(f"ds_read_b64_tr_b16 {wr(d + 2*m, 2)}, v{va} offset:{m*4096}")
        else:
            for pl in range(2):
                for kk in range(4):
                    va = vTA + (n & 1); n += 1
                    a(f"""s_xor_b32 s{sT1}, s{sW}, {kk}
                    s_and_b32 s{sT0}, s{sT1}, 1
                    s_lshl_b32 s{sCNT}, s{sT0}, 9
                    s_lshl_b32 s{sT0}, s{sT0}, 6
                    s_xor_b32 s{sT0}, s{sT0}, {64 * pl}
                    s_and_b32 s{sS}, s{sW}, 1
                    s_lshl_b32 s{sS}, s{sS}, 7
                    s_add_u32 s{sT0}, s{sT0}, s{sS}
                    s_lshr_b32 s{sT1}, s{sT1}, 1
                    s_and_b32 s{sS}, s{sW}, 2
                    s_add_u32 s{sT1}, s{sT1}, s{sS}
                    s_lshl_b32 s{sT1}, s{sT1}, 14
                    s_add_u32 s{sT1}, s{sT1}, s{sCNT}
                    s_add_u32 s{sT1}, s{sT1}, {half * 65536}
                    v_xor_b32 v{va}, s{sT0}, v{vTO}
                    v_add_u32 v{va}, s{sT1}, v{va}""")
                    d = dest((3, 2 * half + pl, kk))
                    for m in range(4):
                        a(f"ds_read_b64_tr_b16 {wr(d + 2*m, 2)}, v{va} offset:{m*4096}")
        a("s_waitcnt lgkmcnt(0)")
    def spill(fs):
        for f in fs:
            base, off = (vG, f * 8192) if f < 8 else (vWL1, (f - 8) * 8192)
            for hh in range(2):
                a(f"ds_write_b128 v{base}, {vr(hold(f) + 4*hh, 4)} offset:{off + 1024*hh}")
        a("s_waitcnt lgkmcnt(0)")
    issue(0); issue(1)
    a(f"""
    v_and_b32 v{t0}, 15, v{vLane}
    v_lshrrev_b32 v{t1}, 4, v{vLane}
    v_and_b32 v{t2}, 3, v{vLane}
    v_bfe_u32 v{t3}, v{vLane}, 2, 2
    """)
    a(f"""
    s_lshl_b32 s{sT0}, s{sW}, 8
    s_add_u32 s{sT1}, s{sT0}, {L_X}
    v_mul_u32_u24 v{t5}, {XP}, v{t1}
    v_lshl_add_u32 v{t5}, v{t0}, 3, v{t5}
    v_add_u32 v{vXW}, s{sT1}, v{t5}
    """)
    a(f"""
    v_and_b32 v{t4}, 1, v{t1}
    v_lshl_add_u32 v{t4}, v{t4}, 2, v{t3}
    v_lshrrev_b32 v{t5}, 1, v{t1}
    v_lshl_add_u32 v{t4}, v{t5}, 4, v{t4}
    v_mul_u32_u24 v{t5}, {XP}, v{t2}
    v_lshl_add_u32 v{t4}, v{t4}, 3, v{t5}
    v_add_u32 v{vXR}, {L_X}, v{t4}
    v_and_b32 v{vHR}, 31, v{vLane}
    v_lshlrev_b32 v{vHR}, 2, v{vHR}
    v_cmp_lt_u32 vcc, 1, v{t2}
    v_mov_b32 v{t5}, 0x4444
    v_mov_b32 v{t6}, 0xeeee
    v_cndmask_b32 v{vIDX}, v{t5}, v{t6}, vcc
    """)
    a(f"""
    v_and_b32 v{t4}, 1, v{vLane}
    v_lshl_add_u32 v{t7}, v{t3}, 1, v{t4}
    v_lshlrev_b32 v{t4}, 4, v{t7}
    v_lshl_add_u32 v{t4}, v{t1}, 7, v{t4}
    s_lshl_b32 s{sT0}, s{sW}, 9
    s_add_u32 s{sT0}, s{sT0}, {L_OX}
    v_add_u32 v{vOW}, s{sT0}, v{t4}
    v_mov_b32 v{t6}, 0x80000000
    """)
    a(f"""
    v_lshl_add_u32 v{t4}, v{t1}, 2, v{t2}
    v_lshlrev_b32 v{t4}, 4, v{t4}
    v_bfe_u32 v{t5}, v{vLane}, 2, 1
    v_lshl_add_u32 v{t4}, v{t5}, 3, v{t4}
    s_lshl_b32 s{sT0}, s{sH}, 8
    v_add_u32 v{t4}, s{sT0}, v{t4}
    v_cmp_lt_u32 vcc, 7, v{t0}
    v_cndmask_b32 v{vMS}, v{t4}, v{t6}, vcc
    s_lshl_b32 s{sT1}, s{sW}, 3
    v_bfe_u32 v{t5}, v{vLane}, 3, 1
    v_add_u32 v{t5}, s{sT1}, v{t5}
    v_mul_u32_u24 v{t5}, {INB_STRIDE}, v{t5}
    v_add_u32 v{vPS}, v{t5}, v{t4}
    """)
    a(f"""
    v_lshlrev_b32 v{t4}, 10, v{t7}
    v_bfe_u32 v{t5}, v{vLane}, 1, 1
    v_lshl_add_u32 v{t4}, v{t5}, 5, v{t4}
    v_lshrrev_b32 v{t5}, 1, v{t1}
    v_lshl_add_u32 v{t4}, v{t5}, 6, v{t4}
    v_and_b32 v{t5}, 1, v{t1}
    v_lshl_add_u32 v{vM0}, v{t5}, 4, v{t4}
    """)
    a(f"""
    v_and_b32 v{t5}, 1, v{vLane}
    v_lshlrev_b32 v{t5}, 4, v{t5}
    v_mov_b32 v{t6}, 0x3f80
    v_lshlrev_b32 v{t5}, v{t5}, v{t6}
    v_bfe_u32 v{t6}, v{vLane}, 1, 2
    """)
    for d in range(4):
        a(f"""v_cmp_eq_u32 vcc, {d}, v{t6}
        v_cndmask_b32 v{PM+d}, 0, v{t5}, vcc""")
    a(f"""ds_write_b128 v{vLB}, v[{PM}:{PM+3}] offset:{L_SEL-L_MB}
    s_waitcnt lgkmcnt(0)
    v_mov_b64 v[{PM}:{PM+1}], 0
    v_mov_b64 v[{PM+2}:{PM+3}], 0
    """)
    for c in range(8):
        a(f"s_waitcnt vmcnt({16 if c < 7 else 0})")
        a("s_barrier")
        consume(c)
        a("s_barrier")
        if c + 2 < 8: issue(c + 2)
        if c == 6: spill(range(0, 8))
    spill(range(8, 16))
    set_srd(a, SRD_T, S_MEM0, 8192)
    a(f"""
    s_lshl_b32 s{sT0}, s{sW}, 8
    buffer_load_dwordx4 {vr(MA,4)}, v{vM0}, s[{SRD_T}:{SRD_T+3}], s{sT0} offen
    buffer_load_dwordx4 {vr(MA+4,4)}, v{vM0}, s[{SRD_T}:{SRD_T+3}], s{sT0} offen offset:128
    s_mov_b32 s{sS}, -1
    s_lshl_b32 s{sT0}, s{sH}, 13
    s_add_u32 s{sKX}, s{sT0}, {WS_KX}
    s_add_u32 s{sVX}, s{sT0}, {WS_VX}
    s_lshl_b32 s{sT0}, s{sH}, 12
    s_add_u32 s{sKM}, s{sT0}, {WS_KM - 128*KB}
    s_lshl_b32 s{sT0}, s{sW}, 10
    s_sub_u32 s{sKM}, s{sKM}, s{sT0}
    s_mov_b32 s{sXM}, 0x33333333
    s_mov_b32 s{sXM+1}, 0x33333333
    s_mov_b32 s{sC2}, 0x3e0293ee
    s_mov_b32 s{sC2+1}, 0x3e0293ee
    s_mov_b32 s{sONE2}, 0x3f803f80
    s_mov_b32 s{sONE2+1}, 0x3f803f80
    """)
    for p in range(4): a(f"s_mov_b32 s{sINW+p}, {WS_INBOX + 2 * p * INB_STRIDE}")

def zlist(b, n):
    return [f"v_mov_b64 v[{b+i}:{b+i+1}], 0" for i in range(0, n, 2)]

def smf(acc, A, B):
    return f"v_smfmac_f32_16x16x64_bf16 {vr(acc,4)}, {vr(A,4)}, {B}, v{vIDX}"

NST = 10
def stamp(a, prof, k):
    if prof:
        if CFG["light"] and k not in (7, 8, 9, CFG["only"]): return
        if k == 9: a(f"s_memrealtime s[{70+2*k}:{71+2*k}]")
        else: a(f"s_memtime s[{70+2*k}:{71+2*k}]")

PUB = X + 12
def pub_prepare(a):
    a(f"""s_lshl_b32 s{sT0}, s{sW}, 8
    v_add_u32 v{vT}, s{sT0}, v{vXR}
    ds_read_b64_tr_b16 {vr(PUB,2)}, v{vT}
    ds_read_b64_tr_b16 {vr(PUB+2,2)}, v{vT} offset:64
    v_mov_b32_dpp v{aV+2}, v{aV} quad_perm:[2,3,2,3] row_mask:0xf bank_mask:0xf
    v_mov_b32_dpp v{aV+3}, v{aV+1} quad_perm:[2,3,2,3] row_mask:0xf bank_mask:0xf
    s_waitcnt lgkmcnt(0)
    s_mov_b64 exec, s[{sXM}:{sXM+1}]
    v_mov_b64 {vr(PUB,2)}, {vr(aV,2)}
    v_mov_b64 {vr(PUB+2,2)}, {vr(aV+2,2)}
    s_mov_b64 exec, -1""")
PUBST = f"buffer_store_dwordx4 {vr(PUB,4)}, v{vG}, {W}, s{sKM} offen sc1"
MR = X + 4
FLG = X + 10
def kv_gate(a, name, need_expr):
    a(need_expr)
    a(f"s_min_u32 s{sT1}, s{sT1}, 64")
    a.label(name)
    a(f"""s_cmp_ge_u32 s{sRDY}, s{sT1}
    s_cbranch_scc1 {name}_OK
    s_load_dwordx4 s[{sKV}:{sKV+3}], s[{sKVA}:{sKVA+1}], {WS_FLAGS + F_KV} glc
    s_add_u32 s{sCNT}, s{sCNT}, 1
    s_cmp_gt_u32 s{sCNT}, {SPIN_MAX}
    s_cbranch_scc1 CH_DONE
    s_waitcnt lgkmcnt(0)""")
    for j in range(NG):
        a(f"s_lshl_b32 s{sKV+j}, s{sKV+j}, 2")
        if j: a(f"s_add_u32 s{sKV+j}, s{sKV+j}, {j}\ns_min_u32 s{sKV}, s{sKV}, s{sKV+j}")
    a(f"""s_mov_b32 s{sRDY}, s{sKV}
    s_branch {name}""")
    a.label(name + "_OK")
def hop_prep(a, wait=True):
    for l in ring_load(0): a(l)
    pub_prepare(a)
    for l in zlist(aQK + 10, 14): a(l)
    hop_prep2(a)
def hop_prep2(a):
    for lo in range(1, 4): a(f"v_xor_b32 v{MR+lo}, {2048*lo}, v{vG2}")
    a(f"""v_lshlrev_b32 v{MR}, 1, v{vLB}
    v_mov_b32 v{FLG}, s{sS}
    v_sub_u32 v{FLG+1}, 0, v{vG}
    v_lshrrev_b32 v{FLG+1}, 1, v{FLG+1}
    s_add_u32 s{sKX}, s{sKX}, {256*KB*CFG["adv"]}
    s_add_u32 s{sPF}, s{sPF}, {256*KB*CFG["adv"]}
    s_add_u32 m0, s{sKXO}, s{sLKX}
    s_xor_b32 s{sKXO}, s{sKXO}, {8192 ^ 16384}""")

def chain_loop(a, tag, stf, prof=False):
    q = LdsQ(a)
    ck = vT
    a.label(f"CH_TOP_{tag}")
    Q0, K0, Q1, K1 = aQK, aQK + 4, aQK + 8, aQK + 12
    acc = lambda mat, T: (aQK + 8 * T + 4 * mat) if mat < 2 else aV + 4 * T
    N = len(QKSEQ)
    pre = {i: [] for i in range(N)}
    post = {i: [] for i in range(N)}
    post[0] = [f"v_max3_u32 v{ck}, v{MA}, v{MA+1}, v{MA+2}"]
    pre[1] = [("x", "s_waitcnt vmcnt(0)", None)]
    post[1] = [f"v_max3_u32 v{ck}, v{ck}, v{MA+3}, v{MA+4}", f"v_max3_u32 v{ck}, v{ck}, v{MA+5}, v{MA+6}",
               f"v_max_u32 v{ck}, v{ck}, v{MA+7}", f"v_cmp_eq_u32 vcc, -1, v{ck}"]
    pre[2] = [("x", f"s_cbranch_vccnz CH_RETRY_{tag}", None), ("lds", f"ds_write_b128 v{vG2}, {vr(MA,4)}", "mw0")]
    pre[3] = [("lds", f"ds_write_b128 v{vG2}, {vr(MA+4,4)} offset:1024", "mw1")]
    if prof: pre[4] += [("x", f"s_mov_b64 exec, 0xffff\nbuffer_store_dword v{MA+8}, v{MA+9}, {W}, s34 offen\ns_mov_b64 exec, -1", None)]
    sc = step_scalars()
    BAR = CFG["bar"]
    pre[BAR] = [("w", "mw1", None), ("x", "s_barrier", None)]
    mr = [("lds", f"ds_read_b128 {vr(MA+4*kk,4)}, v{MR+(kk>>1)} offset:{1024*(kk&1)}", f"m{kk}") for kk in range(2, 8)]
    pre[BAR] += mr[0:2]; pre[BAR+1] = mr[2:4]; pre[BAR+2] = mr[4:6]
    for kk in range(2, 8): pre[11 + 3 * (kk - 2)].append(("w", f"m{kk}", None))
    rB, rC = ring_load(1), ring_load(2)
    for i in range(8): pre[12 + i].insert(0, ("lds", rB[i], f"rB{i}"))
    pre[RB0 - 1].append(("w", "rB7", None))
    for i in range(8): pre[RB0 + 1 + i].insert(0, ("lds", rC[i], f"rC{i}"))
    pre[11].insert(0, ("x", f"buffer_load_dwordx4 v{vG}, {W}, s{sKX} offen sc1 lds", None))
    pre[12].append(("x", f"buffer_load_dwordx4 v{vG}, {W}, s{sKX} offen offset:1024 sc1 lds", None))
    pre[13].insert(0, ("x", f"s_mov_b32 m0, {L_JUNK}", None))
    pre[13].append(("x", f"buffer_load_dword v{MR}, {W}, s{sPF} offen lds", None))
    if CFG["pub"]:
        pre[20].insert(0, ("x", PUBST, None))
        pre[21].insert(0, ("x", f"buffer_store_dword v{FLG}, v{FLG+1}, {W}, s{sFM} offen sc1", None))
    for i, l in zip((4, 4, 4, 5, 5, 5, 6, 6, 6, 7, 22), sc): pre[i].append(("x", l, None))
    assert len(sc) <= 11
    post[21].append(f"v_add_u32 v{vT}, s{sKXO}, v{vLB}")
    def fin2(b, dst): return [f"v_add_f32 v{b}, v{b}, v{b+2}", f"v_add_f32 v{b+1}, v{b+1}, v{b+3}", f"v_cvt_pk_bf16_f32 v{dst}, v{b}, v{b+1}"]
    f = fin2(Q0, Q0) + fin2(K0, Q0 + 1) + fin2(Q1, Q1)
    for i, l in enumerate(f[:7]): post[29 + i].append(l)
    tok = {}
    a("s_waitcnt vmcnt(1)")
    stamp(a, prof, 0)
    for i, key in enumerate(QKSEQ):
        a(smf(acc(key[0], key[1]), MA + 4 * key[2], wop(key)))
        for kind, l, name in pre[i]:
            if kind == "lds": tok[name] = q.op(l)
            elif kind == "w": q.wait(tok[l])
            else: a(l)
        for l in post[i]: a(l)
        if prof and i == CFG["at"]: a("s_memtime s[72:73]")
    if CFG["at"] < 0: stamp(a, prof, 1)
    vi = 0
    def vnext(n=1):
        nonlocal vi
        for _ in range(n):
            key = VSEQ[vi]; vi += 1
            a(smf(aV + 4*key[1], MA + 4*key[2], wop(key)))
    vnext()
    q.op(f"ds_write_b64 v{vXW}, {vr(Q0,2)}")
    a(f[7])
    vnext()
    q.wait(tok["rC7"])
    a(f[8])
    for l in fin2(K1, Q1 + 1): a(l)
    xw = q.op(f"ds_write_b64 v{vXW}, {vr(Q1,2)} offset:128")
    vnext(5)
    q.wait(xw)
    a("s_barrier")
    xr = []
    for k in range(8):
        xr.append(q.op(f"ds_read_b64_tr_b16 {vr(X+2*k,2)}, v{vXR} offset:{(k>>1)*256 + (k&1)*64}"))
        if k in (1, 3, 5, 7): vnext()
    kxl = [f"ds_read_b128 {vr(RING+4*i,4)}, v{vT} offset:{1024*i}" for i in range(8)]
    kx = [q.op(kxl[0]), q.op(kxl[1])]
    vnext()
    kx += [q.op(kxl[2])]
    assert vi == 12
    stamp(a, prof, 2)
    SX, SM, m_, t_ = aQK, aQK + 8, aQK + 12, aQK + 14
    OACC, OA, ONES, LA = MA, MA + 16, MA + 16, X + 4
    sfill = [f"v_mov_b64 {vr(ONES,2)}, s[{sONE2}:{sONE2+1}]", f"v_mov_b64 {vr(ONES+2,2)}, s[{sONE2}:{sONE2+1}]"] + zlist(OACC, 16)
    vfin = fin2(aV, aV) + fin2(aV + 4, aV + 1)
    def sm(acc_, A, ks):
        c = "0" if ks == 0 else vr(acc_, 4)
        a(f"v_mfma_f32_16x16x32_bf16 {vr(acc_,4)}, {vr(A,4)}, {vr(X+4*ks,4)}, {c}")
    q.wait(xr[1])
    for ks in range(4):
        sm(SM, X + 4*ks, ks)
        kx.append(q.op(kxl[3 + ks]))
        if ks == 3: kx.append(q.op(kxl[7]))
        q.wait(xr[2*ks+3] if ks < 3 else kx[0])
    fl = sfill + vfin
    for j in range(8):
        kt, ks = j >> 2, j & 3
        sm(SX + 4*kt, RING + 4*j, ks)
        if j < 7: q.wait(kx[j + 1])
        if j == 6:
            a(f"v_max3_f32 v{m_}, v{SM+2}, v{SM+3}, v{SX}")
            a(f"v_max3_f32 v{m_}, v{m_}, v{SX+1}, v{SX+2}")
        else:
            a(fl.pop(0)); a(fl.pop(0))
    rD = ring_load(3)
    for l in fl: a(l)
    a(f"v_max_f32 v{m_}, v{m_}, v{SX+3}")
    stamp(a, prof, 3)
    a(f"v_max3_f32 v{m_}, v{m_}, v{SX+4}, v{SX+5}")
    a(f"v_max3_f32 v{t_}, v{m_}, v{SX+6}, v{SX+7}")
    a(f"v_max3_f32 v{m_}, v{m_}, v{SX+6}, v{SX+7}")
    a(f"v_permlane16_swap_b32 v{m_}, v{t_}")
    a(f"v_max_f32 v{t_+1}, v{m_}, v{t_}")
    a(f"v_max_f32 v{m_}, v{m_}, v{t_}")
    a(f"v_permlane32_swap_b32 v{m_}, v{t_+1}")
    a(f"v_max_f32 v{m_}, v{m_}, v{t_+1}")
    a(f"v_mul_f32 v{m_}, s{sC2}, v{m_}")
    def pf(r): a(f"v_pk_fma_f32 {vr(r,2)}, {vr(r,2)}, s[{sC2}:{sC2+1}], {vr(m_,2)} op_sel_hi:[1,1,0] neg_lo:[0,0,1] neg_hi:[0,0,1]")
    P, OAc = X, X + 8
    pf(SM + 2)
    for i in range(4): pf(SX + 2*i)
    a(f"v_exp_f32 v{SM+2}, v{SM+2}")
    a(f"v_exp_f32 v{SM+3}, v{SM+3}")
    a(f"v_exp_f32 v{SX}, v{SX}")
    a(f"v_cvt_pk_bf16_f32 v{PM}, v{SM+2}, v{SM+3}")
    a(f"v_cvt_pk_bf16_f32 v{PM+3}, v{SM+2}, v{SM+3}")
    a(f"v_exp_f32 v{SX+1}, v{SX+1}")
    a(f"v_mfma_f32_16x16x16_bf16 {vr(LA,4)}, {vr(ONES,2)}, {vr(PM,2)}, 0")
    a(f"s_cmp_eq_u32 s{sS}, 63")
    a(f"v_exp_f32 v{SX+2}, v{SX+2}")
    a(f"v_mfma_f32_16x16x16_bf16 {vr(OAc,4)}, {vr(aV,2)}, {vr(PM,2)}, 0")
    a(f"s_cbranch_scc1 CH_LAST")
    a(f"v_exp_f32 v{SX+3}, v{SX+3}")
    a(f"v_mfma_f32_16x16x16_bf16 {vr(OAc+4,4)}, {vr(aV,2)}, {vr(PM+2,2)}, 0")
    for i in range(4, 8): a(f"v_exp_f32 v{SX+i}, v{SX+i}")
    for i in range(4): a(f"v_cvt_pk_bf16_f32 v{P+i}, v{SX+2*i}, v{SX+2*i+1}")
    a(f"v_mfma_f32_16x16x32_bf16 {vr(LA,4)}, {vr(ONES,4)}, {vr(P,4)}, {vr(LA,4)}")
    a(f"v_mfma_f32_16x16x32_bf16 {vr(OAc,4)}, {vr(VX,4)}, {vr(P,4)}, {vr(OAc,4)}")
    a(f"v_mfma_f32_16x16x32_bf16 {vr(OAc+4,4)}, {vr(VX+4,4)}, {vr(P,4)}, {vr(OAc+4,4)}")
    DP = "quad_perm:[0,1,0,1] row_mask:0xf bank_mask:0xf"
    a(f"v_rcp_f32_dpp v{t_}, v{LA} {DP}")
    for i in range(8):
        a(f"v_mul_f32_dpp v{OAc+i}, v{OAc+i}, v{t_} {DP}")
        if i == 3:
            a(f"v_cvt_pk_bf16_f32 v{OA}, v{OAc}, v{OAc+1}")
            a(f"v_cvt_pk_bf16_f32 v{OA+1}, v{OAc+2}, v{OAc+3}")
    a(f"v_cvt_pk_bf16_f32 v{OA+2}, v{OAc+4}, v{OAc+5}")
    a(f"v_cvt_pk_bf16_f32 v{OA+3}, v{OAc+6}, v{OAc+7}")
    stamp(a, prof, 4)
    if CFG["e1"]: a(f"s_mov_b64 exec, s[{sXM}:{sXM+1}]")
    ow = q.op(f"ds_write_b128 v{vOW}, {vr(OA,4)}")
    if CFG["e1"]: a(f"s_mov_b64 exec, -1")
    PK = X + 4
    SEL = aQK
    def fin(p):
        b = OACC + 4 * p
        return [f"v_cvt_pk_bf16_f32 v{PK+2*p}, v{b}, v{b+1}", f"v_cvt_pk_bf16_f32 v{PK+2*p+1}, v{b+2}, v{b+3}",
                f"v_bfi_b32 v{PK+2*p}, 1, s{sTAG}, v{PK+2*p}"]
    def pst(p): return f"buffer_store_dwordx2 {vr(PK+2*p,2)}, v{vPS}, {W}, s{sINW+p} offen {stf}"
    def osm(i): a(smf(OACC + 4*OSEQ[i][1], OA + 4*OSEQ[i][2], wop(OSEQ[i])))
    HV, PR = aQK + 4, aQK + 6
    NP = CFG["np"]
    osm(0)
    a(f"buffer_load_dwordx4 {vr(VX,4)}, v{vG}, {W}, s{sVX} offen sc1")
    a(f"v_xor_b32 v{X+1}, 512, v{vOW}")
    osm(1)
    a(f"buffer_load_dwordx4 {vr(VX+4,4)}, v{vG}, {W}, s{sVX} offen offset:1024 sc1")
    a(f"v_xor_b32 v{X+2}, 1024, v{vOW}")
    osm(2)
    a(f"v_xor_b32 v{X+3}, 1536, v{vOW}")
    for l in zlist(aQK + 4, 6): a(l)
    q.wait(ow)
    a("s_barrier")
    oa = [q.op(f"ds_read_b128 {vr(OA+4*k,4)}, v{X+k}") for k in range(1, 4)]
    late = rD + [f"ds_read_b128 {vr(SEL,4)}, v{vLB} offset:{L_SEL-L_MB}"]
    rd = []
    osm(3)
    q.wait(oa[0])
    stamp(a, prof, 5)
    post = {8: fin(0)[0:2], 9: fin(0)[2:], 11: fin(1)[0:2], 12: fin(1)[2:], 14: fin(2)[0:2], 15: fin(2)[2:]}
    vm = []
    pslots = [CFG["pf"] + (k * CFG["ps"]) // 16 for k in range(NP)]
    for i in range(4, 16):
        osm(i)
        if i < 6: q.wait(oa[i - 3])
        n = 0
        if i in pslots:
            k = pslots.index(i)
            a(f"buffer_load_dword v{PR+k}, v{vHR}, {W}, s{sHR} offen sc1"); vm.append(k); n += 1
        while late and n < (1 if (i < 6 or i in post) else 2):
            rd.append(q.op(late.pop(0))); n += 1
        if i == 11: q.wait(rd[1])
        if i in (12, 13, 14):
            while len(rd) <= 2 * (i - 11) + 1: rd.append(q.op(late.pop(0)))
            q.wait(rd[2 * (i - 11) + 1])
        if i in (10, 13): a(pst((i - 10) // 3)); vm.append("s")
        if i == 15: a(f"s_cmp_lg_u32 s{sW}, 0")
        for l in post.get(i, []): a(l)
    a(pst(2)); vm.append("s")
    for l in fin(3): a(l)
    a(pst(3)); vm.append("s")
    for l in late: q.op(l)
    stamp(a, prof, 6)
    a(f"s_cbranch_scc1 CH_HK_{tag}")
    HV = X + 8
    a(f"""v_mov_b32 v{HV}, s{sS}
    v_lshlrev_b32 v{HV+1}, 5, v{vHR}""")
    hop_prep(a, wait=False)
    delay(a, CFG["d1"])
    for k in range(NP):
        a(f"""s_waitcnt vmcnt({len(vm) - 1 - vm.index(k)})
        v_cmp_ne_u32 vcc, s{sS}, v{PR+k}
        s_cbranch_vccz CH_GO_{tag}""")
        if prof: a(f"s_add_u32 s{sPROF}, s{sPROF}, 0x100")
        delay(a, CFG["ps"] - 16 - (4 if prof else 0))
    a.label(f"CH_GO_{tag}")
    RA = X
    def sweep():
        for m in range(8):
            a(f"buffer_load_dwordx4 {vr(MA+4*m,4)}, v{vG}, {W}, s{sINB_R if m < 4 else sINB_R2} offen offset:{1024*(m&3)} sc1")
    sweep()
    delay(a, CFG["hd"])
    a.label(f"CH_RED_{tag}")
    a(f"""s_mov_b64 exec, 0xff
    buffer_store_dword v{HV}, v{HV+1}, {W}, s{sHW} offen {stf}
    s_mov_b64 exec, -1""")
    for m in range(8):
        b = MA + 4 * m
        a(f"s_waitcnt vmcnt({8 - m})")
        a(f"v_mfma_f32_16x16x32_bf16 {vr(RA,4)}, {vr(b,4)}, {vr(SEL,4)}, {'0' if m == 0 else vr(RA,4)}")
        if m == 0: a(f"v_xor_b32 v{ck}, s{sTAG}, v{b}")
        else: a(f"v_bitop3_b32 v{ck}, v{ck}, v{b}, s{sTAG} bitop3:0xf6")
        a(f"v_bitop3_b32 v{ck}, v{ck}, v{b+2}, s{sTAG} bitop3:0xf6")
    a(f"""v_and_b32 v{ck}, 1, v{ck}
    v_cmp_ne_u32 vcc, 0, v{ck}
    s_cbranch_vccnz CH_RED2_{tag}
    v_cvt_pk_bf16_f32 v{RA}, v{RA}, v{RA+1}
    v_cvt_pk_bf16_f32 v{RA+1}, v{RA+2}, v{RA+3}
    buffer_store_dwordx2 {vr(RA,2)}, v{vMS}, {W}, s{sMR} offen {stf}""")
    a.label(f"CH_POLL_{tag}")
    a("s_barrier")
    stamp(a, prof, 7)
    for l in zlist(aQK, 4): a(l)
    ld = f"""buffer_load_dwordx4 {vr(MA,4)}, v{vG}, {W}, s{sMR} offen sc1
    buffer_load_dwordx4 {vr(MA+4,4)}, v{vG}, {W}, s{sMR} offen offset:1024 sc1"""
    delay(a, CFG["d2"])
    a(ld)
    if prof:
        stamp(a, prof, 8)
        stamp(a, prof, 9)
        a(f"""s_waitcnt lgkmcnt(0)
        s_lshl_b32 s{sT0}, s{sS}, 6
        s_lshl_b32 s{sT1}, s{sW}, 12
        s_add_u32 s{sT0}, s{sT0}, s{sT1}
        v_mov_b32 v{MA+8}, 0""")
        for k in range(NST): a(f"v_writelane_b32 v{MA+8}, s{70+2*k}, {k}")
        a(f"v_writelane_b32 v{MA+8}, s{sPROF}, {NST}")
        a(f"v_writelane_b32 v{MA+8}, s{sCNT}, {NST+1}")
        a(f"""s_mov_b32 s{sPROF}, 0
        s_lshl_b32 s{sT1}, s{sH}, 14
        s_add_u32 s{sT0}, s{sT0}, s{sT1}
        s_add_u32 s34, s{sT0}, {WS_PROF - (L_MB >> 2)}
        v_lshrrev_b32 v{MA+9}, 2, v{vLB}""")
    a(f"s_branch CH_TOP_{tag}")
    a.label(f"CH_RED2_{tag}")
    sweep()
    a(f"""s_add_u32 s{sCNT}, s{sCNT}, 1
    s_cmp_gt_u32 s{sCNT}, {SPIN_MAX}
    s_cbranch_scc1 CH_DONE
    s_branch CH_RED_{tag}""")
    a.label(f"CH_RETRY_{tag}")
    DEP = CFG["dep"]
    a("s_mov_b64 exec, vcc")
    for k in range(DEP - 1):
        a(ld); delay(a, CFG["gap"])
    a.label(f"CH_RETRY2_{tag}")
    a(f"""s_mov_b64 exec, vcc
    {ld}
    s_add_u32 s{sCNT}, s{sCNT}, 1""")
    if prof: a(f"s_add_u32 s{sPROF}, s{sPROF}, 1")
    a(f"""s_cmp_gt_u32 s{sCNT}, {SPIN_MAX}
    s_cbranch_scc1 CH_DONE
    s_waitcnt vmcnt({2*(DEP-1)})
    v_max3_u32 v{ck}, v{MA}, v{MA+1}, v{MA+2}
    v_max3_u32 v{ck}, v{ck}, v{MA+3}, v{MA+4}
    v_max3_u32 v{ck}, v{ck}, v{MA+5}, v{MA+6}
    v_max_u32 v{ck}, v{ck}, v{MA+7}
    v_cmp_eq_u32 vcc, -1, v{ck}
    s_cbranch_vccnz CH_RETRY2_{tag}
    s_mov_b64 exec, -1""")
    for l in zlist(aQK, 16): a(l)
    a(f"s_branch CH_TOP_{tag}")
    a.label(f"CH_HK_{tag}")
    hop_prep(a)
    a(f"""s_cmp_eq_u32 s{sW}, 2
    s_cbranch_scc1 CH_HK2_{tag}
    s_cmp_eq_u32 s{sW}, 3
    s_cbranch_scc1 CH_HK3_{tag}
    v_mov_b32 v{HV}, -1""")
    delay(a, CFG["d1"] + CFG["p0"])
    a.label(f"CH_PROBE_{tag}")
    for u in range(4):
        a(f"""buffer_load_dword v{HV}, v{vHR}, {W}, s{sHR} offen sc1
        s_waitcnt vmcnt({CFG["pd"]})
        v_cmp_ne_u32 vcc, s{sS}, v{HV}
        s_cbranch_vccz CH_POLL_{tag}""")
        if u < 3: delay(a, CFG["pg"])
    a(f"""s_add_u32 s{sCNT}, s{sCNT}, 1
    s_cmp_gt_u32 s{sCNT}, {SPIN_MAX}
    s_cbranch_scc0 CH_PROBE_{tag}
    s_branch CH_DONE""")
    a.label(f"CH_HK2_{tag}")
    if CFG["gate"]: kv_gate(a, f"CH_KV_{tag}", f"s_add_u32 s{sT1}, s{sS}, 4")
    a(f"s_branch CH_POLL_{tag}")
    a.label(f"CH_HK3_{tag}")
    a(f"""v_mov_b32 v{X}, -1
    v_lshrrev_b32 v{ck}, 2, v{vLB}
    buffer_store_dword v{X}, v{ck}, {W}, s{sPOM} offen {stf}
    s_branch CH_POLL_{tag}""")

def step_scalars():
    return f"""s_add_u32 s{sS}, s{sS}, 1
    s_add_u32 s{sVX}, s{sVX}, {256*KB*CFG["adv"]}
    s_and_b32 s{sTAG}, s{sS}, 1
    s_mov_b32 s{sCNT}, 0
    s_add_u32 s{sT2}, s{sS}, 3
    s_and_b32 s{sT2}, s{sT2}, 3
    s_lshl_b32 s{sT0}, s{sT2}, 13
    s_add_u32 s{sPOM}, s{sT0}, s{sFREE0}
    s_xor_b32 s{sT0}, s{sT0}, 16384
    s_add_u32 s{sMR}, s{sT0}, {WS_MBUF}
    s_add_u32 s{sKM}, s{sKM}, {128*KB*CFG["advp"]}""".split("\n")

def chain_role(a, prof=False):
    a.label("CHAIN")
    if prof: a("s_memrealtime s[92:93]")
    chain_startup(a)
    rt(a, 2, X + 2)
    a(f"s_mov_b32 s{sMODE}, 1")
    all_arrived(a, "CH_ROSTER", X, X + 1, sCNT, sT0, "CH_DONE", early="CH_MODE")
    a(f"s_mov_b32 s{sMODE}, 0")
    a.label("CH_MODE")
    a(f"""s_mov_b32 s{sCNT}, 0
    v_mov_b32 v{X}, {D_INIT}""")
    a.label("CH_INIT")
    a(f"""global_load_dword v{X+1}, v{X}, s[{S_DBG}:{S_DBG+1}] sc1
    s_add_u32 s{sCNT}, s{sCNT}, 1
    s_waitcnt vmcnt(0)
    v_readfirstlane_b32 s{sT0}, v{X+1}
    s_cmp_gt_u32 s{sCNT}, {SPIN_MAX}
    s_cbranch_scc1 CH_DONE
    s_cmp_lt_u32 s{sT0}, 128
    s_cbranch_scc1 CH_INIT""")
    rt(a, 3, X + 2)
    if CFG["gate"]: kv_gate(a, "CH_KV0", f"s_mov_b32 s{sT1}, 3")
    a(f"""s_lshl_b32 s{sT0}, s{sW}, 11
    s_add_u32 s{sLKX}, s{sT0}, {L_MB}
    s_add_u32 m0, s{sLKX}, 8192
    s_mov_b32 s{sKXO}, 16384
    buffer_load_dwordx4 v{vG}, {W}, s{sKX} offen sc1 lds
    buffer_load_dwordx4 v{vG}, {W}, s{sKX} offen offset:1024 sc1 lds
    buffer_load_dwordx4 {vr(VX,4)}, v{vG}, {W}, s{sVX} offen sc1
    buffer_load_dwordx4 {vr(VX+4,4)}, v{vG}, {W}, s{sVX} offen offset:1024 sc1
    s_add_u32 s{sPF}, s{sVX}, s{sT0}
    s_add_u32 s{sPF}, s{sPF}, {256*KB - 2*L_MB}
    v_lshlrev_b32 v{X+2}, 1, v{vLB}
    buffer_load_dword v{X+3}, v{X+2}, {W}, s{sPF} offen
    s_lshl_b32 s{sFREE0}, s{sH}, 8
    s_add_u32 s{sFREE0}, s{sFREE0}, {WS_MBUF - (L_MB >> 2)}
    s_mov_b32 s{sMR}, {WS_MBUF}
    s_mov_b32 s34, {WS_PROF + 600*KB}
    v_mov_b32 v{MA+9}, 0
    s_mov_b32 s{sPROF}, 0""")
    for l in ring_load(0): a(l)
    for l in zlist(aQK, 24): a(l)
    hop_prep2(a)
    a("s_waitcnt vmcnt(0)")
    rt(a, 4, X + 2)
    if prof: a("s_memrealtime s[94:95]")
    a(f"""s_waitcnt lgkmcnt(0)
    s_cmp_eq_u32 s{sMODE}, {CFG['fast']}
    s_cbranch_scc0 CH_TOP_slow""")
    chain_loop(a, "fast", "", prof is True)
    chain_loop(a, "slow", "sc1", prof is True)
    a.label("CH_LAST")
    pub_prepare(a)
    a(PUBST)
    a(f"""v_mov_b32 v{MA+4}, 64
    v_sub_u32 v{MA+5}, 0, v{vG}
    v_lshrrev_b32 v{MA+5}, 1, v{MA+5}
    s_waitcnt vmcnt(0)
    s_barrier
    buffer_store_dword v{MA+4}, v{MA+5}, {W}, s{sFM} offen sc1""")
    if prof:
        a(f"""s_memrealtime s[96:97]
        s_waitcnt lgkmcnt(0)
        v_mov_b32 v{MA}, s92
        v_mov_b32 v{MA+1}, s94
        v_mov_b32 v{MA+2}, s96
        v_mov_b32 v{MA+3}, 0
        s_lshl_b32 s{sT0}, s{sH}, 4
        s_add_u32 s{sT0}, s{sT0}, {WS_PROF + 512*KB}
        buffer_store_dwordx4 {vr(MA,4)}, v{MA+3}, {W}, s{sT0} offen""")
    rt(a, 7)
    a.label("CH_DONE")
    a("""s_waitcnt vmcnt(0)
    s_endpgm""")
```

```python
from asmlib import *
from layout import *
from chain import (S_WO, S_OUT, S_DBG, SRD_WS, SRD_T, sW, sROLE, W, set_srd, LdsQ, SPIN_MAX, rt, RT)
from qa import wait_dbg, INIT_TARGET

sCB, sTQ, sS, sT0, sT1, sT2, sCNT, sOo, sOUT, sF, sNEED = range(48, 59)
T = f"s[{SRD_T}:{SRD_T+3}]"
vL16, vIDX, vFL, vRW, vST, vTR, vD = range(7)
A, ACC, TMP = 32, 8, 16
vRDY, vJ = 7, 160

def op_role(a, first_role):
    a.label("OP")
    lane, t0, t1, t2 = 8, 9, 10, 11
    a(f"""s_sub_u32 s{sT0}, s{sROLE}, {first_role}
    s_and_b32 s{sCB}, s{sT0}, 15
    s_lshr_b32 s{sTQ}, s{sT0}, 4
    v_mbcnt_lo_u32_b32 v{lane}, -1, 0
    v_mbcnt_hi_u32_b32 v{lane}, -1, v{lane}
    v_lshlrev_b32 v{vL16}, 4, v{lane}""")
    a(f"""v_bfe_u32 v{t0}, v{lane}, 3, 1
    v_lshlrev_b32 v{t0}, 5, v{t0}
    v_bfe_u32 v{t1}, v{lane}, 2, 1
    v_add_u32 v{t0}, v{t0}, v{t1}
    v_bfe_u32 v{t1}, v{lane}, 4, 1
    v_lshl_add_u32 v{t0}, v{t1}, 3, v{t0}
    v_lshrrev_b32 v{t1}, 5, v{lane}
    v_lshl_add_u32 v{t0}, v{t1}, 2, v{t0}
    v_and_b32 v{t1}, 3, v{lane}
    v_lshlrev_b32 v{t2}, 4, v{t1}
    v_lshl_add_u32 v{vD}, v{t0}, 10, v{t2}
    s_lshl_b32 s{sT0}, s{sW}, 20
    s_lshl_b32 s{sT1}, s{sCB}, 6
    s_add_u32 s{sT0}, s{sT0}, s{sT1}
    v_add_u32 v{vD}, s{sT0}, v{vD}
    v_lshrrev_b32 v{t0}, 2, v{lane}
    v_lshlrev_b32 v{t0}, 6, v{t0}
    v_lshl_add_u32 v{vTR}, v{t1}, 3, v{t0}
    s_lshl_b32 s{sT2}, s{sW}, 15
    v_add_u32 v{vTR}, s{sT2}, v{vTR}""")
    set_srd(a, SRD_T, S_WO, 4 * MB)
    def issue(c):
        for i in range(16):
            kk, m = 4 * c + (i >> 2), i & 3
            a(f"""s_add_u32 m0, s{sT2}, {(c & 1) * 16384 + i * 1024}
            s_mov_b32 s{sT0}, {(64 * kk + 16 * (m >> 1) + 2 * (m & 1)) * 1024}
            buffer_load_dwordx4 v{vD}, {T}, s{sT0} offen lds""")
    a("s_barrier")
    issue(0); issue(1)
    a(f"""v_mov_b32 v{t0}, 0x4444
    v_mov_b32 v{t1}, 0xeeee
    v_and_b32 v{t2}, 8, v{lane}
    v_cmp_ne_u32 vcc, 0, v{t2}
    v_cndmask_b32 v{vIDX}, v{t0}, v{t1}, vcc
    v_and_b32 v{t0}, 7, v{lane}
    s_lshl_b32 s{sT0}, s{sW}, 5
    v_lshlrev_b32 v{vFL}, 2, v{t0}
    v_add_u32 v{vFL}, s{sT0}, v{vFL}
    v_bfe_u32 v{vJ}, v{lane}, 3, 2
    v_lshl_add_u32 v{vFL}, v{vJ}, 7, v{vFL}
    v_mov_b32 v{vRDY}, 0
    s_lshl_b32 s{sT0}, s{sW}, 10
    s_add_u32 s{sT0}, s{sT0}, 131072
    v_add_u32 v{vRW}, s{sT0}, v{vL16}""")
    a(f"""v_bfe_u32 v{t0}, v{lane}, 4, 1
    v_and_b32 v{t1}, 1, v{lane}
    v_lshl_add_u32 v{t0}, v{t0}, 1, v{t1}
    v_lshlrev_b32 v{t0}, 12, v{t0}
    v_lshrrev_b32 v{t1}, 5, v{lane}
    v_lshl_add_u32 v{t0}, v{t1}, 5, v{t0}
    v_and_b32 v{t1}, 14, v{lane}
    v_lshl_add_u32 v{vST}, v{t1}, 1, v{t0}
    s_lshl_b32 s{sOUT}, s{sTQ}, 14
    s_lshl_b32 s{sT1}, s{sCB}, 6
    s_add_u32 s{sOUT}, s{sOUT}, s{sT1}
    s_add_u32 s{sOUT}, s{sOUT}, 1024
    s_lshl_b32 s{sOo}, s{sTQ}, 16
    s_lshl_b32 s{sT1}, s{sW}, 14
    s_add_u32 s{sOo}, s{sOo}, s{sT1}
    s_add_u32 s{sOo}, s{sOo}, {WS_O}
    s_mov_b32 s{sS}, 0""")
    for c in range(4):
        a(f"s_waitcnt vmcnt({16 if c < 3 else 0})")
        for i in range(16):
            kk, m = 4 * c + (i >> 2), i & 3
            for Tt in range(2):
                a(f"ds_read_b64_tr_b16 {ar((2*kk + Tt)*8 + 2*m, 2)}, v{vTR} offset:{(c & 1)*16384 + i*1024 + Tt*32}")
        a("s_waitcnt lgkmcnt(0)")
        if c + 2 < 4: issue(c + 2)
    set_srd(a, SRD_T, S_OUT, 4 * MB)
    wait_dbg(a, "OP_INIT", D_INIT, INIT_TARGET, t0, t1, sCNT, sT0, "EXIT")
    a(f"""s_mov_b32 s{sF}, {WS_FLAGS + F_O}
    s_mov_b32 s{sNEED}, 0""")
    rt(a, 5, 200)
    a.label("OP_LOOP")
    if RT["on"]:
        a(f"s_cmp_lg_u32 s{sS}, 32\ns_cbranch_scc1 OP_RT")
        rt(a, 6, 200)
        a.label("OP_RT")
    def loads(buf, so):
        for kk in range(16):
            if kk & 3 == 0: a(f"s_add_u32 s{sT0}, s{sOo}, {so + 1024 * kk}")
            a(f"buffer_load_dwordx4 {vr(A+64*buf+4*kk,4)}, v{vL16}, {W}, s{sT0} offen offset:{1024*(kk&3)} sc1")
    for buf in range(2):
        for l in [f"v_mov_b64 v[{ACC+i}:{ACC+i+1}], 0" for i in range(0, 8, 2)]: a(l)
        a(f"""s_cmp_lg_u32 s{sNEED}, 0
        s_cbranch_scc1 OP_HAVE{buf}
        s_mov_b32 s{sCNT}, 0""")
        a.label(f"OP_W{buf}")
        a(f"""buffer_load_dword v{vRDY}, v{vFL}, {W}, s{sF} offen sc1
        s_add_u32 s{sCNT}, s{sCNT}, 1
        s_cmp_gt_u32 s{sCNT}, {SPIN_MAX}
        s_cbranch_scc1 EXIT
        s_waitcnt vmcnt(0)
        v_lshl_add_u32 v{vRDY}, v{vRDY}, 2, v{vJ}
        v_cmp_ge_u32 vcc, s{sS}, v{vRDY}
        s_cbranch_vccz OP_GO{buf}
        s_sleep 1
        s_branch OP_W{buf}""")
        a.label(f"OP_GO{buf}")
        loads(buf, 0)
        a.label(f"OP_HAVE{buf}")
        a(f"""s_add_u32 s{sT1}, s{sS}, 1
        v_cmp_ge_u32 vcc, s{sT1}, v{vRDY}
        s_mov_b32 s{sNEED}, 0
        s_cbranch_vccnz OP_FINE{buf}
        s_mov_b32 s{sNEED}, 1""")
        loads(buf ^ 1, 256 * KB)
        a("s_waitcnt vmcnt(16)")
        for kk in range(16):
            for Tt in range(2):
                a(f"v_smfmac_f32_16x16x64_bf16 {vr(ACC+4*Tt,4)}, {vr(A+64*buf+4*kk,4)}, {ar((2*kk+Tt)*8,8)}, v{vIDX}")
        a(f"s_branch OP_RED{buf}")
        a.label(f"OP_FINE{buf}")
        for kk in range(16):
            a(f"s_waitcnt vmcnt({15-kk})")
            for Tt in range(2):
                a(f"v_smfmac_f32_16x16x64_bf16 {vr(ACC+4*Tt,4)}, {vr(A+64*buf+4*kk,4)}, {ar((2*kk+Tt)*8,8)}, v{vIDX}")
        a.label(f"OP_RED{buf}")
        for r in range(4): a(f"v_permlane32_swap_b32 v{ACC+r}, v{ACC+4+r}")
        for r in range(4): a(f"v_add_f32 v{ACC+r}, v{ACC+r}, v{ACC+4+r}")
        a(f"""ds_write_b128 v{vRW}, {vr(ACC,4)}
        s_waitcnt lgkmcnt(0)
        s_barrier
        s_cmp_lg_u32 s{sW}, 0
        s_cbranch_scc1 OP_NEXT{buf}""")
        for w in range(1, 4): a(f"ds_read_b128 {vr(TMP+4*w,4)}, v{vRW} offset:{1024*w}")
        a("s_waitcnt lgkmcnt(0)")
        for r in range(4):
            a(f"v_add_f32 v{ACC+r}, v{ACC+r}, v{TMP+4+r}")
            a(f"v_add_f32 v{TMP+8+r}, v{TMP+8+r}, v{TMP+12+r}")
        for r in range(4): a(f"v_add_f32 v{ACC+r}, v{ACC+r}, v{TMP+8+r}")
        for r in range(4): a(f"v_mov_b32_dpp v{TMP+r}, v{ACC+r} quad_perm:[1,0,3,2] row_mask:0xf bank_mask:0xf")
        a(f"""v_cvt_pk_bf16_f32 v{TMP+4}, v{ACC}, v{TMP}
        v_cvt_pk_bf16_f32 v{TMP+5}, v{ACC+1}, v{TMP+1}
        v_cvt_pk_bf16_f32 v{TMP+6}, v{TMP+2}, v{ACC+2}
        v_cvt_pk_bf16_f32 v{TMP+7}, v{TMP+3}, v{ACC+3}
        s_mov_b32 vcc_lo, 0xaaaaaaaa
        s_mov_b32 vcc_hi, 0xaaaaaaaa
        v_cndmask_b32 v{TMP+4}, v{TMP+4}, v{TMP+6}, vcc
        v_cndmask_b32 v{TMP+5}, v{TMP+5}, v{TMP+7}, vcc
        buffer_store_dword v{TMP+4}, v{vST}, {T}, s{sOUT} offen sc1
        buffer_store_dword v{TMP+5}, v{vST}, {T}, s{sOUT} offen offset:2048 sc1""")
        a.label(f"OP_NEXT{buf}")
        a(f"""v_xor_b32 v{vRW}, 4096, v{vRW}
        s_add_u32 s{sOo}, s{sOo}, {256 * KB}
        s_add_u32 s{sOUT}, s{sOUT}, 65536
        s_add_u32 s{sS}, s{sS}, 1""")
    a(f"""s_cmp_lt_u32 s{sS}, 64
    s_cbranch_scc1 OP_LOOP""")
    rt(a, 7, 200)
    a("""s_waitcnt vmcnt(0)
    s_endpgm""")
```

```python
from asmlib import *
from layout import *
from chain import (S_AX, S_WR, S_WI, S_OUT, S_DBG, SRD_WS, SRD_T, sW, sROLE, W, set_srd, LdsQ, SPIN_MAX, rt)
import qa
from qa import wait_dbg, stage_consts, x_consts, x_issue, vXS, vA, sT0, sT1, sT2, sCNT

sR, sK, sRE, sIM, sSC, sPASS, sB0, sL = 48, 49, 50, 55, 56, 57, 58, 59
SRD_U = 60
T = f"s[{SRD_T}:{SRD_T+3}]"
U = f"s[{SRD_U}:{SRD_U+3}]"
SRD_V = 64
V = f"s[{SRD_V}:{SRD_V+3}]"
lane, vO = 2, 3
ACC, FR, TM, CN = 16, 80, 112, 128
def perm(r): return 16 * (r >> 3) + 8 * ((r & 7) >> 2) + (r & 3)
def fbits(x):
    import struct
    return "0x%08x" % struct.unpack("<I", struct.pack("<f", x))[0]

def arrive(a, off, t0, t1, wb=True):
    lab = a.uid("PA_ARR")
    a(f"""s_waitcnt vmcnt(0)
    s_barrier
    s_cmp_lg_u32 s{sW}, 0
    s_cbranch_scc1 {lab}""")
    if wb: a("buffer_wbl2 sc1\ns_waitcnt vmcnt(0)")
    a(f"""v_mov_b32 v{t0}, 1
    v_mov_b32 v{t1}, {off}
    s_mov_b64 exec, 1
    global_atomic_add v{t1}, v{t0}, s[{S_DBG}:{S_DBG+1}]
    s_mov_b64 exec, -1""")
    a.label(lab)

def stage1(a):
    t0, t1, t2, kf, base = TM, TM + 1, TM + 2, TM + 3, TM + 4
    P = TM + 8
    x_consts(a, lane, t0, t1)
    set_srd(a, SRD_T, S_AX, 2 * MB)
    a(f"""s_lshr_b32 s{sB0}, s{sR}, 2
    s_lshl_b32 s{sB0}, s{sB0}, 2
    s_lshl_b32 s{sT2}, s{sW}, 19
    s_lshl_b32 s{sT0}, s{sB0}, 10
    s_add_u32 s{sT2}, s{sT2}, s{sT0}
    s_lshl_b32 s{sL}, s{sW}, 13""")
    for i in range(4):
        x_issue(a, sT2, 65536, sL, t0)
        a(f"""s_add_u32 s{sT2}, s{sT2}, 1024
        s_add_u32 s{sL}, s{sL}, 32768""")
    wload(a, 0)
    a(f"""s_and_b32 s{sT0}, s{sR}, 3
    s_lshl_b32 s{sT0}, s{sT0}, 2
    s_add_u32 s{sT0}, s{sT0}, s{sW}
    s_lshl_b32 s{sT0}, s{sT0}, 5
    v_and_b32 v{t0}, 31, v{lane}
    v_add_u32 v{t0}, s{sT0}, v{t0}
    v_lshrrev_b32 v{t1}, 5, v{lane}
    v_lshlrev_b32 v{vO}, 12, v{t0}
    v_lshl_add_u32 v{vO}, v{t1}, 10, v{vO}
    v_lshrrev_b32 v{kf}, 1, v{t0}
    v_and_b32 v{base}, 1, v{t0}
    v_lshlrev_b32 v{base}, 7, v{base}
    v_cmp_eq_u32 vcc, 1, v{t0}
    v_mov_b32 v{t2}, 256
    v_cndmask_b32 v{kf}, v{kf}, v{t2}, vcc
    v_cndmask_b32 v{base}, v{base}, 0, vcc
    v_lshlrev_b32 v{t1}, 3, v{t1}
    v_mad_u32_u24 v{base}, v{kf}, v{t1}, v{base}
    v_cvt_f32_u32 v{kf}, v{kf}
    v_cvt_f32_u32 v{base}, v{base}
    v_mul_f32 v{kf}, {fbits(1/512)}, v{kf}
    v_mul_f32 v{base}, {fbits(1/512)}, v{base}
    v_mul_f32 v{t2}, {fbits(16.0)}, v{kf}""")
    for ks in range(32):
        a(f"v_fract_f32 v{P}, v{base}")
        for j in range(1, 8): a(f"v_add_f32 v{P+j}, v{P+j-1}, v{kf}")
        a(f"v_add_f32 v{base}, v{P}, v{t2}")
        for j in range(8): a(f"v_cos_f32 v{P+j}, v{P+j}")
        for j in range(4): a(f"v_cvt_pk_bf16_f32 v{CN+4*ks+j}, v{P+2*j}, v{P+2*j+1}")
    a(f"""s_lshl_b32 s{sT2}, s{sB0}, 4
    s_add_u32 s{sT2}, s{sT2}, {WS_A1}
    s_waitcnt vmcnt(29)
    s_barrier""")
    wload(a, 1)
    for i in range(4):
        q = LdsQ(a)
        if i == 2:
            for v in range(8): a(f"v_add_u32 v{vA+v}, 0x10000, v{vA+v}")
        rd = lambda ks: f"ds_read_b128 {vr(FR + 4*(ks & 7), 4)}, v{vA + (ks & 7)} offset:{256 * (ks >> 3) + 32768 * (i & 1)}"
        tk = {}
        for ks in range(6): tk[ks] = q.op(rd(ks))
        acc = vr(ACC + 16 * i, 16)
        for ks in range(32):
            q.wait(tk[ks])
            a(f"v_mfma_f32_32x32x16_bf16 {acc}, {vr(FR+4*(ks&7),4)}, {vr(CN+4*ks,4)}, {'0' if ks == 0 else acc}")
            if ks + 6 < 32: tk[ks + 6] = q.op(rd(ks + 6))
    for i in range(4):
        for j in range(8): a(f"v_cvt_pk_bf16_f32 v{FR+8*i+j}, v{ACC+16*i+2*j}, v{ACC+16*i+2*j+1}")
        for k in range(2): a(f"buffer_store_dwordx4 {vr(FR+8*i+4*k,4)}, v{vO}, {W}, s{sT2} offen offset:{2048*k + 16*i}")
    arrive(a, 12, t0, t1)

C32, C64 = CN, CN + 24
def c32(t, k): return vr(C32 + 8 * t + 4 * k, 4)
def c64(t, tile, b): return vr(C64 + 32 * t + 16 * tile + 4 * b, 4)

def gen_consts(a):
    f, h4, p = TM, TM + 1, TM + 2
    def block(dst_c, dst_s, dst_n, k0):
        for jj in range(8):
            a(f"v_add_f32 v{p}, {fbits(float(k0 + 8*(jj>>2) + (jj&3)))}, v{h4}")
            a(f"v_mul_f32 v{p}, v{p}, v{f}")
            a(f"v_fract_f32 v{p}, v{p}")
            a(f"v_cos_f32 v{p+2+(jj&1)}, v{p}")
            a(f"v_sin_f32 v{p+4+(jj&1)}, v{p}")
            if jj & 1:
                a(f"v_cvt_pk_bf16_f32 v{dst_c+(jj>>1)}, v{p+2}, v{p+3}")
                a(f"v_cvt_pk_bf16_f32 v{dst_s+(jj>>1)}, v{p+4}, v{p+5}")
                a(f"v_xor_b32 v{dst_n+(jj>>1)}, 0x80008000, v{dst_s+(jj>>1)}")
    a(f"""v_lshrrev_b32 v{h4}, 5, v{lane}
    v_lshlrev_b32 v{h4}, 2, v{h4}
    v_cvt_f32_u32 v{h4}, v{h4}
    v_and_b32 v{f}, 31, v{lane}
    v_cvt_f32_u32 v{f}, v{f}
    v_mul_f32 v{f}, {fbits(1/32)}, v{f}""")
    for k in range(2): block(C32 + 4*k, C32 + 8 + 4*k, C32 + 16 + 4*k, 16 * k)
    a(f"v_mul_f32 v{f}, 0.5, v{f}")
    for tile in range(2):
        if tile: a(f"v_add_f32 v{f}, 0.5, v{f}")
        for b in range(4): block(C64 + 16*tile + 4*b, C64 + 32 + 16*tile + 4*b, C64 + 64 + 16*tile + 4*b, 16 * b)

def wload(a, half):
    t0, t1, vW = 4, 5, 6
    if half == 0:
        set_srd(a, SRD_V, S_WR, 2048 * 257 * 2)
        set_srd(a, SRD_U, S_WI, 2048 * 257 * 2)
        a(f"""v_and_b32 v{t0}, 31, v{lane}
        v_lshrrev_b32 v{t1}, 5, v{lane}
        v_lshl_add_u32 v{vW}, v{t1}, 7, v{t0}
        v_mul_u32_u24 v{vW}, 514, v{vW}""")
        for i in range(64): a(f"v_accvgpr_write_b32 a{i}, 0")
    a(f"s_lshl_b32 s{sT1}, s{sK}, 1")
    for r in range(15 * half, 15 + 17 * half):
        a(f"""s_add_u32 s{sT0}, s{sT1}, {32 * (32 * (r >> 4) + perm(r & 15)) * 514}
        buffer_load_short_d16_hi a{r}, v{vW}, {V}, s{sT0} offen
        buffer_load_short_d16_hi a{32+r}, v{vW}, {U}, s{sT0} offen""")

def stage2(a):
    t0, t1, vW, vLD, vIM, vSI = 4, 5, 6, 7, 8, 9
    R = lambda tile: ACC + 32 * tile
    I = lambda tile: ACC + 32 * tile + 16
    fr = lambda part, beta: FR + 16 * part + 4 * beta
    a(f"""v_and_b32 v{t0}, 31, v{lane}
    v_lshrrev_b32 v{t1}, 5, v{lane}
    v_lshlrev_b32 v{vLD}, 4, v{t0}
    v_lshl_add_u32 v{vLD}, v{t1}, 10, v{vLD}
    v_lshlrev_b32 v{vO}, 4, v{lane}""")
    a(f"""s_lshl_b32 s{sRE}, s{sK}, 13
    s_mov_b32 s{sSC}, {fbits(2.0**-19)}
    s_mov_b32 s{sIM}, 4096
    s_and_b32 s{sT0}, s{sK}, 255
    s_cmp_eq_u32 s{sT0}, 0
    s_cselect_b32 s{sSC}, {fbits(2.0**-20)}, s{sSC}
    s_cselect_b32 s{sIM}, 0x40000000, s{sIM}
    s_cmp_eq_u32 s{sK}, 256
    s_cselect_b32 s{sRE}, 4096, s{sRE}
    v_add_u32 v{vIM}, s{sIM}, v{vLD}
    v_add_u32 v{vSI}, s{sIM}, v{vO}""")
    gen_consts(a)
    wait_dbg(a, "PA2_W", 12, 64, t0, t1, sCNT, sT0, "EXIT")
    a(f"s_add_u32 s{sT0}, s{sRE}, {WS_A1}")
    for part in range(2):
        for bt in range(2):
            for k in range(2):
                a(f"buffer_load_dwordx4 {vr(fr(part, 2*bt+k),4)}, v{vIM if part else vLD}, {W}, s{sT0} offen offset:{2048*k + 512*bt} sc1")
    a("s_waitcnt vmcnt(0)")
    def mm(acc, terms):
        for n, (x, y) in enumerate(terms):
            a(f"v_mfma_f32_32x32x16_bf16 {vr(acc,16)}, {x}, {y}, {'0' if n == 0 else vr(acc,16)}")
    F = lambda part, beta: vr(fr(part, beta), 4)
    def small(sgn):
        for bt in range(2):
            mm(R(bt), [(F(0, 2*bt+k), c32(0, k)) for k in range(2)] + [(F(1, 2*bt+k), c32(2 if sgn else 1, k)) for k in range(2)])
            mm(I(bt), [(F(1, 2*bt+k), c32(0, k)) for k in range(2)] + [(F(0, 2*bt+k), c32(1 if sgn else 2, k)) for k in range(2)])
    def pack():
        for tile in range(2):
            for j in range(8):
                a(f"v_cvt_pk_bf16_f32 v{FR+8*tile+j}, v{R(tile)+2*j}, v{R(tile)+2*j+1}")
                a(f"v_cvt_pk_bf16_f32 v{FR+16+8*tile+j}, v{I(tile)+2*j}, v{I(tile)+2*j+1}")
    def cmul(x, y, c, s, t, conj):
        a(f"v_mul_f32 v{t}, v{y}, v{s}")
        a(f"v_mul_f32 v{y}, v{y}, v{c}")
        a(f"v_fma_f32 v{y}, {'-' if conj else ''}v{x}, v{s}, v{y}")
        a(f"v_fma_f32 v{x}, v{x}, v{c}, {'' if conj else '-'}v{t}")
    def twiddle(fwd):
        f, h4 = TM, TM + 1
        a(f"""v_lshrrev_b32 v{h4}, 5, v{lane}
        v_lshlrev_b32 v{h4}, 2, v{h4}
        v_cvt_f32_u32 v{h4}, v{h4}
        v_and_b32 v{f}, 31, v{lane}
        v_cvt_f32_u32 v{f}, v{f}
        v_mul_f32 v{f}, {fbits(1/2048)}, v{f}""")
        for tile in range(2):
            if tile and not fwd: a(f"v_add_f32 v{f}, {fbits(32/2048)}, v{f}")
            for r in range(16):
                p = TM + 4 + 4 * (r & 1)
                x = perm(r) + (32 * tile if fwd else 0)
                a(f"v_add_f32 v{p}, {fbits(float(x))}, v{h4}")
                a(f"v_mul_f32 v{p}, v{p}, v{f}")
                a(f"v_cos_f32 v{p+1}, v{p}")
                a(f"v_sin_f32 v{p+2}, v{p}")
                cmul(R(tile) + r, I(tile) + r, p + 1, p + 2, p + 3, conj=fwd)
    small(0)
    twiddle(True)
    pack()
    for et in range(2):
        mm(R(et), [(c64(0, et, b), F(0, b)) for b in range(4)] + [(c64(1, et, b), F(1, b)) for b in range(4)])
        mm(I(et), [(c64(0, et, b), F(1, b)) for b in range(4)] + [(c64(2, et, b), F(0, b)) for b in range(4)])
    for et in range(2):
        for r in range(16):
            p = TM + 4 + 4 * (r & 1)
            a(f"v_accvgpr_read_b32 v{p+1}, a{16*et+r}")
            a(f"v_accvgpr_read_b32 v{p+2}, a{32+16*et+r}")
            cmul(R(et) + r, I(et) + r, p + 1, p + 2, p + 3, conj=False)
    pack()
    for bt in range(2):
        mm(R(bt), [(F(0, e), c64(0, bt, e)) for e in range(4)] + [(F(1, e), c64(2, bt, e)) for e in range(4)])
        mm(I(bt), [(F(1, e), c64(0, bt, e)) for e in range(4)] + [(F(0, e), c64(1, bt, e)) for e in range(4)])
    twiddle(False)
    pack()
    small(1)
    for i in range(64): a(f"v_mul_f32 v{ACC+i}, s{sSC}, v{ACC+i}")
    pack()
    a(f"s_add_u32 s{sT0}, s{sRE}, {WS_A2}")
    for part in range(2):
        for b in range(4):
            a(f"buffer_store_dwordx4 {F(part, b)}, v{vSI if part else vO}, {W}, s{sT0} offen offset:{1024*b} sc1")
    a.label("PA2_END")
    arrive(a, 16, t0, t1, wb=False)

def stage3(a):
    t0, t1, t2, vD, vTR = 4, 5, 6, 7, 8
    df, base, P = TM, TM + 1, TM + 8
    stage_consts(a, vD, vTR, lane, t0, t1, t2, 12)
    for tt in range(1, 4): a(f"v_xor_b32 v{vTR+tt}, {64*tt}, v{vTR}")
    for tt in range(4): a(f"v_add_u32 v{vTR+4+tt}, 0x10000, v{vTR+tt}")
    a(f"""s_and_b32 s{sT0}, s{sR}, 3
    s_lshl_b32 s{sT0}, s{sT0}, 2
    s_add_u32 s{sT0}, s{sT0}, s{sW}
    s_lshl_b32 s{sB0}, s{sT0}, 5
    v_and_b32 v{t0}, 3, v{lane}
    v_bfe_u32 v{t1}, v{lane}, 2, 1
    v_lshl_add_u32 v{t2}, v{t1}, 4, v{t0}
    v_bfe_u32 v{df}, v{lane}, 3, 2
    v_lshl_add_u32 v{t2}, v{df}, 2, v{t2}
    v_add_u32 v{t2}, s{sB0}, v{t2}
    v_lshl_add_u32 v{vO}, v{t1}, 3, v{t0}
    v_lshl_add_u32 v{vO}, v{df}, 6, v{vO}
    v_lshrrev_b32 v{t1}, 5, v{lane}
    v_lshlrev_b32 v{vO}, 11, v{vO}
    v_lshl_add_u32 v{vO}, v{t1}, 5, v{vO}
    v_cvt_f32_u32 v{df}, v{t2}
    v_mul_f32 v{df}, {fbits(1/512)}, v{df}
    v_lshlrev_b32 v{t1}, 2, v{t1}
    v_cvt_f32_u32 v{base}, v{t1}
    v_mul_f32 v{base}, v{base}, v{df}
    v_mul_f32 v{t2}, {fbits(8.0)}, v{df}
    v_mul_f32 v{t0}, {fbits(256.0)}, v{df}
    v_fract_f32 v{t0}, v{t0}
    v_cmp_gt_u32 vcc, 32, v{lane}""")
    for ks in range(32):
        a(f"v_fract_f32 v{P}, v{base}")
        for j in range(1, 4): a(f"v_add_f32 v{P+2*j}, v{P+2*j-2}, v{df}")
        for j in range(4): a(f"v_add_f32 v{P+2*j+1}, {fbits(0.25)}, v{P+2*j}")
        a(f"v_add_f32 v{base}, v{P}, v{t2}")
        if ks == 0: a(f"v_cndmask_b32 v{P+1}, v{P+1}, v{t0}, vcc")
        for j in range(8): a(f"v_cos_f32 v{P+j}, v{P+j}")
        for j in range(4): a(f"v_cvt_pk_bf16_f32 v{CN+4*ks+j}, v{P+2*j}, v{P+2*j+1}")
    wait_dbg(a, "PA3_W", 16, 65, t0, t1, sCNT, sT0, "EXIT")
    a(f"""s_lshr_b32 s{sT1}, s{sR}, 2
    s_lshl_b32 s{sT2}, s{sT1}, 8
    s_add_u32 s{sT2}, s{sT2}, {WS_A2}
    s_lshl_b32 s{sL}, s{sW}, 10""")
    for i in range(32):
        a(f"""s_add_u32 m0, s{sL}, {4096*i}
        s_add_u32 s{sT0}, s{sT2}, {65536*i}
        buffer_load_dwordx4 v{vD}, {W}, s{sT0} offen sc1 lds""")
    set_srd(a, SRD_T, S_OUT, 4 * MB)
    a(f"""s_and_b32 s{sT0}, s{sT1}, 1
    s_lshl_b32 s{sT2}, s{sT0}, 10
    s_lshr_b32 s{sT0}, s{sT1}, 2
    s_lshl_b32 s{sT0}, s{sT0}, 4
    s_add_u32 s{sT2}, s{sT2}, s{sT0}
    s_and_b32 s{sT0}, s{sT1}, 2
    s_lshl_b32 s{sT0}, s{sT0}, 1
    s_add_u32 s{sT2}, s{sT2}, s{sT0}
    s_lshl_b32 s{sT2}, s{sT2}, 11
    s_lshl_b32 s{sT0}, s{sB0}, 1
    s_add_u32 s{sT2}, s{sT2}, s{sT0}
    s_waitcnt vmcnt(0)
    s_barrier""")
    for tt in range(4):
        q = LdsQ(a)
        def rd(ks):
            for m in range(2):
                t = q.op(f"ds_read_b64_tr_b16 {vr(FR + 4*(ks & 7) + 2*m, 2)}, v{vTR + tt + 4*(ks >> 4)} offset:{4096*(ks & 15) + 1024*m}")
            return t
        tk = {}
        for ks in range(6): tk[ks] = rd(ks)
        acc = vr(ACC + 16 * tt, 16)
        for ks in range(32):
            q.wait(tk[ks])
            a(f"v_mfma_f32_32x32x16_bf16 {acc}, {vr(CN+4*ks,4)}, {vr(FR+4*(ks&7),4)}, {'0' if ks == 0 else acc}")
            if ks + 6 < 32: tk[ks + 6] = rd(ks + 6)
    for tt in range(4):
        for j in range(8): a(f"v_cvt_pk_bf16_f32 v{FR+8*tt+j}, v{ACC+16*tt+2*j}, v{ACC+16*tt+2*j+1}")
        for k in range(2): a(f"buffer_store_dwordx4 {vr(FR+8*tt+4*k,4)}, v{vO}, {T}, s{sT2} offen offset:{16*k} sc1")
        a(f"s_add_u32 s{sT2}, s{sT2}, 524288")

def pa_role(a, first_role):
    a.label("PA")
    a(f"""s_sub_u32 s{sR}, s{sROLE}, {first_role}
    v_and_b32 v{lane}, 63, v0
    s_lshl_b32 s{sK}, s{sR}, 2
    s_add_u32 s{sK}, s{sK}, s{sW}
    s_cmp_lt_u32 s{sR}, 64
    s_cbranch_scc1 PA1
    s_cmp_gt_u32 s{sK}, 256
    s_cbranch_scc1 PA2_END""")
    wload(a, 0); a("s_waitcnt vmcnt(20)"); wload(a, 1)
    a("s_branch PA2")
    a.label("PA1")
    stage1(a); rt(a, 2)
    a.label("PA2")
    stage2(a); rt(a, 3)
    a(f"""s_cmp_ge_u32 s{sR}, 64
    s_cbranch_scc1 EXIT""")
    stage3(a); rt(a, 4)
```

```python
from asmlib import *
from layout import *
from chain import (S_BX, S_WQ, S_WK, S_WV, S_DBG, SRD_WS, SRD_T, sW, sROLE, W, set_srd, LdsQ, SPIN_MAX, rt, RT)

sH, sJ, sN, sT0, sT1, sT2, sCNT, sXO, sPA, sPB, sC, sFKV, sFO, sFM, sKXo, sMo, sOo, sL = range(48, 66)
sMASK = 66
T = f"s[{SRD_T}:{SRD_T+3}]"

vL16, vXS, vKS, vVS, vKM, vVM, vOS, vZ = range(8)
vA = 8
ACC, XR, TMP = 16, 64, 96
L_PEND = 65536

def join_init(a, t0, t1, val="1"):
    a(f"""v_mov_b32 v{t0}, {val}
    v_mov_b32 v{t1}, 8
    s_mov_b64 exec, 1
    global_atomic_add v{t1}, v{t0}, s[{S_DBG}:{S_DBG+1}]
    s_mov_b64 exec, -1""")

INIT_TARGET = 128

def wait_dbg(a, name, off, target, t0, t1, sC_, sT_, fail, mask=False):
    a(f"""s_mov_b32 s{sC_}, 0
    v_mov_b32 v{t0}, {off}""")
    a.label(name)
    a(f"""global_load_dword v{t1}, v{t0}, s[{S_DBG}:{S_DBG+1}] sc1
    s_add_u32 s{sC_}, s{sC_}, 1
    s_cmp_gt_u32 s{sC_}, {SPIN_MAX}
    s_cbranch_scc1 {fail}
    s_waitcnt vmcnt(0)
    v_readfirstlane_b32 s{sT_}, v{t1}""")
    if mask: a(f"s_and_b32 s{sT_}, s{sT_}, 0xffff")
    a(f"""s_cmp_ge_u32 s{sT_}, {target}
    s_cbranch_scc1 {name}_OK
    s_sleep 4
    s_branch {name}""")
    a.label(name + "_OK")

def stage_consts(a, vD, vTR, lane, t0, t1, t2, rowshift):
    a(f"""v_lshrrev_b32 v{t0}, 4, v{lane}
    v_lshlrev_b32 v{t1}, 2, v{t0}
    v_and_b32 v{t2}, 15, v{lane}
    v_xor_b32 v{t1}, v{t1}, v{t2}
    v_lshlrev_b32 v{t1}, 4, v{t1}
    s_lshl_b32 s{sT0}, s{sW}, 2
    v_add_u32 v{t2}, s{sT0}, v{t0}
    v_lshl_add_u32 v{vD}, v{t2}, {rowshift}, v{t1}
    v_bfe_u32 v{t1}, v{lane}, 2, 2
    v_and_b32 v{t2}, 1, v{t0}
    v_lshl_add_u32 v{t2}, v{t1}, 1, v{t2}
    v_lshlrev_b32 v{t2}, 5, v{t2}
    v_lshl_add_u32 v{t2}, v{t1}, 8, v{t2}
    v_and_b32 v{t1}, 3, v{lane}
    v_lshl_add_u32 v{t2}, v{t1}, 3, v{t2}
    v_lshrrev_b32 v{t0}, 1, v{t0}
    v_lshl_add_u32 v{vTR}, v{t0}, 11, v{t2}""")

def x_consts(a, lane, t0, t1):
    a(f"""s_and_b32 s{sT0}, s{sW}, 1
    s_lshl_b32 s{sT0}, s{sT0}, 3
    v_xor_b32 v{vXS}, s{sT0}, v{lane}
    v_lshlrev_b32 v{vXS}, 4, v{vXS}
    v_and_b32 v{t0}, 15, v{lane}
    v_lshrrev_b32 v{t1}, 5, v{lane}
    v_xor_b32 v{t0}, v{t0}, v{t1}
    v_lshlrev_b32 v{t0}, 4, v{t0}
    v_and_b32 v{t1}, 31, v{lane}
    v_lshl_add_u32 v{vA}, v{t1}, 10, v{t0}""")
    for v in range(1, 8): a(f"v_xor_b32 v{vA+v}, {32*v}, v{vA}")

def x_issue(a, sRow0, rowstride, sLds, tmp):
    for r in range(8):
        a(f"""v_xor_b32 v{tmp+(r&1)}, {16*r}, v{vXS}
        s_add_u32 m0, s{sLds}, {1024*r}
        s_add_u32 s{sT1}, s{sRow0}, {rowstride*r}
        buffer_load_dwordx4 v{tmp+(r&1)}, {T}, s{sT1} offen lds""")

def wf(mat, ks): return wr(128 + (mat * 32 + ks) * 4, 4)

def flag_store(a, name, sOff, sVal, t0):
    a(f"""s_cmp_lg_u32 s{sW}, 0
    s_cbranch_scc1 {name}
    v_mov_b32 v{t0}, s{sVal}
    s_mov_b64 exec, 1
    buffer_store_dword v{t0}, v{vZ}, {W}, s{sOff} offen sc1
    s_mov_b64 exec, -1""")
    a.label(name)

def phase_a(a, tag):
    q = LdsQ(a)
    a(f"""s_waitcnt vmcnt(0)
    s_barrier
    s_cmp_ge_u32 s{sN}, {64 // NG - 1}
    s_cbranch_scc1 QA_NOX_{tag}
    s_add_u32 s{sXO}, s{sXO}, {NG * 32 * 1024}
    s_xor_b32 s{sL}, s{sL}, 32768""")
    x_issue(a, sXO, 1024, sL, TMP)
    a.label(f"QA_NOX_{tag}")
    rd = lambda ks: f"ds_read_b128 {vr(XR + 4*(ks & 7), 4)}, v{vA + (ks & 7)} offset:{256 * (ks >> 3)}"
    tk = {}
    for ks in range(6): tk[ks] = q.op(rd(ks))
    for ks in range(32):
        q.wait(tk[ks])
        x = vr(XR + 4*(ks & 7), 4)
        for mat in range(3):
            acc = vr(ACC + 16*mat, 16)
            c = "0" if ks == 0 else acc
            if mat < 2: a(f"v_mfma_f32_32x32x16_bf16 {acc}, {wf(mat, ks)}, {x}, {c}")
            else: a(f"v_mfma_f32_32x32x16_bf16 {acc}, {x}, {wf(mat, ks)}, {c}")
            if mat == 0 and ks + 6 < 32: tk[ks + 6] = q.op(rd(ks + 6))
    for v in range(8): a(f"v_xor_b32 v{vA+v}, 0x8000, v{vA+v}")
    a(f"v_add_u32 v{XR}, s{sPA}, v{vL16}")
    ORD = (0, 1, 4, 5, 2, 3, 6, 7)
    for mat in range(3):
        for i in range(8):
            d = ORD[i] if mat == 2 else i
            a(f"v_cvt_pk_bf16_f32 v{TMP + 8*mat + i}, v{ACC + 16*mat + 2*d}, v{ACC + 16*mat + 2*d + 1}")
        for h in range(2):
            if mat == 1: a(f"buffer_store_dwordx4 {vr(TMP+8+4*h,4)}, v{vKS}, {W}, s{sKXo} offen offset:{512*h} sc1")
            if mat == 2: a(f"buffer_store_dwordx4 {vr(TMP+16+4*h,4)}, v{vVS}, {W}, s{sKXo} offen offset:{512*h} sc1")
            a(f"ds_write_b128 v{XR}, {vr(TMP+8*mat+4*h,4)} offset:{8192*mat + 1024*h}")
    a(f"""s_add_u32 s{sKXo}, s{sKXo}, {NG * 256 * KB}
    s_add_u32 s{sPA}, s{sPA}, 24576
    s_cmp_ge_u32 s{sPA}, {L_PEND + 3 * 24576}
    s_cbranch_scc0 QA_PA_{tag}
    s_sub_u32 s{sPA}, s{sPA}, {3 * 24576}""")
    a.label(f"QA_PA_{tag}")
    a(f"""s_add_u32 s{sN}, s{sN}, 1
    s_waitcnt vmcnt(0) lgkmcnt(0)
    s_barrier""")
    flag_store(a, f"QA_FA_{tag}", sFKV, sN, TMP)

def phase_b(a, tag):
    SX, SM, O = ACC, ACC + 16, ACC + 32
    q = LdsQ(a)
    a(f"""s_lshl_b32 s{sT0}, s{sW}, 11
    s_sub_u32 s{sT0}, s{sPB}, s{sT0}
    v_add_u32 v{O}, s{sT0}, v{vL16}
    v_add_u32 v{O+1}, s{sPB}, v{vL16}""")
    QF, KF = XR, TMP
    tk = []
    for k in range(8):
        q.op(f"ds_read_b128 {vr(QF+4*k,4)}, v{O} offset:{1024*k}")
        tk.append(q.op(f"ds_read_b128 {vr(KF+4*k,4)}, v{O} offset:{8192 + 1024*k}"))
        if k == 5:
            for kk in range(3):
                q.wait(tk[kk])
                a(f"v_mfma_f32_32x32x16_bf16 {vr(SX,16)}, {vr(KF+4*kk,4)}, {vr(QF+4*kk,4)}, {'0' if kk == 0 else vr(SX,16)}")
    for kk in range(3, 8):
        q.wait(tk[kk])
        a(f"v_mfma_f32_32x32x16_bf16 {vr(SX,16)}, {vr(KF+4*kk,4)}, {vr(QF+4*kk,4)}, {vr(SX,16)}")
    a(f"""s_mul_i32 s{sT1}, s{sT2}, {NG}
    s_add_u32 s{sT1}, s{sT1}, s{sJ}
    s_cmp_lg_u32 s{sW}, 0
    s_cbranch_scc1 QA_W2_{tag}
    s_mov_b32 s{sCNT}, 0""")
    a.label(f"QA_W1_{tag}")
    a(f"""buffer_load_dword v{O+2}, v{vZ}, {W}, s{sFM} offen sc1
    s_add_u32 s{sCNT}, s{sCNT}, 1
    s_cmp_gt_u32 s{sCNT}, {SPIN_MAX}
    s_cbranch_scc1 EXIT
    s_waitcnt vmcnt(0)
    v_readfirstlane_b32 s{sT0}, v{O+2}
    s_cmp_gt_i32 s{sT0}, s{sT1}
    s_cbranch_scc1 QA_W2_{tag}
    s_sleep 2
    s_branch QA_W1_{tag}""")
    a.label(f"QA_W2_{tag}")
    a("s_barrier")
    for k in range(8):
        a(f"buffer_load_dwordx4 {vr(KF+4*k,4)}, v{vKM}, {W}, s{sMo} offen offset:{512*k} sc1")
    VM = O + 4
    a(f"""buffer_load_dword v{VM}, v{vVM}, {W}, s{sMo} offen sc1
    buffer_load_dword v{VM+1}, v{vVM}, {W}, s{sMo} offen offset:256 sc1
    v_mov_b32 v{O+2}, 0xff800000""")
    for r in range(16): a(f"v_cndmask_b32 v{SX+r}, v{O+2}, v{SX+r}, s[{sMASK+2*r}:{sMASK+2*r+1}]")
    m_, t_, l_ = O + 8, O + 9, O + 10
    a(f"v_max3_f32 v{m_}, v{SX}, v{SX+1}, v{SX+2}")
    for i in range(3, 15, 2): a(f"v_max3_f32 v{m_}, v{m_}, v{SX+i}, v{SX+i+1}")
    a(f"v_max_f32 v{m_}, v{m_}, v{SX+15}")
    for k in range(8):
        a(f"s_waitcnt vmcnt({9-k})")
        a(f"v_mfma_f32_32x32x16_bf16 {vr(SM,16)}, {vr(KF+4*k,4)}, {vr(QF+4*k,4)}, {'0' if k == 0 else vr(SM,16)}")
    VF = XR
    q.op(f"ds_read_b128 {vr(VF,4)}, v{O+1} offset:16384")
    tv = q.op(f"ds_read_b128 {vr(VF+4,4)}, v{O+1} offset:17408")
    a(f"""v_max3_f32 v{m_}, v{m_}, v{SM}, v{SM+1}
    v_max3_f32 v{m_}, v{m_}, v{SM+2}, v{SM+3}
    v_mov_b32 v{t_}, v{m_}
    v_permlane32_swap_b32 v{m_}, v{t_}
    v_max_f32 v{m_}, v{m_}, v{t_}
    v_mul_f32 v{m_}, s{sC}, v{m_}""")
    for r in range(20): a(f"v_fma_f32 v{SX+r}, v{SX+r}, s{sC}, -v{m_}")
    for r in range(20): a(f"v_exp_f32 v{SX+r}, v{SX+r}")
    P = TMP
    ORD = (0, 1, 4, 5, 2, 3, 6, 7)
    for i in range(8): a(f"v_cvt_pk_bf16_f32 v{P+i}, v{SX+2*ORD[i]}, v{SX+2*ORD[i]+1}")
    a(f"""v_cvt_pk_bf16_f32 v{P+8}, v{SM}, v{SM+1}
    v_cvt_pk_bf16_f32 v{P+9}, v{SM+2}, v{SM+3}
    v_mov_b64 {vr(P+10,2)}, 0
    s_waitcnt vmcnt(0)
    v_mov_b64 {vr(VF+8,2)}, {vr(VM,2)}
    v_mov_b64 {vr(VF+10,2)}, 0""")
    L = SM + 4
    a(f"v_add_f32 v{L}, v{SX}, v{SX+1}")
    for r in range(2, 20): a(f"v_add_f32 v{L}, v{L}, v{SX+r}")
    q.wait(tv)
    for k in range(3):
        a(f"v_mfma_f32_32x32x16_bf16 {vr(O,16)}, {vr(VF+4*k,4)}, {vr(P+4*k,4)}, {'0' if k == 0 else vr(O,16)}")
    a(f"""v_mov_b32 v{L+1}, v{L}
    v_permlane32_swap_b32 v{L}, v{L+1}
    v_add_f32 v{L}, v{L}, v{L+1}
    v_rcp_f32 v{L}, v{L}""")
    for r in range(16): a(f"v_mul_f32 v{O+r}, v{O+r}, v{L}")
    for i in range(8): a(f"v_cvt_pk_bf16_f32 v{SX+i}, v{O+2*i}, v{O+2*i+1}")
    a(f"""buffer_store_dwordx4 {vr(SX,4)}, v{vOS}, {W}, s{sOo} offen sc1
    buffer_store_dwordx4 {vr(SX+4,4)}, v{vOS}, {W}, s{sOo} offen offset:512 sc1
    s_add_u32 s{sOo}, s{sOo}, {NG * 256 * KB}
    s_add_u32 s{sMo}, s{sMo}, {NG * 128 * KB}
    s_add_u32 s{sPB}, s{sPB}, 24576
    s_cmp_ge_u32 s{sPB}, {L_PEND + 3 * 24576}
    s_cbranch_scc0 QA_PB_{tag}
    s_sub_u32 s{sPB}, s{sPB}, {3 * 24576}""")
    a.label(f"QA_PB_{tag}")
    a(f"""s_add_u32 s{sT2}, s{sT2}, 1
    s_waitcnt vmcnt(0)
    s_barrier""")
    flag_store(a, f"QA_FB_{tag}", sFO, sT2, TMP)

def qa_role(a):
    a.label("QA")
    lane, vD, vTR, t0, t1, t2, vTA = 16, 17, 18, 19, 20, 21, 22
    a(f"""s_sub_u32 s{sT0}, s{sROLE}, 32
    s_lshr_b32 s{sH}, s{sT0}, 2
    s_and_b32 s{sJ}, s{sT0}, 3
    v_and_b32 v{lane}, 63, v0
    v_mov_b32 v{vZ}, 0
    s_lshl_b32 s{sFM}, s{sH}, 7
    s_lshl_b32 s{sT0}, s{sJ}, 2
    s_add_u32 s{sFKV}, s{sFM}, s{sT0}
    s_add_u32 s{sFKV}, s{sFKV}, {WS_FLAGS + F_KV}
    s_add_u32 s{sFM}, s{sFM}, {WS_FLAGS + F_M}
    s_lshl_b32 s{sFO}, s{sJ}, 7
    s_lshl_b32 s{sT0}, s{sH}, 2
    s_add_u32 s{sFO}, s{sFO}, s{sT0}
    s_add_u32 s{sFO}, s{sFO}, {WS_FLAGS + F_O}
    """)
    stage_consts(a, vD, vTR, lane, t0, t1, t2, 13)
    a(f"""s_lshl_b32 s{sT0}, s{sH}, 8
    v_add_u32 v{vD}, s{sT0}, v{vD}
    s_lshl_b32 s{sT0}, s{sW}, 6
    v_xor_b32 v{vTR}, s{sT0}, v{vTR}
    v_add_u32 v{vTA}, 0x10000, v{vTR}
    s_lshl_b32 s{sT2}, s{sW}, 10""")
    order = [1, 2, 0]
    ptrs = [S_WQ, S_WK, S_WV]
    def issue(c):
        set_srd(a, SRD_T, ptrs[order[c >> 1]], 4 * MB)
        for i in range(16):
            a(f"""s_add_u32 m0, s{sT2}, {(c & 1) * 65536 + i * 4096}
            s_mov_b32 s{sT0}, {(256 * (c & 1) + 16 * i) * 8192}
            buffer_load_dwordx4 v{vD}, {T}, s{sT0} offen lds""")
    issue(0); issue(1)
    x_consts(a, lane, t0, t1)
    a(f"""v_lshlrev_b32 v{vL16}, 4, v{lane}
    v_and_b32 v{t0}, 15, v{lane}
    v_lshrrev_b32 v{t1}, 5, v{lane}
    v_lshlrev_b32 v{t0}, 4, v{t0}
    v_lshl_add_u32 v{t0}, v{t1}, 8, v{t0}
    v_bfe_u32 v{t2}, v{lane}, 4, 1
    v_lshl_add_u32 v{vKS}, v{t2}, 12, v{t0}
    v_add_u32 v{vKS}, s{sT2}, v{vKS}
    v_lshl_add_u32 v{vVS}, v{t2}, 10, v{t0}
    s_lshl_b32 s{sT0}, s{sW}, 11
    s_add_u32 s{sPA}, s{sT0}, {L_PEND}
    s_mov_b32 s{sPB}, s{sPA}
    s_add_u32 s{sT0}, s{sT0}, {WS_VX - WS_KX}
    v_add_u32 v{vVS}, s{sT0}, v{vVS}
    """)
    a(f"""v_bfe_u32 v{t0}, v{lane}, 1, 2
    v_lshlrev_b32 v{t0}, 6, v{t0}
    v_lshl_add_u32 v{t0}, v{t1}, 8, v{t0}
    v_and_b32 v{vVM}, 1, v{lane}
    v_lshlrev_b32 v{vVM}, 4, v{vVM}
    v_add3_u32 v{vKM}, v{t0}, v{vVM}, 32
    v_lshl_add_u32 v{vVM}, v{t2}, 2, v{vVM}
    v_bfe_u32 v{t0}, v{lane}, 1, 1
    v_lshl_add_u32 v{vVM}, v{t0}, 3, v{vVM}
    v_bfe_u32 v{t0}, v{lane}, 2, 2
    v_lshl_add_u32 v{vVM}, v{t0}, 6, v{vVM}
    v_lshl_add_u32 v{vVM}, v{t1}, 9, v{vVM}
    v_add_u32 v{vVM}, s{sT2}, v{vVM}
    v_and_b32 v{t0}, 7, v{lane}
    v_lshlrev_b32 v{t0}, 4, v{t0}
    v_lshl_add_u32 v{t0}, v{t1}, 8, v{t0}
    v_bfe_u32 v{vOS}, v{lane}, 3, 2
    v_lshl_add_u32 v{vOS}, v{vOS}, 16, v{t0}
    s_lshr_b32 s{sT0}, s{sW}, 1
    s_lshl_b32 s{sT0}, s{sT0}, 10
    s_and_b32 s{sT1}, s{sW}, 1
    s_lshl_b32 s{sT1}, s{sT1}, 7
    s_add_u32 s{sT0}, s{sT0}, s{sT1}
    v_add_u32 v{vOS}, s{sT0}, v{vOS}
    v_and_b32 v{t0}, 31, v{lane}
    v_lshlrev_b32 v{t1}, 2, v{t1}
    v_sub_u32 v{t0}, v{t0}, v{t1}""")
    for r in range(16): a(f"v_cmp_le_i32 s[{sMASK+2*r}:{sMASK+2*r+1}], {8*(r>>2) + (r&3)}, v{t0}")
    a(f"""s_lshl_b32 s{sT0}, s{sJ}, 5
    s_add_u32 s{sT0}, s{sT0}, s{sH}
    s_lshl_b32 s{sKXo}, s{sT0}, 13
    s_add_u32 s{sKXo}, s{sKXo}, {WS_KX}
    s_lshl_b32 s{sMo}, s{sT0}, 12
    s_add_u32 s{sMo}, s{sMo}, {WS_KM}
    s_lshl_b32 s{sOo}, s{sJ}, 18
    s_lshl_b32 s{sT0}, s{sH}, 11
    s_add_u32 s{sOo}, s{sOo}, s{sT0}
    s_add_u32 s{sOo}, s{sOo}, {WS_O}
    s_mov_b32 s{sC}, 0x3e0293ee
    s_lshl_b32 s{sL}, s{sW}, 13
    s_lshl_b32 s{sXO}, s{sJ}, 15
    s_add_u32 s{sXO}, s{sXO}, s{sL}
    s_mov_b32 s{sN}, 0""")
    for c in range(6):
        a(f"s_waitcnt vmcnt({16 if c < 5 else 8})")
        a("s_barrier")
        mat = order[c >> 1]
        for i in range(16):
            d = 128 + (mat * 32 + 16 * (c & 1) + i) * 4
            for m in range(2):
                a(f"ds_read_b64_tr_b16 {wr(d + 2*m, 2)}, v{vTA if c & 1 else vTR} offset:{i*4096 + m*1024}")
        a("s_waitcnt lgkmcnt(0)")
        a("s_barrier")
        if c + 2 < 6: issue(c + 2)
        if c == 4:
            set_srd(a, SRD_T, S_BX, 2 * MB)
            x_issue(a, sXO, 1024, sL, t0)
    rt(a, 2)
    wait_dbg(a, "QA_INIT", 8, INIT_TARGET, t0, t1, sCNT, sT0, "EXIT", mask=True)
    rt(a, 3)
    a(f"s_mov_b32 s{sT2}, 0")
    a.label("QA_LOOP")
    a(f"""s_cmp_ge_u32 s{sN}, {64 // NG}
    s_cbranch_scc1 QA_B""")
    phase_a(a, "l")
    if RT["on"]:
        a(f"s_cmp_lg_u32 s{sN}, 1\ns_cbranch_scc1 QA_RT")
        rt(a, 4)
        a.label("QA_RT")
    a(f"""s_cmp_lt_u32 s{sN}, 3
    s_cbranch_scc1 QA_LOOP""")
    a.label("QA_B")
    phase_b(a, "l")
    a(f"""s_cmp_lt_u32 s{sT2}, {64 // NG}
    s_cbranch_scc1 QA_LOOP""")
    rt(a, 7)
    a("""s_waitcnt vmcnt(0)
    s_endpgm""")
```

```python
import sys
from asmlib import *
from layout import *
import chain
from chain import *
import qa, op, pa

KNAME = "concat_heads__spectral_gfnet__memory_aug_recurrent_mem_tr__prompt_kernel"

def prologue(a):
    a(f"""
    s_cmp_ge_u32 s2, 256
    s_cbranch_scc1 EXIT
    s_load_dwordx16 s[8:23], s[0:1], 0
    s_load_dwordx8 s[24:31], s[0:1], 64
    s_load_dwordx2 s[32:33], s[0:1], 96
    v_lshrrev_b32 v1, 6, v0
    s_getreg_b32 s{sXCC}, hwreg(HW_REG_XCC_ID, 0, 4)
    v_readfirstlane_b32 s{sW}, v1
    s_waitcnt lgkmcnt(0)
    """)
    set_srd(a, SRD_WS, S_WS, WS_END)
    if os.environ.get("FAKEX"):
        a(f"""s_mul_hi_u32 s48, s2, {(1 << 32) // 11 + 1}
        s_mul_i32 s48, s48, 11
        s_sub_u32 s{sXCC}, s2, s48""")
    a(f"""
    v_mov_b32 v2, 163836
    s_cmp_lg_u32 s{sW}, 0
    s_cbranch_scc1 ROLE_WAIT
    s_mov_b64 exec, 1
    v_mov_b32 v3, 1
    s_min_u32 s48, s{sXCC}, 8
    s_lshl_b32 s49, s48, 2
    s_add_u32 s49, s49, {D_TICK}
    v_mov_b32 v4, s49
    global_atomic_add v6, v4, v3, s[{S_DBG}:{S_DBG+1}] sc0
    s_lshl_b32 s{sROLE}, s48, 5
    s_waitcnt vmcnt(0)
    v_readfirstlane_b32 s49, v6
    s_add_u32 s{sROLE}, s{sROLE}, s49
    s_cmp_lt_u32 s49, 32
    s_cselect_b32 s49, s48, 8
    s_cmp_lt_u32 s49, 8
    s_cbranch_scc1 ROLE_SET
    v_mov_b32 v4, {D_OVF}
    global_atomic_add v6, v4, v3, s[{S_DBG}:{S_DBG+1}] sc0
    s_waitcnt vmcnt(0)
    v_readfirstlane_b32 s50, v6
    s_mov_b64 exec, -1
    """)
    all_arrived(a, "ROLE_ALL", 4, 6, 51, 52, "ROLE_NONE")
    a("s_mov_b32 s53, 0")
    a.label("ROLE_SCAN")
    a(f"""v_readlane_b32 s48, v6, s53
    s_min_u32 s48, s48, 32
    s_sub_u32 s49, 32, s48
    s_lshl_b32 s{sROLE}, s53, 5
    s_add_u32 s{sROLE}, s{sROLE}, s48
    s_add_u32 s{sROLE}, s{sROLE}, s50
    s_cmp_lt_u32 s50, s49
    s_cbranch_scc1 ROLE_SET
    s_sub_u32 s50, s50, s49
    s_add_u32 s53, s53, 1
    s_cmp_lt_u32 s53, 8
    s_cbranch_scc1 ROLE_SCAN
    """)
    a.label("ROLE_NONE")
    a(f"s_mov_b32 s{sROLE}, 256")
    a.label("ROLE_SET")
    a(f"""
    v_mov_b32 v3, s{sROLE}
    ds_write_b32 v2, v3
    s_waitcnt lgkmcnt(0)
    s_mov_b64 exec, -1
    """)
    a.label("ROLE_WAIT")
    a(f"""
    s_barrier
    ds_read_b32 v3, v2
    s_waitcnt lgkmcnt(0)
    v_readfirstlane_b32 s{sROLE}, v3
    s_barrier
    """)

def build(prof=False, roles=("chain",)):
    a = Asm()
    RT["on"] = bool(prof)
    if prof: a("s_memrealtime s[4:5]")
    prologue(a)
    if prof:
        a(f"""v_mov_b32 v10, s4
        s_lshl_b32 s2, s{sROLE}, 6
        s_add_u32 s2, s2, {WS_PROF + 640*KB}
        v_mov_b32 v11, 0
        buffer_store_dword v10, v11, {W}, s2 offen""")
        rt(a, 1)
    a(f"""s_cmp_ge_u32 s{sROLE}, 160
    s_cbranch_scc1 REST
    s_cmp_ge_u32 s{sROLE}, 32
    s_cbranch_scc1 QA
    s_mov_b32 s{sH}, s{sROLE}
    """)
    chain_role(a, prof)
    qa.qa_role(a)
    a.label("REST")
    a(f"""s_cmp_ge_u32 s{sROLE}, 224
    s_cbranch_scc1 INIT""")
    pa.pa_role(a, 160)
    op.op_role(a, 160)
    init_role(a)
    a.label("EXIT")
    a("s_endpgm")
    body = render(fix_hazards(a.lines, verbose=True))
    hdr = open("concat_heads__spectral_gfnet__memory_aug_recurrent_mem_tr__prompt.s.ref").read().split("\n")
    head = [l for l in hdr if l.startswith(";") and "@launch" not in l][:15]
    txt = "\n".join(head) + "\n; @launch grid=(256,1,1) block=(256,1,1) lds=163840\n"
    txt += f""".amdgcn_target "amdgcn-amd-amdhsa--gfx950"
.text
.globl {KNAME}
.p2align 8
.type {KNAME},@function
{KNAME}:
""" + body + f""".section .rodata,"a"
.p2align 6
.amdhsa_kernel {KNAME}
  .amdhsa_next_free_vgpr 512
  .amdhsa_next_free_sgpr 102
  .amdhsa_accum_offset 256
  .amdhsa_group_segment_fixed_size 0
  .amdhsa_kernarg_size 104
  .amdhsa_user_sgpr_count 2
  .amdhsa_user_sgpr_kernarg_segment_ptr 1
  .amdhsa_system_sgpr_workgroup_id_x 1
.end_amdhsa_kernel
"""
    return txt

if __name__ == "__main__":
    out = sys.argv[1]
    prof = True if "prof" in sys.argv[2:] else ("rt" if "rt" in sys.argv[2:] else False)
    open(out, "w").write(build(prof=prof))
```

```python
from asmlib import *
from layout import *
import os

S_AX, S_WR, S_WI, S_BX, S_MEM0, S_WQ, S_WK, S_WV, S_WO, S_SEG, S_OUT, S_DBG, S_WS = 8,10,12,14,16,18,20,22,24,26,28,30,32
SRD_WS = 36
SRD_T  = 40
sW, sROLE, sXCC = 44, 45, 46
sLKX = 47
sC2, sONE2 = 48, 50
sH, sS, sT0, sT1, sT2, sCNT, sINB_R, sINB_R2, sKXO, sFREE0, sMR, sKX, sVX, sKM, sTAG, sPOM, sPROF, sPF = range(52, 70)
sXM = 90
sINW = 98
sMODE = 35
sHW, sHR, sFM, sRDY = 4, 5, 6, 7
sKVA = 0
sKV = 8

SPIN_MAX = 1 << 16
CFG = {k: int(os.environ.get(k.upper(), v)) for k, v in dict(d1=64, d2=0, adv=1, advp=1, dep=3, gap=64, pub=1, pad=256, bar=8, light=0, only=6, at=-1, e1=0, e2=0, e3=1, e4=1, hm=0, pg=32, pd=4, hr=8, hb=4, p0=128, np=0, ps=32, pf=4, hd=128, fast=1, gate=1).items()}
INB_STRIDE = 8192 + CFG["pad"]

L_WL = 0
L_MB = 131072
L_OX = L_MB
L_KXB = L_MB + 8192
L_X = L_KXB + 16384
XP = 1088
L_SEL = L_X + 4 * XP
L_JUNK = L_SEL + 1024

vLB, vG, vWL1, vG2, vXW, vXR, vOW, vIDX, vPS, vMS, vHR, vT = range(12)
PM = 12
aQK, aV, X, VX, MA, RING = 16, 32, 40, 56, 64, 96

QKSEQ = [(m, T, kk) for kk in range(2) for (m, T) in ((0, 0), (1, 0), (0, 1), (1, 1), (2, 0), (2, 1))] + \
        [(m, T, kk) for kk in range(2, 8) for (m, T) in ((0, 0), (1, 0), (0, 1))] + [(1, 1, kk) for kk in range(2, 8)]
VSEQ = [(2, T, kk) for kk in range(2, 8) for T in range(2)]
OSEQ = [(3, p, 0) for p in range(4)] + [(3, p, kk) for p in range(4) for kk in range(1, 4)]
RB0 = 23
def wfrag_map():
    m = {}
    for i in range(4):
        m[QKSEQ[i]] = ("lds", i, i)
        m[QKSEQ[RB0 + i]] = ("lds", 4 + i, i)
        m[VSEQ[2 + i]] = ("lds", 8 + i, i)
        m[OSEQ[12 + i]] = ("lds", 12 + i, i)
    nxt = 128
    for k in QKSEQ + VSEQ + OSEQ:
        if k not in m:
            m[k] = ("reg", nxt); nxt += 8
    assert nxt == 512
    return m
WF = wfrag_map()
def wop(key):
    e = WF[key]
    return wr(e[1], 8) if e[0] == "reg" else vr(RING + 8 * e[2], 8)

class LdsQ:
    def __init__(self, a): self.a = a; self.n = 0
    def op(self, text):
        self.a(text); self.n += 1; return self.n
    def wait(self, tok):
        k = self.n - tok
        self.a(f"s_waitcnt lgkmcnt({min(k, 15)})")

def ring_load(rnd):
    L = []
    for slot in range(4):
        f = 4 * rnd + slot
        base, off = (vG, f * 8192) if f < 8 else (vWL1, (f - 8) * 8192)
        for hh in range(2):
            L.append(f"ds_read_b128 {vr(RING + 8*slot + 4*hh, 4)}, v{base} offset:{off + 1024*hh}")
    return L

def set_srd(a, srd, sptr, nbytes):
    a(f"""s_mov_b32 s{srd}, s{sptr}
    s_mov_b32 s{srd+1}, s{sptr+1}
    s_mov_b32 s{srd+2}, {nbytes}
    s_mov_b32 s{srd+3}, 0x20000""")

W = f"s[{SRD_WS}:{SRD_WS+3}]"

RT = {"on": False}
def rt(a, k, vt=126):
    if not RT["on"]: return
    lab = a.uid("RT")
    if os.environ.get("RTDBG"):
        MAP = {(0,1):5, (0,2):6, (0,4):7, (0,7):8, (32,4):9, (32,7):10, (160,2):11, (160,3):12, (160,4):13, (160,5):14, (160,7):15}
        a(f"s_cmp_lg_u32 s{sW}, 0\ns_cbranch_scc1 {lab}\ns_mov_b32 s3, 0")
        for (r, kk), wd in MAP.items():
            if kk == k: a(f"s_cmp_eq_u32 s{sROLE}, {r}\ns_cselect_b32 s3, {4*wd}, s3")
        a(f"""s_cmp_eq_u32 s3, 0
        s_cbranch_scc1 {lab}
        v_mov_b32 v{vt+1}, s3
        s_memrealtime s[2:3]
        s_waitcnt lgkmcnt(0)
        s_and_b32 s2, s2, 0xffffff
        v_mov_b32 v{vt}, s2
        global_store_dword v{vt+1}, v{vt}, s[{S_DBG}:{S_DBG+1}]
        s_waitcnt vmcnt(0)""")
        a.label(lab)
        return
    a(f"""s_cmp_lg_u32 s{sW}, 0
    s_cbranch_scc1 {lab}
    s_memrealtime s[2:3]
    s_waitcnt lgkmcnt(0)
    v_mov_b32 v{vt}, s2
    s_lshl_b32 s2, s{sROLE}, 6
    s_add_u32 s2, s2, {WS_PROF + 640*KB + 4*k}
    v_mov_b32 v{vt+1}, 0
    buffer_store_dword v{vt}, v{vt+1}, {W}, s2 offen
    s_waitcnt vmcnt(0)""")
    a.label(lab)

def delay(a, cyc):
    n = cyc // 4
    while n > 0:
        k = min(n, 16); a(f"s_nop {k-1}"); n -= k

def all_arrived(a, name, va, vd, sC, sT, fail, early=None):
    a(f"""v_mbcnt_lo_u32_b32 v{va}, -1, 0
    v_and_b32 v{va}, 15, v{va}
    v_lshlrev_b32 v{va}, 2, v{va}
    s_mov_b32 s{sC}, 0""")
    a.label(name)
    a(f"""global_load_dword v{vd}, v{va}, s[{S_DBG}:{S_DBG+1}] offset:{D_TICK} sc1
    s_add_u32 s{sC}, s{sC}, 1
    s_cmp_gt_u32 s{sC}, {SPIN_MAX}
    s_cbranch_scc1 {fail}
    s_waitcnt vmcnt(0)
    v_readlane_b32 s{sT}, v{vd}, 0""")
    if early: a(f"s_cmp_ge_u32 s{sT}, 32\ns_cbranch_scc1 {early}")
    for i in range(1, 9): a(f"v_readlane_b32 vcc_lo, v{vd}, {i}\ns_add_u32 s{sT}, s{sT}, vcc_lo")
    a(f"""s_cmp_lt_u32 s{sT}, 256
    s_cbranch_scc1 {name}""")

def init_role(a):
    a.label("INIT")
    a(f"""s_cmp_ge_u32 s{sROLE}, 256
    s_cbranch_scc1 EXIT
    s_sub_u32 s48, s{sROLE}, 224
    v_lshlrev_b32 v1, 4, v0
    v_mov_b64 v[4:5], -1
    v_mov_b64 v[6:7], -1
    s_mul_i32 s49, s48, {INB_STRIDE}
    s_add_u32 s49, s49, {WS_INBOX}
    buffer_store_dwordx4 v[4:7], v1, {W}, s49 offen sc1
    s_add_u32 s49, s49, 4096
    buffer_store_dwordx4 v[4:7], v1, {W}, s49 offen sc1
    v_lshlrev_b32 v2, 2, v0
    s_lshl_b32 s49, s48, 10
    s_add_u32 s50, s49, {WS_MBUF}
    buffer_store_dword v4, v2, {W}, s50 offen sc1
    s_add_u32 s50, s49, {WS_HINT}
    buffer_store_dword v4, v2, {W}, s50 offen sc1
    v_mov_b32 v3, 0
    s_add_u32 s50, s49, {WS_FLAGS}
    buffer_store_dword v3, v2, {W}, s50 offen sc1
    s_waitcnt vmcnt(0)
    v_mov_b32 v4, 1
    v_mov_b32 v5, {D_INIT}
    s_mov_b64 exec, 1
    global_atomic_add v5, v4, s[{S_DBG}:{S_DBG+1}]
    s_mov_b64 exec, -1
    s_cmp_eq_u32 s{sROLE}, 224
    s_cbranch_scc1 PA""")

def chain_startup(a):
    t0, t1, t2, t3, t4, t5, t6, t7 = 16, 17, 18, 19, 20, 21, 22, 23
    vLane, vDQ, vDO, vTR, vTA, vM0, vTO = 24, 25, 26, 27, 28, 30, 31
    a(f"""
    v_and_b32 v{vLane}, 63, v0
    v_lshlrev_b32 v{vLB}, 4, v{vLane}
    s_lshl_b32 s{sT0}, s{sW}, 11
    v_add_u32 v{vG}, s{sT0}, v{vLB}
    v_add_u32 v{vLB}, {L_MB}, v{vLB}
    v_add_u32 v{vWL1}, 0x10000, v{vG}
    v_add_u32 v{vG2}, {L_MB}, v{vG}
    """)
    a(f"""
    s_mul_i32 s{sINB_R}, s{sH}, {INB_STRIDE}
    s_add_u32 s{sINB_R}, s{sINB_R}, {WS_INBOX}
    s_add_u32 s{sINB_R2}, s{sINB_R}, 4096
    s_lshl_b32 s{sHW}, s{sH}, 2
    s_add_u32 s{sHW}, s{sHW}, {WS_HINT}
    s_and_b32 s{sHR}, s{sH}, 7
    s_lshl_b32 s{sHR}, s{sHR}, 7
    s_add_u32 s{sHR}, s{sHR}, {WS_HINT}
    s_lshl_b32 s{sFM}, s{sH}, 7
    s_add_u32 s{sKVA}, s{S_WS}, s{sFM}
    s_addc_u32 s{sKVA+1}, s{S_WS+1}, 0
    s_add_u32 s{sFM}, s{sFM}, {WS_FLAGS + F_M}
    s_mov_b32 s{sRDY}, 0""")
    a(f"""
    v_lshrrev_b32 v{t0}, 4, v{vLane}
    s_and_b32 s{sT0}, s{sW}, 1
    s_lshl_b32 s{sT1}, s{sT0}, 2
    v_add_u32 v{t1}, s{sT1}, v{t0}
    v_lshlrev_b32 v{t1}, 1, v{t1}
    v_and_b32 v{t2}, 15, v{vLane}
    v_xor_b32 v{t1}, v{t1}, v{t2}
    v_lshlrev_b32 v{t1}, 4, v{t1}
    v_lshrrev_b32 v{t2}, 1, v{t0}
    v_and_b32 v{t3}, 1, v{t0}
    v_lshl_add_u32 v{vDQ}, v{t2}, 4, v{t3}
    s_lshl_b32 s{sT1}, s{sW}, 2
    v_add_u32 v{vDQ}, s{sT1}, v{vDQ}
    v_lshl_add_u32 v{vDQ}, v{vDQ}, 13, v{t1}
    s_lshl_b32 s{sT1}, s{sH}, 8
    v_add_u32 v{vDQ}, s{sT1}, v{vDQ}
    v_lshl_add_u32 v{t2}, v{t2}, 5, v{t3}
    s_lshl_b32 s{sT0}, s{sT0}, 4
    s_lshr_b32 s{sT1}, s{sW}, 1
    s_lshl_b32 s{sT1}, s{sT1}, 2
    s_add_u32 s{sT0}, s{sT0}, s{sT1}
    v_add_u32 v{t2}, s{sT0}, v{t2}
    v_and_b32 v{t3}, 128, v{t1}
    v_add_u32 v{t1}, v{t1}, v{t3}
    v_lshl_add_u32 v{vDO}, v{t2}, 10, v{t1}
    s_lshl_b32 s{sT1}, s{sH}, 17
    v_add_u32 v{vDO}, s{sT1}, v{vDO}
    """)
    a(f"""
    v_lshrrev_b32 v{t0}, 4, v{vLane}
    v_bfe_u32 v{t1}, v{vLane}, 2, 2
    v_and_b32 v{t2}, 3, v{vLane}
    v_and_b32 v{t3}, 1, v{t0}
    v_lshl_add_u32 v{t3}, v{t3}, 2, v{t1}
    v_lshlrev_b32 v{t3}, 5, v{t3}
    v_lshl_add_u32 v{t3}, v{t2}, 3, v{t3}
    v_lshl_add_u32 v{t3}, v{t1}, 8, v{t3}
    v_lshl_add_u32 v{vTR}, v{t0}, 10, v{t3}
    v_and_b32 v{t4}, 1, v{t1}
    v_lshrrev_b32 v{t5}, 1, v{t1}
    v_xor_b32 v{t5}, v{t5}, v{t4}
    v_and_b32 v{t3}, 1, v{t0}
    v_lshl_add_u32 v{t5}, v{t3}, 2, v{t5}
    v_lshlrev_b32 v{t5}, 5, v{t5}
    v_lshl_add_u32 v{t5}, v{t2}, 3, v{t5}
    v_lshl_add_u32 v{t5}, v{t4}, 8, v{t5}
    v_lshl_add_u32 v{vTO}, v{t0}, 10, v{t5}
    s_lshl_b32 s{sT2}, s{sW}, 10
    """)
    ptrs = [S_WQ, S_WK, S_WV, S_WO]
    def issue(c):
        mat, half = c >> 1, c & 1
        set_srd(a, SRD_T, ptrs[mat], 4 * MB)
        for tl in range(4):
            for m in range(4):
                if mat < 3:
                    so = (64 * (2 * tl + half) + 32 * (m >> 1) + 2 * (m & 1)) * 8192
                    v = vDQ
                else:
                    so = (64 * (tl & 1) + 8 * (m >> 1) + 2 * (m & 1)) * 1024 + (tl >> 1) * 512 + half * 128
                    v = vDO
                a(f"""s_add_u32 m0, s{sT2}, {(c & 1) * 65536 + (tl * 4 + m) * 4096}
                s_mov_b32 s{sT0}, {so}
                buffer_load_dwordx4 v{v}, s[{SRD_T}:{SRD_T+3}], s{sT0} offen lds""")
    def hold(f): return 32 + 8 * (f if f < 12 else f - 12)
    def dest(key):
        e = WF[key]
        return e[1] if e[0] == "reg" else hold(e[1])
    def consume(c):
        mat, half = c >> 1, c & 1
        n = 0
        if mat < 3:
            for T in range(2):
                for lo in range(4):
                    va = vTA + (n & 1); n += 1
                    a(f"""s_lshl_b32 s{sT0}, s{sW}, 6
                    s_add_u32 s{sT0}, s{sT0}, {32 * T}
                    s_xor_b32 s{sT1}, s{sW}, {lo}
                    s_lshl_b32 s{sT1}, s{sT1}, 14
                    s_add_u32 s{sT1}, s{sT1}, {half * 65536}
                    v_xor_b32 v{va}, s{sT0}, v{vTR}
                    v_add_u32 v{va}, s{sT1}, v{va}""")
                    d = dest((mat, T, 2 * lo + half))
                    for m in range(4):
                        a(f"ds_read_b64_tr_b16 {wr(d + 2*m, 2)}, v{va} offset:{m*4096}")
        else:
            for pl in range(2):
                for kk in range(4):
                    va = vTA + (n & 1); n += 1
                    a(f"""s_xor_b32 s{sT1}, s{sW}, {kk}
                    s_and_b32 s{sT0}, s{sT1}, 1
                    s_lshl_b32 s{sCNT}, s{sT0}, 9
                    s_lshl_b32 s{sT0}, s{sT0}, 6
                    s_xor_b32 s{sT0}, s{sT0}, {64 * pl}
                    s_and_b32 s{sS}, s{sW}, 1
                    s_lshl_b32 s{sS}, s{sS}, 7
                    s_add_u32 s{sT0}, s{sT0}, s{sS}
                    s_lshr_b32 s{sT1}, s{sT1}, 1
                    s_and_b32 s{sS}, s{sW}, 2
                    s_add_u32 s{sT1}, s{sT1}, s{sS}
                    s_lshl_b32 s{sT1}, s{sT1}, 14
                    s_add_u32 s{sT1}, s{sT1}, s{sCNT}
                    s_add_u32 s{sT1}, s{sT1}, {half * 65536}
                    v_xor_b32 v{va}, s{sT0}, v{vTO}
                    v_add_u32 v{va}, s{sT1}, v{va}""")
                    d = dest((3, 2 * half + pl, kk))
                    for m in range(4):
                        a(f"ds_read_b64_tr_b16 {wr(d + 2*m, 2)}, v{va} offset:{m*4096}")
        a("s_waitcnt lgkmcnt(0)")
    def spill(fs):
        for f in fs:
            base, off = (vG, f * 8192) if f < 8 else (vWL1, (f - 8) * 8192)
            for hh in range(2):
                a(f"ds_write_b128 v{base}, {vr(hold(f) + 4*hh, 4)} offset:{off + 1024*hh}")
        a("s_waitcnt lgkmcnt(0)")
    issue(0); issue(1)
    a(f"""
    v_and_b32 v{t0}, 15, v{vLane}
    v_lshrrev_b32 v{t1}, 4, v{vLane}
    v_and_b32 v{t2}, 3, v{vLane}
    v_bfe_u32 v{t3}, v{vLane}, 2, 2
    """)
    a(f"""
    s_lshl_b32 s{sT0}, s{sW}, 8
    s_add_u32 s{sT1}, s{sT0}, {L_X}
    v_mul_u32_u24 v{t5}, {XP}, v{t1}
    v_lshl_add_u32 v{t5}, v{t0}, 3, v{t5}
    v_add_u32 v{vXW}, s{sT1}, v{t5}
    """)
    a(f"""
    v_and_b32 v{t4}, 1, v{t1}
    v_lshl_add_u32 v{t4}, v{t4}, 2, v{t3}
    v_lshrrev_b32 v{t5}, 1, v{t1}
    v_lshl_add_u32 v{t4}, v{t5}, 4, v{t4}
    v_mul_u32_u24 v{t5}, {XP}, v{t2}
    v_lshl_add_u32 v{t4}, v{t4}, 3, v{t5}
    v_add_u32 v{vXR}, {L_X}, v{t4}
    v_and_b32 v{vHR}, 31, v{vLane}
    v_lshlrev_b32 v{vHR}, 2, v{vHR}
    v_cmp_lt_u32 vcc, 1, v{t2}
    v_mov_b32 v{t5}, 0x4444
    v_mov_b32 v{t6}, 0xeeee
    v_cndmask_b32 v{vIDX}, v{t5}, v{t6}, vcc
    """)
    a(f"""
    v_and_b32 v{t4}, 1, v{vLane}
    v_lshl_add_u32 v{t7}, v{t3}, 1, v{t4}
    v_lshlrev_b32 v{t4}, 4, v{t7}
    v_lshl_add_u32 v{t4}, v{t1}, 7, v{t4}
    s_lshl_b32 s{sT0}, s{sW}, 9
    s_add_u32 s{sT0}, s{sT0}, {L_OX}
    v_add_u32 v{vOW}, s{sT0}, v{t4}
    v_mov_b32 v{t6}, 0x80000000
    """)
    a(f"""
    v_lshl_add_u32 v{t4}, v{t1}, 2, v{t2}
    v_lshlrev_b32 v{t4}, 4, v{t4}
    v_bfe_u32 v{t5}, v{vLane}, 2, 1
    v_lshl_add_u32 v{t4}, v{t5}, 3, v{t4}
    s_lshl_b32 s{sT0}, s{sH}, 8
    v_add_u32 v{t4}, s{sT0}, v{t4}
    v_cmp_lt_u32 vcc, 7, v{t0}
    v_cndmask_b32 v{vMS}, v{t4}, v{t6}, vcc
    s_lshl_b32 s{sT1}, s{sW}, 3
    v_bfe_u32 v{t5}, v{vLane}, 3, 1
    v_add_u32 v{t5}, s{sT1}, v{t5}
    v_mul_u32_u24 v{t5}, {INB_STRIDE}, v{t5}
    v_add_u32 v{vPS}, v{t5}, v{t4}
    """)
    a(f"""
    v_lshlrev_b32 v{t4}, 10, v{t7}
    v_bfe_u32 v{t5}, v{vLane}, 1, 1
    v_lshl_add_u32 v{t4}, v{t5}, 5, v{t4}
    v_lshrrev_b32 v{t5}, 1, v{t1}
    v_lshl_add_u32 v{t4}, v{t5}, 6, v{t4}
    v_and_b32 v{t5}, 1, v{t1}
    v_lshl_add_u32 v{vM0}, v{t5}, 4, v{t4}
    """)
    a(f"""
    v_and_b32 v{t5}, 1, v{vLane}
    v_lshlrev_b32 v{t5}, 4, v{t5}
    v_mov_b32 v{t6}, 0x3f80
    v_lshlrev_b32 v{t5}, v{t5}, v{t6}
    v_bfe_u32 v{t6}, v{vLane}, 1, 2
    """)
    for d in range(4):
        a(f"""v_cmp_eq_u32 vcc, {d}, v{t6}
        v_cndmask_b32 v{PM+d}, 0, v{t5}, vcc""")
    a(f"""ds_write_b128 v{vLB}, v[{PM}:{PM+3}] offset:{L_SEL-L_MB}
    s_waitcnt lgkmcnt(0)
    v_mov_b64 v[{PM}:{PM+1}], 0
    v_mov_b64 v[{PM+2}:{PM+3}], 0
    """)
    for c in range(8):
        a(f"s_waitcnt vmcnt({16 if c < 7 else 0})")
        a("s_barrier")
        consume(c)
        a("s_barrier")
        if c + 2 < 8: issue(c + 2)
        if c == 6: spill(range(0, 8))
    spill(range(8, 16))
    set_srd(a, SRD_T, S_MEM0, 8192)
    a(f"""
    s_lshl_b32 s{sT0}, s{sW}, 8
    buffer_load_dwordx4 {vr(MA,4)}, v{vM0}, s[{SRD_T}:{SRD_T+3}], s{sT0} offen
    buffer_load_dwordx4 {vr(MA+4,4)}, v{vM0}, s[{SRD_T}:{SRD_T+3}], s{sT0} offen offset:128
    s_mov_b32 s{sS}, -1
    s_lshl_b32 s{sT0}, s{sH}, 13
    s_add_u32 s{sKX}, s{sT0}, {WS_KX}
    s_add_u32 s{sVX}, s{sT0}, {WS_VX}
    s_lshl_b32 s{sT0}, s{sH}, 12
    s_add_u32 s{sKM}, s{sT0}, {WS_KM - 128*KB}
    s_lshl_b32 s{sT0}, s{sW}, 10
    s_sub_u32 s{sKM}, s{sKM}, s{sT0}
    s_mov_b32 s{sXM}, 0x33333333
    s_mov_b32 s{sXM+1}, 0x33333333
    s_mov_b32 s{sC2}, 0x3e0293ee
    s_mov_b32 s{sC2+1}, 0x3e0293ee
    s_mov_b32 s{sONE2}, 0x3f803f80
    s_mov_b32 s{sONE2+1}, 0x3f803f80
    """)
    for p in range(4): a(f"s_mov_b32 s{sINW+p}, {WS_INBOX + 2 * p * INB_STRIDE}")

def zlist(b, n):
    return [f"v_mov_b64 v[{b+i}:{b+i+1}], 0" for i in range(0, n, 2)]

def smf(acc, A, B):
    return f"v_smfmac_f32_16x16x64_bf16 {vr(acc,4)}, {vr(A,4)}, {B}, v{vIDX}"

NST = 10
def stamp(a, prof, k):
    if prof:
        if CFG["light"] and k not in (7, 8, 9, CFG["only"]): return
        if k == 9: a(f"s_memrealtime s[{70+2*k}:{71+2*k}]")
        else: a(f"s_memtime s[{70+2*k}:{71+2*k}]")

PUB = X + 12
def pub_prepare(a):
    a(f"""s_lshl_b32 s{sT0}, s{sW}, 8
    v_add_u32 v{vT}, s{sT0}, v{vXR}
    ds_read_b64_tr_b16 {vr(PUB,2)}, v{vT}
    ds_read_b64_tr_b16 {vr(PUB+2,2)}, v{vT} offset:64
    v_mov_b32_dpp v{aV+2}, v{aV} quad_perm:[2,3,2,3] row_mask:0xf bank_mask:0xf
    v_mov_b32_dpp v{aV+3}, v{aV+1} quad_perm:[2,3,2,3] row_mask:0xf bank_mask:0xf
    s_waitcnt lgkmcnt(0)
    s_mov_b64 exec, s[{sXM}:{sXM+1}]
    v_mov_b64 {vr(PUB,2)}, {vr(aV,2)}
    v_mov_b64 {vr(PUB+2,2)}, {vr(aV+2,2)}
    s_mov_b64 exec, -1""")
PUBST = f"buffer_store_dwordx4 {vr(PUB,4)}, v{vG}, {W}, s{sKM} offen sc1"
MR = X + 4
FLG = X + 10
def kv_gate(a, name, need_expr):
    a(need_expr)
    a(f"s_min_u32 s{sT1}, s{sT1}, 64")
    a.label(name)
    a(f"""s_cmp_ge_u32 s{sRDY}, s{sT1}
    s_cbranch_scc1 {name}_OK
    s_load_dwordx4 s[{sKV}:{sKV+3}], s[{sKVA}:{sKVA+1}], {WS_FLAGS + F_KV} glc
    s_add_u32 s{sCNT}, s{sCNT}, 1
    s_cmp_gt_u32 s{sCNT}, {SPIN_MAX}
    s_cbranch_scc1 CH_DONE
    s_waitcnt lgkmcnt(0)""")
    for j in range(NG):
        a(f"s_lshl_b32 s{sKV+j}, s{sKV+j}, 2")
        if j: a(f"s_add_u32 s{sKV+j}, s{sKV+j}, {j}\ns_min_u32 s{sKV}, s{sKV}, s{sKV+j}")
    a(f"""s_mov_b32 s{sRDY}, s{sKV}
    s_branch {name}""")
    a.label(name + "_OK")
def hop_prep(a, wait=True):
    for l in ring_load(0): a(l)
    pub_prepare(a)
    for l in zlist(aQK + 10, 14): a(l)
    hop_prep2(a)
def hop_prep2(a):
    for lo in range(1, 4): a(f"v_xor_b32 v{MR+lo}, {2048*lo}, v{vG2}")
    a(f"""v_lshlrev_b32 v{MR}, 1, v{vLB}
    v_mov_b32 v{FLG}, s{sS}
    v_sub_u32 v{FLG+1}, 0, v{vG}
    v_lshrrev_b32 v{FLG+1}, 1, v{FLG+1}
    s_add_u32 s{sKX}, s{sKX}, {256*KB*CFG["adv"]}
    s_add_u32 s{sPF}, s{sPF}, {256*KB*CFG["adv"]}
    s_add_u32 m0, s{sKXO}, s{sLKX}
    s_xor_b32 s{sKXO}, s{sKXO}, {8192 ^ 16384}""")

def chain_loop(a, tag, stf, prof=False):
    q = LdsQ(a)
    ck = vT
    a.label(f"CH_TOP_{tag}")
    Q0, K0, Q1, K1 = aQK, aQK + 4, aQK + 8, aQK + 12
    acc = lambda mat, T: (aQK + 8 * T + 4 * mat) if mat < 2 else aV + 4 * T
    N = len(QKSEQ)
    pre = {i: [] for i in range(N)}
    post = {i: [] for i in range(N)}
    post[0] = [f"v_max3_u32 v{ck}, v{MA}, v{MA+1}, v{MA+2}"]
    pre[1] = [("x", "s_waitcnt vmcnt(0)", None)]
    post[1] = [f"v_max3_u32 v{ck}, v{ck}, v{MA+3}, v{MA+4}", f"v_max3_u32 v{ck}, v{ck}, v{MA+5}, v{MA+6}",
               f"v_max_u32 v{ck}, v{ck}, v{MA+7}", f"v_cmp_eq_u32 vcc, -1, v{ck}"]
    pre[2] = [("x", f"s_cbranch_vccnz CH_RETRY_{tag}", None), ("lds", f"ds_write_b128 v{vG2}, {vr(MA,4)}", "mw0")]
    pre[3] = [("lds", f"ds_write_b128 v{vG2}, {vr(MA+4,4)} offset:1024", "mw1")]
    if prof: pre[4] += [("x", f"s_mov_b64 exec, 0xffff\nbuffer_store_dword v{MA+8}, v{MA+9}, {W}, s34 offen\ns_mov_b64 exec, -1", None)]
    sc = step_scalars()
    BAR = CFG["bar"]
    pre[BAR] = [("w", "mw1", None), ("x", "s_barrier", None)]
    mr = [("lds", f"ds_read_b128 {vr(MA+4*kk,4)}, v{MR+(kk>>1)} offset:{1024*(kk&1)}", f"m{kk}") for kk in range(2, 8)]
    pre[BAR] += mr[0:2]; pre[BAR+1] = mr[2:4]; pre[BAR+2] = mr[4:6]
    for kk in range(2, 8): pre[11 + 3 * (kk - 2)].append(("w", f"m{kk}", None))
    rB, rC = ring_load(1), ring_load(2)
    for i in range(8): pre[12 + i].insert(0, ("lds", rB[i], f"rB{i}"))
    pre[RB0 - 1].append(("w", "rB7", None))
    for i in range(8): pre[RB0 + 1 + i].insert(0, ("lds", rC[i], f"rC{i}"))
    pre[11].insert(0, ("x", f"buffer_load_dwordx4 v{vG}, {W}, s{sKX} offen sc1 lds", None))
    pre[12].append(("x", f"buffer_load_dwordx4 v{vG}, {W}, s{sKX} offen offset:1024 sc1 lds", None))
    pre[13].insert(0, ("x", f"s_mov_b32 m0, {L_JUNK}", None))
    pre[13].append(("x", f"buffer_load_dword v{MR}, {W}, s{sPF} offen lds", None))
    if CFG["pub"]:
        pre[20].insert(0, ("x", PUBST, None))
        pre[21].insert(0, ("x", f"buffer_store_dword v{FLG}, v{FLG+1}, {W}, s{sFM} offen sc1", None))
    for i, l in zip((4, 4, 4, 5, 5, 5, 6, 6, 6, 7, 22), sc): pre[i].append(("x", l, None))
    assert len(sc) <= 11
    post[21].append(f"v_add_u32 v{vT}, s{sKXO}, v{vLB}")
    def fin2(b, dst): return [f"v_add_f32 v{b}, v{b}, v{b+2}", f"v_add_f32 v{b+1}, v{b+1}, v{b+3}", f"v_cvt_pk_bf16_f32 v{dst}, v{b}, v{b+1}"]
    f = fin2(Q0, Q0) + fin2(K0, Q0 + 1) + fin2(Q1, Q1)
    for i, l in enumerate(f[:7]): post[29 + i].append(l)
    tok = {}
    a("s_waitcnt vmcnt(1)")
    stamp(a, prof, 0)
    for i, key in enumerate(QKSEQ):
        a(smf(acc(key[0], key[1]), MA + 4 * key[2], wop(key)))
        for kind, l, name in pre[i]:
            if kind == "lds": tok[name] = q.op(l)
            elif kind == "w": q.wait(tok[l])
            else: a(l)
        for l in post[i]: a(l)
        if prof and i == CFG["at"]: a("s_memtime s[72:73]")
    if CFG["at"] < 0: stamp(a, prof, 1)
    vi = 0
    def vnext(n=1):
        nonlocal vi
        for _ in range(n):
            key = VSEQ[vi]; vi += 1
            a(smf(aV + 4*key[1], MA + 4*key[2], wop(key)))
    vnext()
    q.op(f"ds_write_b64 v{vXW}, {vr(Q0,2)}")
    a(f[7])
    vnext()
    q.wait(tok["rC7"])
    a(f[8])
    for l in fin2(K1, Q1 + 1): a(l)
    xw = q.op(f"ds_write_b64 v{vXW}, {vr(Q1,2)} offset:128")
    vnext(5)
    q.wait(xw)
    a("s_barrier")
    xr = []
    for k in range(8):
        xr.append(q.op(f"ds_read_b64_tr_b16 {vr(X+2*k,2)}, v{vXR} offset:{(k>>1)*256 + (k&1)*64}"))
        if k in (1, 3, 5, 7): vnext()
    kxl = [f"ds_read_b128 {vr(RING+4*i,4)}, v{vT} offset:{1024*i}" for i in range(8)]
    kx = [q.op(kxl[0]), q.op(kxl[1])]
    vnext()
    kx += [q.op(kxl[2])]
    assert vi == 12
    stamp(a, prof, 2)
    SX, SM, m_, t_ = aQK, aQK + 8, aQK + 12, aQK + 14
    OACC, OA, ONES, LA = MA, MA + 16, MA + 16, X + 4
    sfill = [f"v_mov_b64 {vr(ONES,2)}, s[{sONE2}:{sONE2+1}]", f"v_mov_b64 {vr(ONES+2,2)}, s[{sONE2}:{sONE2+1}]"] + zlist(OACC, 16)
    vfin = fin2(aV, aV) + fin2(aV + 4, aV + 1)
    def sm(acc_, A, ks):
        c = "0" if ks == 0 else vr(acc_, 4)
        a(f"v_mfma_f32_16x16x32_bf16 {vr(acc_,4)}, {vr(A,4)}, {vr(X+4*ks,4)}, {c}")
    q.wait(xr[1])
    for ks in range(4):
        sm(SM, X + 4*ks, ks)
        kx.append(q.op(kxl[3 + ks]))
        if ks == 3: kx.append(q.op(kxl[7]))
        q.wait(xr[2*ks+3] if ks < 3 else kx[0])
    fl = sfill + vfin
    for j in range(8):
        kt, ks = j >> 2, j & 3
        sm(SX + 4*kt, RING + 4*j, ks)
        if j < 7: q.wait(kx[j + 1])
        if j == 6:
            a(f"v_max3_f32 v{m_}, v{SM+2}, v{SM+3}, v{SX}")
            a(f"v_max3_f32 v{m_}, v{m_}, v{SX+1}, v{SX+2}")
        else:
            a(fl.pop(0)); a(fl.pop(0))
    rD = ring_load(3)
    for l in fl: a(l)
    a(f"v_max_f32 v{m_}, v{m_}, v{SX+3}")
    stamp(a, prof, 3)
    a(f"v_max3_f32 v{m_}, v{m_}, v{SX+4}, v{SX+5}")
    a(f"v_max3_f32 v{t_}, v{m_}, v{SX+6}, v{SX+7}")
    a(f"v_max3_f32 v{m_}, v{m_}, v{SX+6}, v{SX+7}")
    a(f"v_permlane16_swap_b32 v{m_}, v{t_}")
    a(f"v_max_f32 v{t_+1}, v{m_}, v{t_}")
    a(f"v_max_f32 v{m_}, v{m_}, v{t_}")
    a(f"v_permlane32_swap_b32 v{m_}, v{t_+1}")
    a(f"v_max_f32 v{m_}, v{m_}, v{t_+1}")
    a(f"v_mul_f32 v{m_}, s{sC2}, v{m_}")
    def pf(r): a(f"v_pk_fma_f32 {vr(r,2)}, {vr(r,2)}, s[{sC2}:{sC2+1}], {vr(m_,2)} op_sel_hi:[1,1,0] neg_lo:[0,0,1] neg_hi:[0,0,1]")
    P, OAc = X, X + 8
    pf(SM + 2)
    for i in range(4): pf(SX + 2*i)
    a(f"v_exp_f32 v{SM+2}, v{SM+2}")
    a(f"v_exp_f32 v{SM+3}, v{SM+3}")
    a(f"v_exp_f32 v{SX}, v{SX}")
    a(f"v_cvt_pk_bf16_f32 v{PM}, v{SM+2}, v{SM+3}")
    a(f"v_cvt_pk_bf16_f32 v{PM+3}, v{SM+2}, v{SM+3}")
    a(f"v_exp_f32 v{SX+1}, v{SX+1}")
    a(f"v_mfma_f32_16x16x16_bf16 {vr(LA,4)}, {vr(ONES,2)}, {vr(PM,2)}, 0")
    a(f"s_cmp_eq_u32 s{sS}, 63")
    a(f"v_exp_f32 v{SX+2}, v{SX+2}")
    a(f"v_mfma_f32_16x16x16_bf16 {vr(OAc,4)}, {vr(aV,2)}, {vr(PM,2)}, 0")
    a(f"s_cbranch_scc1 CH_LAST")
    a(f"v_exp_f32 v{SX+3}, v{SX+3}")
    a(f"v_mfma_f32_16x16x16_bf16 {vr(OAc+4,4)}, {vr(aV,2)}, {vr(PM+2,2)}, 0")
    for i in range(4, 8): a(f"v_exp_f32 v{SX+i}, v{SX+i}")
    for i in range(4): a(f"v_cvt_pk_bf16_f32 v{P+i}, v{SX+2*i}, v{SX+2*i+1}")
    a(f"v_mfma_f32_16x16x32_bf16 {vr(LA,4)}, {vr(ONES,4)}, {vr(P,4)}, {vr(LA,4)}")
    a(f"v_mfma_f32_16x16x32_bf16 {vr(OAc,4)}, {vr(VX,4)}, {vr(P,4)}, {vr(OAc,4)}")
    a(f"v_mfma_f32_16x16x32_bf16 {vr(OAc+4,4)}, {vr(VX+4,4)}, {vr(P,4)}, {vr(OAc+4,4)}")
    DP = "quad_perm:[0,1,0,1] row_mask:0xf bank_mask:0xf"
    a(f"v_rcp_f32_dpp v{t_}, v{LA} {DP}")
    for i in range(8):
        a(f"v_mul_f32_dpp v{OAc+i}, v{OAc+i}, v{t_} {DP}")
        if i == 3:
            a(f"v_cvt_pk_bf16_f32 v{OA}, v{OAc}, v{OAc+1}")
            a(f"v_cvt_pk_bf16_f32 v{OA+1}, v{OAc+2}, v{OAc+3}")
    a(f"v_cvt_pk_bf16_f32 v{OA+2}, v{OAc+4}, v{OAc+5}")
    a(f"v_cvt_pk_bf16_f32 v{OA+3}, v{OAc+6}, v{OAc+7}")
    stamp(a, prof, 4)
    if CFG["e1"]: a(f"s_mov_b64 exec, s[{sXM}:{sXM+1}]")
    ow = q.op(f"ds_write_b128 v{vOW}, {vr(OA,4)}")
    if CFG["e1"]: a(f"s_mov_b64 exec, -1")
    PK = X + 4
    SEL = aQK
    def fin(p):
        b = OACC + 4 * p
        return [f"v_cvt_pk_bf16_f32 v{PK+2*p}, v{b}, v{b+1}", f"v_cvt_pk_bf16_f32 v{PK+2*p+1}, v{b+2}, v{b+3}",
                f"v_bfi_b32 v{PK+2*p}, 1, s{sTAG}, v{PK+2*p}"]
    def pst(p): return f"buffer_store_dwordx2 {vr(PK+2*p,2)}, v{vPS}, {W}, s{sINW+p} offen {stf}"
    def osm(i): a(smf(OACC + 4*OSEQ[i][1], OA + 4*OSEQ[i][2], wop(OSEQ[i])))
    HV, PR = aQK + 4, aQK + 6
    NP = CFG["np"]
    osm(0)
    a(f"buffer_load_dwordx4 {vr(VX,4)}, v{vG}, {W}, s{sVX} offen sc1")
    a(f"v_xor_b32 v{X+1}, 512, v{vOW}")
    osm(1)
    a(f"buffer_load_dwordx4 {vr(VX+4,4)}, v{vG}, {W}, s{sVX} offen offset:1024 sc1")
    a(f"v_xor_b32 v{X+2}, 1024, v{vOW}")
    osm(2)
    a(f"v_xor_b32 v{X+3}, 1536, v{vOW}")
    for l in zlist(aQK + 4, 6): a(l)
    q.wait(ow)
    a("s_barrier")
    oa = [q.op(f"ds_read_b128 {vr(OA+4*k,4)}, v{X+k}") for k in range(1, 4)]
    late = rD + [f"ds_read_b128 {vr(SEL,4)}, v{vLB} offset:{L_SEL-L_MB}"]
    rd = []
    osm(3)
    q.wait(oa[0])
    stamp(a, prof, 5)
    post = {8: fin(0)[0:2], 9: fin(0)[2:], 11: fin(1)[0:2], 12: fin(1)[2:], 14: fin(2)[0:2], 15: fin(2)[2:]}
    vm = []
    pslots = [CFG["pf"] + (k * CFG["ps"]) // 16 for k in range(NP)]
    for i in range(4, 16):
        osm(i)
        if i < 6: q.wait(oa[i - 3])
        n = 0
        if i in pslots:
            k = pslots.index(i)
            a(f"buffer_load_dword v{PR+k}, v{vHR}, {W}, s{sHR} offen sc1"); vm.append(k); n += 1
        while late and n < (1 if (i < 6 or i in post) else 2):
            rd.append(q.op(late.pop(0))); n += 1
        if i == 11: q.wait(rd[1])
        if i in (12, 13, 14):
            while len(rd) <= 2 * (i - 11) + 1: rd.append(q.op(late.pop(0)))
            q.wait(rd[2 * (i - 11) + 1])
        if i in (10, 13): a(pst((i - 10) // 3)); vm.append("s")
        if i == 15: a(f"s_cmp_lg_u32 s{sW}, 0")
        for l in post.get(i, []): a(l)
    a(pst(2)); vm.append("s")
    for l in fin(3): a(l)
    a(pst(3)); vm.append("s")
    for l in late: q.op(l)
    stamp(a, prof, 6)
    a(f"s_cbranch_scc1 CH_HK_{tag}")
    HV = X + 8
    a(f"""v_mov_b32 v{HV}, s{sS}
    v_lshlrev_b32 v{HV+1}, 5, v{vHR}""")
    hop_prep(a, wait=False)
    delay(a, CFG["d1"])
    for k in range(NP):
        a(f"""s_waitcnt vmcnt({len(vm) - 1 - vm.index(k)})
        v_cmp_ne_u32 vcc, s{sS}, v{PR+k}
        s_cbranch_vccz CH_GO_{tag}""")
        if prof: a(f"s_add_u32 s{sPROF}, s{sPROF}, 0x100")
        delay(a, CFG["ps"] - 16 - (4 if prof else 0))
    a.label(f"CH_GO_{tag}")
    RA = X
    def sweep():
        for m in range(8):
            a(f"buffer_load_dwordx4 {vr(MA+4*m,4)}, v{vG}, {W}, s{sINB_R if m < 4 else sINB_R2} offen offset:{1024*(m&3)} sc1")
    sweep()
    delay(a, CFG["hd"])
    a.label(f"CH_RED_{tag}")
    a(f"""s_mov_b64 exec, 0xff
    buffer_store_dword v{HV}, v{HV+1}, {W}, s{sHW} offen {stf}
    s_mov_b64 exec, -1""")
    for m in range(8):
        b = MA + 4 * m
        a(f"s_waitcnt vmcnt({8 - m})")
        a(f"v_mfma_f32_16x16x32_bf16 {vr(RA,4)}, {vr(b,4)}, {vr(SEL,4)}, {'0' if m == 0 else vr(RA,4)}")
        if m == 0: a(f"v_xor_b32 v{ck}, s{sTAG}, v{b}")
        else: a(f"v_bitop3_b32 v{ck}, v{ck}, v{b}, s{sTAG} bitop3:0xf6")
        a(f"v_bitop3_b32 v{ck}, v{ck}, v{b+2}, s{sTAG} bitop3:0xf6")
    a(f"""v_and_b32 v{ck}, 1, v{ck}
    v_cmp_ne_u32 vcc, 0, v{ck}
    s_cbranch_vccnz CH_RED2_{tag}
    v_cvt_pk_bf16_f32 v{RA}, v{RA}, v{RA+1}
    v_cvt_pk_bf16_f32 v{RA+1}, v{RA+2}, v{RA+3}
    buffer_store_dwordx2 {vr(RA,2)}, v{vMS}, {W}, s{sMR} offen {stf}""")
    a.label(f"CH_POLL_{tag}")
    a("s_barrier")
    stamp(a, prof, 7)
    for l in zlist(aQK, 4): a(l)
    ld = f"""buffer_load_dwordx4 {vr(MA,4)}, v{vG}, {W}, s{sMR} offen sc1
    buffer_load_dwordx4 {vr(MA+4,4)}, v{vG}, {W}, s{sMR} offen offset:1024 sc1"""
    delay(a, CFG["d2"])
    a(ld)
    if prof:
        stamp(a, prof, 8)
        stamp(a, prof, 9)
        a(f"""s_waitcnt lgkmcnt(0)
        s_lshl_b32 s{sT0}, s{sS}, 6
        s_lshl_b32 s{sT1}, s{sW}, 12
        s_add_u32 s{sT0}, s{sT0}, s{sT1}
        v_mov_b32 v{MA+8}, 0""")
        for k in range(NST): a(f"v_writelane_b32 v{MA+8}, s{70+2*k}, {k}")
        a(f"v_writelane_b32 v{MA+8}, s{sPROF}, {NST}")
        a(f"v_writelane_b32 v{MA+8}, s{sCNT}, {NST+1}")
        a(f"""s_mov_b32 s{sPROF}, 0
        s_lshl_b32 s{sT1}, s{sH}, 14
        s_add_u32 s{sT0}, s{sT0}, s{sT1}
        s_add_u32 s34, s{sT0}, {WS_PROF - (L_MB >> 2)}
        v_lshrrev_b32 v{MA+9}, 2, v{vLB}""")
    a(f"s_branch CH_TOP_{tag}")
    a.label(f"CH_RED2_{tag}")
    sweep()
    a(f"""s_add_u32 s{sCNT}, s{sCNT}, 1
    s_cmp_gt_u32 s{sCNT}, {SPIN_MAX}
    s_cbranch_scc1 CH_DONE
    s_branch CH_RED_{tag}""")
    a.label(f"CH_RETRY_{tag}")
    DEP = CFG["dep"]
    a("s_mov_b64 exec, vcc")
    for k in range(DEP - 1):
        a(ld); delay(a, CFG["gap"])
    a.label(f"CH_RETRY2_{tag}")
    a(f"""s_mov_b64 exec, vcc
    {ld}
    s_add_u32 s{sCNT}, s{sCNT}, 1""")
    if prof: a(f"s_add_u32 s{sPROF}, s{sPROF}, 1")
    a(f"""s_cmp_gt_u32 s{sCNT}, {SPIN_MAX}
    s_cbranch_scc1 CH_DONE
    s_waitcnt vmcnt({2*(DEP-1)})
    v_max3_u32 v{ck}, v{MA}, v{MA+1}, v{MA+2}
    v_max3_u32 v{ck}, v{ck}, v{MA+3}, v{MA+4}
    v_max3_u32 v{ck}, v{ck}, v{MA+5}, v{MA+6}
    v_max_u32 v{ck}, v{ck}, v{MA+7}
    v_cmp_eq_u32 vcc, -1, v{ck}
    s_cbranch_vccnz CH_RETRY2_{tag}
    s_mov_b64 exec, -1""")
    for l in zlist(aQK, 16): a(l)
    a(f"s_branch CH_TOP_{tag}")
    a.label(f"CH_HK_{tag}")
    hop_prep(a)
    a(f"""s_cmp_eq_u32 s{sW}, 2
    s_cbranch_scc1 CH_HK2_{tag}
    s_cmp_eq_u32 s{sW}, 3
    s_cbranch_scc1 CH_HK3_{tag}
    v_mov_b32 v{HV}, -1""")
    delay(a, CFG["d1"] + CFG["p0"])
    a.label(f"CH_PROBE_{tag}")
    for u in range(4):
        a(f"""buffer_load_dword v{HV}, v{vHR}, {W}, s{sHR} offen sc1
        s_waitcnt vmcnt({CFG["pd"]})
        v_cmp_ne_u32 vcc, s{sS}, v{HV}
        s_cbranch_vccz CH_POLL_{tag}""")
        if u < 3: delay(a, CFG["pg"])
    a(f"""s_add_u32 s{sCNT}, s{sCNT}, 1
    s_cmp_gt_u32 s{sCNT}, {SPIN_MAX}
    s_cbranch_scc0 CH_PROBE_{tag}
    s_branch CH_DONE""")
    a.label(f"CH_HK2_{tag}")
    if CFG["gate"]: kv_gate(a, f"CH_KV_{tag}", f"s_add_u32 s{sT1}, s{sS}, 4")
    a(f"s_branch CH_POLL_{tag}")
    a.label(f"CH_HK3_{tag}")
    a(f"""v_mov_b32 v{X}, -1
    v_lshrrev_b32 v{ck}, 2, v{vLB}
    buffer_store_dword v{X}, v{ck}, {W}, s{sPOM} offen {stf}
    s_branch CH_POLL_{tag}""")

def step_scalars():
    return f"""s_add_u32 s{sS}, s{sS}, 1
    s_add_u32 s{sVX}, s{sVX}, {256*KB*CFG["adv"]}
    s_and_b32 s{sTAG}, s{sS}, 1
    s_mov_b32 s{sCNT}, 0
    s_add_u32 s{sT2}, s{sS}, 3
    s_and_b32 s{sT2}, s{sT2}, 3
    s_lshl_b32 s{sT0}, s{sT2}, 13
    s_add_u32 s{sPOM}, s{sT0}, s{sFREE0}
    s_xor_b32 s{sT0}, s{sT0}, 16384
    s_add_u32 s{sMR}, s{sT0}, {WS_MBUF}
    s_add_u32 s{sKM}, s{sKM}, {128*KB*CFG["advp"]}""".split("\n")

def chain_role(a, prof=False):
    a.label("CHAIN")
    if prof: a("s_memrealtime s[92:93]")
    chain_startup(a)
    rt(a, 2, X + 2)
    a(f"s_mov_b32 s{sMODE}, 1")
    all_arrived(a, "CH_ROSTER", X, X + 1, sCNT, sT0, "CH_DONE", early="CH_MODE")
    a(f"s_mov_b32 s{sMODE}, 0")
    a.label("CH_MODE")
    a(f"""s_mov_b32 s{sCNT}, 0
    v_mov_b32 v{X}, {D_INIT}""")
    a.label("CH_INIT")
    a(f"""global_load_dword v{X+1}, v{X}, s[{S_DBG}:{S_DBG+1}] sc1
    s_add_u32 s{sCNT}, s{sCNT}, 1
    s_waitcnt vmcnt(0)
    v_readfirstlane_b32 s{sT0}, v{X+1}
    s_cmp_gt_u32 s{sCNT}, {SPIN_MAX}
    s_cbranch_scc1 CH_DONE
    s_cmp_lt_u32 s{sT0}, 128
    s_cbranch_scc1 CH_INIT""")
    rt(a, 3, X + 2)
    if CFG["gate"]: kv_gate(a, "CH_KV0", f"s_mov_b32 s{sT1}, 3")
    a(f"""s_lshl_b32 s{sT0}, s{sW}, 11
    s_add_u32 s{sLKX}, s{sT0}, {L_MB}
    s_add_u32 m0, s{sLKX}, 8192
    s_mov_b32 s{sKXO}, 16384
    buffer_load_dwordx4 v{vG}, {W}, s{sKX} offen sc1 lds
    buffer_load_dwordx4 v{vG}, {W}, s{sKX} offen offset:1024 sc1 lds
    buffer_load_dwordx4 {vr(VX,4)}, v{vG}, {W}, s{sVX} offen sc1
    buffer_load_dwordx4 {vr(VX+4,4)}, v{vG}, {W}, s{sVX} offen offset:1024 sc1
    s_add_u32 s{sPF}, s{sVX}, s{sT0}
    s_add_u32 s{sPF}, s{sPF}, {256*KB - 2*L_MB}
    v_lshlrev_b32 v{X+2}, 1, v{vLB}
    buffer_load_dword v{X+3}, v{X+2}, {W}, s{sPF} offen
    s_lshl_b32 s{sFREE0}, s{sH}, 8
    s_add_u32 s{sFREE0}, s{sFREE0}, {WS_MBUF - (L_MB >> 2)}
    s_mov_b32 s{sMR}, {WS_MBUF}
    s_mov_b32 s34, {WS_PROF + 600*KB}
    v_mov_b32 v{MA+9}, 0
    s_mov_b32 s{sPROF}, 0""")
    for l in ring_load(0): a(l)
    for l in zlist(aQK, 24): a(l)
    hop_prep2(a)
    a("s_waitcnt vmcnt(0)")
    rt(a, 4, X + 2)
    if prof: a("s_memrealtime s[94:95]")
    a(f"""s_waitcnt lgkmcnt(0)
    s_cmp_eq_u32 s{sMODE}, {CFG['fast']}
    s_cbranch_scc0 CH_TOP_slow""")
    chain_loop(a, "fast", "", prof is True)
    chain_loop(a, "slow", "sc1", prof is True)
    a.label("CH_LAST")
    pub_prepare(a)
    a(PUBST)
    a(f"""v_mov_b32 v{MA+4}, 64
    v_sub_u32 v{MA+5}, 0, v{vG}
    v_lshrrev_b32 v{MA+5}, 1, v{MA+5}
    s_waitcnt vmcnt(0)
    s_barrier
    buffer_store_dword v{MA+4}, v{MA+5}, {W}, s{sFM} offen sc1""")
    if prof:
        a(f"""s_memrealtime s[96:97]
        s_waitcnt lgkmcnt(0)
        v_mov_b32 v{MA}, s92
        v_mov_b32 v{MA+1}, s94
        v_mov_b32 v{MA+2}, s96
        v_mov_b32 v{MA+3}, 0
        s_lshl_b32 s{sT0}, s{sH}, 4
        s_add_u32 s{sT0}, s{sT0}, {WS_PROF + 512*KB}
        buffer_store_dwordx4 {vr(MA,4)}, v{MA+3}, {W}, s{sT0} offen""")
    rt(a, 7)
    a.label("CH_DONE")
    a("""s_waitcnt vmcnt(0)
    s_endpgm""")
```

```python
import sys
from asmlib import *
from layout import *
import chain
from chain import *
import qa, op, pa

KNAME = "concat_heads__spectral_gfnet__memory_aug_recurrent_mem_tr__prompt_kernel"

def prologue(a):
    a(f"""
    s_cmp_ge_u32 s2, 256
    s_cbranch_scc1 EXIT
    s_load_dwordx16 s[8:23], s[0:1], 0
    s_load_dwordx8 s[24:31], s[0:1], 64
    s_load_dwordx2 s[32:33], s[0:1], 96
    v_lshrrev_b32 v1, 6, v0
    s_getreg_b32 s{sXCC}, hwreg(HW_REG_XCC_ID, 0, 4)
    v_readfirstlane_b32 s{sW}, v1
    s_waitcnt lgkmcnt(0)
    """)
    set_srd(a, SRD_WS, S_WS, WS_END)
    if os.environ.get("FAKEX"):
        a(f"""s_mul_hi_u32 s48, s2, {(1 << 32) // 11 + 1}
        s_mul_i32 s48, s48, 11
        s_sub_u32 s{sXCC}, s2, s48""")
    a(f"""
    v_mov_b32 v2, 163836
    s_cmp_lg_u32 s{sW}, 0
    s_cbranch_scc1 ROLE_WAIT
    s_mov_b64 exec, 1
    v_mov_b32 v3, 1
    s_min_u32 s48, s{sXCC}, 8
    s_lshl_b32 s49, s48, 2
    s_add_u32 s49, s49, {D_TICK}
    v_mov_b32 v4, s49
    global_atomic_add v6, v4, v3, s[{S_DBG}:{S_DBG+1}] sc0
    s_lshl_b32 s{sROLE}, s48, 5
    s_waitcnt vmcnt(0)
    v_readfirstlane_b32 s49, v6
    s_add_u32 s{sROLE}, s{sROLE}, s49
    s_cmp_lt_u32 s49, 32
    s_cselect_b32 s49, s48, 8
    s_cmp_lt_u32 s49, 8
    s_cbranch_scc1 ROLE_SET
    v_mov_b32 v4, {D_OVF}
    global_atomic_add v6, v4, v3, s[{S_DBG}:{S_DBG+1}] sc0
    s_waitcnt vmcnt(0)
    v_readfirstlane_b32 s50, v6
    s_mov_b64 exec, -1
    """)
    all_arrived(a, "ROLE_ALL", 4, 6, 51, 52, "ROLE_NONE")
    a("s_mov_b32 s53, 0")
    a.label("ROLE_SCAN")
    a(f"""v_readlane_b32 s48, v6, s53
    s_min_u32 s48, s48, 32
    s_sub_u32 s49, 32, s48
    s_lshl_b32 s{sROLE}, s53, 5
    s_add_u32 s{sROLE}, s{sROLE}, s48
    s_add_u32 s{sROLE}, s{sROLE}, s50
    s_cmp_lt_u32 s50, s49
    s_cbranch_scc1 ROLE_SET
    s_sub_u32 s50, s50, s49
    s_add_u32 s53, s53, 1
    s_cmp_lt_u32 s53, 8
    s_cbranch_scc1 ROLE_SCAN
    """)
    a.label("ROLE_NONE")
    a(f"s_mov_b32 s{sROLE}, 256")
    a.label("ROLE_SET")
    a(f"""
    v_mov_b32 v3, s{sROLE}
    ds_write_b32 v2, v3
    s_waitcnt lgkmcnt(0)
    s_mov_b64 exec, -1
    """)
    a.label("ROLE_WAIT")
    a(f"""
    s_barrier
    ds_read_b32 v3, v2
    s_waitcnt lgkmcnt(0)
    v_readfirstlane_b32 s{sROLE}, v3
    s_barrier
    """)

def build(prof=False, roles=("chain",)):
    a = Asm()
    RT["on"] = bool(prof)
    if prof: a("s_memrealtime s[4:5]")
    prologue(a)
    if prof:
        a(f"""v_mov_b32 v10, s4
        s_lshl_b32 s2, s{sROLE}, 6
        s_add_u32 s2, s2, {WS_PROF + 640*KB}
        v_mov_b32 v11, 0
        buffer_store_dword v10, v11, {W}, s2 offen""")
        if os.environ.get("RTDBG"):
            a(f"""s_cmp_lg_u32 s{sROLE}, 0
            s_cbranch_scc1 RTD0
            v_and_b32 v10, 0xffffff, v10
            global_store_dword v11, v10, s[{S_DBG}:{S_DBG+1}]""")
            a.label("RTD0")
        rt(a, 1)
    a(f"""s_cmp_ge_u32 s{sROLE}, 160
    s_cbranch_scc1 REST
    s_cmp_ge_u32 s{sROLE}, 32
    s_cbranch_scc1 QA
    s_mov_b32 s{sH}, s{sROLE}
    """)
    chain_role(a, prof)
    qa.qa_role(a)
    a.label("REST")
    a(f"""s_cmp_ge_u32 s{sROLE}, 224
    s_cbranch_scc1 INIT""")
    pa.pa_role(a, 160)
    op.op_role(a, 160)
    init_role(a)
    a.label("EXIT")
    a("s_endpgm")
    body = render(fix_hazards(a.lines, verbose=True))
    hdr = open("concat_heads__spectral_gfnet__memory_aug_recurrent_mem_tr__prompt.s.ref").read().split("\n")
    head = [l for l in hdr if l.startswith(";") and "@launch" not in l][:15]
    txt = "\n".join(head) + "\n; @launch grid=(256,1,1) block=(256,1,1) lds=163840\n"
    txt += f""".amdgcn_target "amdgcn-amd-amdhsa--gfx950"
.text
.globl {KNAME}
.p2align 8
.type {KNAME},@function
{KNAME}:
""" + body + f""".section .rodata,"a"
.p2align 6
.amdhsa_kernel {KNAME}
  .amdhsa_next_free_vgpr 512
  .amdhsa_next_free_sgpr 102
  .amdhsa_accum_offset 256
  .amdhsa_group_segment_fixed_size 0
  .amdhsa_kernarg_size 104
  .amdhsa_user_sgpr_count 2
  .amdhsa_user_sgpr_kernarg_segment_ptr 1
  .amdhsa_system_sgpr_workgroup_id_x 1
.end_amdhsa_kernel
"""
    return txt

if __name__ == "__main__":
    out = sys.argv[1]
    prof = True if "prof" in sys.argv[2:] else ("rt" if "rt" in sys.argv[2:] else False)
    open(out, "w").write(build(prof=prof))
```

```python
from asmlib import *
from layout import *
import os

S_AX, S_WR, S_WI, S_BX, S_MEM0, S_WQ, S_WK, S_WV, S_WO, S_SEG, S_OUT, S_DBG, S_WS = 8,10,12,14,16,18,20,22,24,26,28,30,32
SRD_WS = 36
SRD_T  = 40
sW, sROLE, sXCC = 44, 45, 46
sLKX = 47
sC2, sONE2 = 48, 50
sH, sS, sT0, sT1, sT2, sCNT, sINB_R, sINB_R2, sKXO, sFREE0, sMR, sKX, sVX, sKM, sTAG, sPOM, sPROF, sPF = range(52, 70)
sXM = 90
sINW = 98
sMODE = 35
sHM = 100
sPV = 12
sHW, sHR, sFM, sRDY = 4, 5, 6, 7
sKVA = 0
sKV = 8

SPIN_MAX = 1 << 16
CFG = {k: int(os.environ.get(k.upper(), v)) for k, v in dict(d1=296, d2=0, adv=1, advp=1, dep=3, gap=64, pub=1, pad=256, bar=15, w1=4, join=8, dr=192, pace=12, pk=5, pa=11, pb=10, ga=40, g3=48, light=0, only=6, at=-1, e1=0, e2=0, e3=1, e4=1, hm=0, pg=4, pq=40, pd=6, hr=8, hb=4, p0=40, np=0, ps=32, pf=4, ds=0, g2=48, re=2, fast=1, gate=1).items()}
INB_STRIDE = 8192 + CFG["pad"]

L_WL = 0
L_MB = 131072
L_OX = L_MB
L_KXB = L_MB + 8192
L_X = L_KXB + 16384
XP = 1088
L_SEL = L_X + 4 * XP
L_JUNK = L_SEL + 1024

vLB, vG, vWL1, vG2, vXW, vXR, vOW, vIDX, vPS, vMS, vHR, vT = range(12)
PM = 12
aQK, aV, X, VX, MA, RING = 16, 32, 40, 56, 64, 96

KORD = (2, 4, 6, 3, 5, 7)
QKSEQ = [(m, T, kk) for kk in range(2) for (m, T) in ((0, 0), (1, 0), (0, 1), (1, 1), (2, 0), (2, 1))] + \
        [(m, T, kk) for kk in KORD for (m, T) in ((0, 0), (1, 0), (0, 1))] + [(1, 1, kk) for kk in KORD]
VSEQ = [(2, T, kk) for kk in range(2, 8) for T in range(2)]
OSEQ = [(3, p, 0) for p in range(4)] + [(3, p, kk) for p in range(4) for kk in range(1, 4)]
RB0 = 24
RBS = (12, 12, 13, 14, 18, 18, 19, 19)
def wfrag_map():
    m = {}
    for i in range(4):
        m[QKSEQ[i]] = ("lds", i, i)
        m[QKSEQ[RB0 + i]] = ("lds", 4 + i, i)
        m[VSEQ[2 + i]] = ("lds", 8 + i, i)
        m[OSEQ[12 + i]] = ("lds", 12 + i, i)
    nxt = 128
    for k in QKSEQ + VSEQ + OSEQ:
        if k not in m:
            m[k] = ("reg", nxt); nxt += 8
    assert nxt == 512
    return m
WF = wfrag_map()
def wop(key):
    e = WF[key]
    return wr(e[1], 8) if e[0] == "reg" else vr(RING + 8 * e[2], 8)

class LdsQ:
    def __init__(self, a): self.a = a; self.n = 0
    def op(self, text):
        self.a(text); self.n += 1; return self.n
    def wait(self, tok):
        k = self.n - tok
        self.a(f"s_waitcnt lgkmcnt({min(k, 15)})")

def ring_load(rnd):
    L = []
    for slot in range(4):
        f = 4 * rnd + slot
        base, off = (vG, f * 8192) if f < 8 else (vWL1, (f - 8) * 8192)
        for hh in range(2):
            L.append(f"ds_read_b128 {vr(RING + 8*slot + 4*hh, 4)}, v{base} offset:{off + 1024*hh}")
    return L

def set_srd(a, srd, sptr, nbytes):
    a(f"""s_mov_b32 s{srd}, s{sptr}
    s_mov_b32 s{srd+1}, s{sptr+1}
    s_mov_b32 s{srd+2}, {nbytes}
    s_mov_b32 s{srd+3}, 0x20000""")

W = f"s[{SRD_WS}:{SRD_WS+3}]"

RT = {"on": False}
def rt(a, k, vt=126):
    if not RT["on"]: return
    lab = a.uid("RT")
    if os.environ.get("RTDBG"):
        MAP = {(0,1):5, (0,2):6, (0,4):7, (0,7):8, (32,4):9, (32,7):10, (160,2):11, (160,3):12, (160,4):13, (160,5):14, (160,7):15}
        a(f"s_cmp_lg_u32 s{sW}, 0\ns_cbranch_scc1 {lab}\ns_mov_b32 s3, 0")
        for (r, kk), wd in MAP.items():
            if kk == k: a(f"s_cmp_eq_u32 s{sROLE}, {r}\ns_cselect_b32 s3, {4*wd}, s3")
        a(f"""s_cmp_eq_u32 s3, 0
        s_cbranch_scc1 {lab}
        v_mov_b32 v{vt+1}, s3
        s_memrealtime s[2:3]
        s_waitcnt lgkmcnt(0)
        s_and_b32 s2, s2, 0xffffff
        v_mov_b32 v{vt}, s2
        global_store_dword v{vt+1}, v{vt}, s[{S_DBG}:{S_DBG+1}]
        s_waitcnt vmcnt(0)""")
        a.label(lab)
        return
    a(f"""s_cmp_lg_u32 s{sW}, 0
    s_cbranch_scc1 {lab}
    s_memrealtime s[2:3]
    s_waitcnt lgkmcnt(0)
    v_mov_b32 v{vt}, s2
    s_lshl_b32 s2, s{sROLE}, 6
    s_add_u32 s2, s2, {WS_PROF + 640*KB + 4*k}
    v_mov_b32 v{vt+1}, 0
    buffer_store_dword v{vt}, v{vt+1}, {W}, s2 offen
    s_waitcnt vmcnt(0)""")
    a.label(lab)

def delay(a, cyc):
    n = cyc // 4
    while n > 0:
        k = min(n, 16); a(f"s_nop {k-1}"); n -= k

def all_arrived(a, name, va, vd, sC, sT, fail, early=None):
    a(f"""v_mbcnt_lo_u32_b32 v{va}, -1, 0
    v_and_b32 v{va}, 15, v{va}
    v_lshlrev_b32 v{va}, 2, v{va}
    s_mov_b32 s{sC}, 0""")
    a.label(name)
    a(f"""global_load_dword v{vd}, v{va}, s[{S_DBG}:{S_DBG+1}] offset:{D_TICK} sc1
    s_add_u32 s{sC}, s{sC}, 1
    s_cmp_gt_u32 s{sC}, {SPIN_MAX}
    s_cbranch_scc1 {fail}
    s_waitcnt vmcnt(0)
    v_readlane_b32 s{sT}, v{vd}, 0""")
    if early: a(f"s_cmp_ge_u32 s{sT}, 32\ns_cbranch_scc1 {early}")
    for i in range(1, 9): a(f"v_readlane_b32 vcc_lo, v{vd}, {i}\ns_add_u32 s{sT}, s{sT}, vcc_lo")
    a(f"""s_cmp_lt_u32 s{sT}, 256
    s_cbranch_scc1 {name}""")

def init_role(a):
    a.label("INIT")
    a(f"""s_cmp_ge_u32 s{sROLE}, 256
    s_cbranch_scc1 EXIT
    s_sub_u32 s48, s{sROLE}, 224
    v_lshlrev_b32 v1, 4, v0
    v_mov_b64 v[4:5], -1
    v_mov_b64 v[6:7], -1
    s_mul_i32 s49, s48, {INB_STRIDE}
    s_add_u32 s49, s49, {WS_INBOX}
    buffer_store_dwordx4 v[4:7], v1, {W}, s49 offen sc1
    s_add_u32 s49, s49, 4096
    buffer_store_dwordx4 v[4:7], v1, {W}, s49 offen sc1
    v_lshlrev_b32 v2, 2, v0
    s_lshl_b32 s49, s48, 10
    s_add_u32 s50, s49, {WS_MBUF}
    buffer_store_dword v4, v2, {W}, s50 offen sc1
    s_add_u32 s50, s49, {WS_HINT}
    buffer_store_dword v4, v2, {W}, s50 offen sc1
    v_mov_b32 v3, 0
    s_add_u32 s50, s49, {WS_FLAGS}
    buffer_store_dword v3, v2, {W}, s50 offen sc1
    s_waitcnt vmcnt(0)
    v_mov_b32 v4, 1
    v_mov_b32 v5, {D_INIT}
    s_mov_b64 exec, 1
    global_atomic_add v5, v4, s[{S_DBG}:{S_DBG+1}]
    s_mov_b64 exec, -1
    s_cmp_eq_u32 s{sROLE}, 224
    s_cbranch_scc1 PA""")

def chain_startup(a):
    t0, t1, t2, t3, t4, t5, t6, t7 = 16, 17, 18, 19, 20, 21, 22, 23
    vLane, vDQ, vDO, vTR, vTA, vM0, vTO = 24, 25, 26, 27, 28, 30, 31
    a(f"""
    v_and_b32 v{vLane}, 63, v0
    v_lshlrev_b32 v{vLB}, 4, v{vLane}
    s_lshl_b32 s{sT0}, s{sW}, 11
    v_add_u32 v{vG}, s{sT0}, v{vLB}
    v_add_u32 v{vLB}, {L_MB}, v{vLB}
    v_add_u32 v{vWL1}, 0x10000, v{vG}
    v_add_u32 v{vG2}, {L_MB}, v{vG}
    """)
    a(f"""
    s_mul_i32 s{sINB_R}, s{sH}, {INB_STRIDE}
    s_add_u32 s{sINB_R}, s{sINB_R}, {WS_INBOX}
    s_lshl_b32 s{sT0}, s{sW}, 11
    s_sub_u32 s{sINB_R}, s{sINB_R}, s{sT0}
    s_add_u32 s{sINB_R2}, s{sINB_R}, 4096
    s_lshl_b32 s{sHW}, s{sH}, 2
    s_add_u32 s{sHW}, s{sHW}, {WS_HINT}
    s_and_b32 s{sHR}, s{sH}, 7
    s_lshl_b32 s{sHR}, s{sHR}, 7
    s_add_u32 s{sHR}, s{sHR}, {WS_HINT}
    s_lshl_b32 s{sFM}, s{sH}, 7
    s_add_u32 s{sKVA}, s{S_WS}, s{sFM}
    s_addc_u32 s{sKVA+1}, s{S_WS+1}, 0
    s_add_u32 s{sFM}, s{sFM}, {WS_FLAGS + F_M}
    s_mov_b32 s{sRDY}, 0""")
    a(f"""
    v_lshrrev_b32 v{t0}, 4, v{vLane}
    s_and_b32 s{sT0}, s{sW}, 1
    s_lshl_b32 s{sT1}, s{sT0}, 2
    v_add_u32 v{t1}, s{sT1}, v{t0}
    v_lshlrev_b32 v{t1}, 1, v{t1}
    v_and_b32 v{t2}, 15, v{vLane}
    v_xor_b32 v{t1}, v{t1}, v{t2}
    v_lshlrev_b32 v{t1}, 4, v{t1}
    v_lshrrev_b32 v{t2}, 1, v{t0}
    v_and_b32 v{t3}, 1, v{t0}
    v_lshl_add_u32 v{vDQ}, v{t2}, 4, v{t3}
    s_lshl_b32 s{sT1}, s{sW}, 2
    v_add_u32 v{vDQ}, s{sT1}, v{vDQ}
    v_lshl_add_u32 v{vDQ}, v{vDQ}, 13, v{t1}
    s_lshl_b32 s{sT1}, s{sH}, 8
    v_add_u32 v{vDQ}, s{sT1}, v{vDQ}
    v_lshl_add_u32 v{t2}, v{t2}, 5, v{t3}
    s_lshl_b32 s{sT0}, s{sT0}, 4
    s_lshr_b32 s{sT1}, s{sW}, 1
    s_lshl_b32 s{sT1}, s{sT1}, 2
    s_add_u32 s{sT0}, s{sT0}, s{sT1}
    v_add_u32 v{t2}, s{sT0}, v{t2}
    v_and_b32 v{t3}, 128, v{t1}
    v_add_u32 v{t1}, v{t1}, v{t3}
    v_lshl_add_u32 v{vDO}, v{t2}, 10, v{t1}
    s_lshl_b32 s{sT1}, s{sH}, 17
    v_add_u32 v{vDO}, s{sT1}, v{vDO}
    """)
    a(f"""
    v_lshrrev_b32 v{t0}, 4, v{vLane}
    v_bfe_u32 v{t1}, v{vLane}, 2, 2
    v_and_b32 v{t2}, 3, v{vLane}
    v_and_b32 v{t3}, 1, v{t0}
    v_lshl_add_u32 v{t3}, v{t3}, 2, v{t1}
    v_lshlrev_b32 v{t3}, 5, v{t3}
    v_lshl_add_u32 v{t3}, v{t2}, 3, v{t3}
    v_lshl_add_u32 v{t3}, v{t1}, 8, v{t3}
    v_lshl_add_u32 v{vTR}, v{t0}, 10, v{t3}
    v_and_b32 v{t4}, 1, v{t1}
    v_lshrrev_b32 v{t5}, 1, v{t1}
    v_xor_b32 v{t5}, v{t5}, v{t4}
    v_and_b32 v{t3}, 1, v{t0}
    v_lshl_add_u32 v{t5}, v{t3}, 2, v{t5}
    v_lshlrev_b32 v{t5}, 5, v{t5}
    v_lshl_add_u32 v{t5}, v{t2}, 3, v{t5}
    v_lshl_add_u32 v{t5}, v{t4}, 8, v{t5}
    v_lshl_add_u32 v{vTO}, v{t0}, 10, v{t5}
    s_lshl_b32 s{sT2}, s{sW}, 10
    """)
    ptrs = [S_WQ, S_WK, S_WV, S_WO]
    def issue(c):
        mat, half = c >> 1, c & 1
        set_srd(a, SRD_T, ptrs[mat], 4 * MB)
        for tl in range(4):
            for m in range(4):
                if mat < 3:
                    so = (64 * (2 * tl + half) + 32 * (m >> 1) + 2 * (m & 1)) * 8192
                    v = vDQ
                else:
                    so = (64 * (tl & 1) + 8 * (m >> 1) + 2 * (m & 1)) * 1024 + (tl >> 1) * 512 + half * 128
                    v = vDO
                a(f"""s_add_u32 m0, s{sT2}, {(c & 1) * 65536 + (tl * 4 + m) * 4096}
                s_mov_b32 s{sT0}, {so}
                buffer_load_dwordx4 v{v}, s[{SRD_T}:{SRD_T+3}], s{sT0} offen lds""")
    def hold(f): return 32 + 8 * (f if f < 12 else f - 12)
    def dest(key):
        e = WF[key]
        return e[1] if e[0] == "reg" else hold(e[1])
    def consume(c):
        mat, half = c >> 1, c & 1
        n = 0
        if mat < 3:
            for T in range(2):
                for lo in range(4):
                    va = vTA + (n & 1); n += 1
                    a(f"""s_lshl_b32 s{sT0}, s{sW}, 6
                    s_add_u32 s{sT0}, s{sT0}, {32 * T}
                    s_xor_b32 s{sT1}, s{sW}, {lo}
                    s_lshl_b32 s{sT1}, s{sT1}, 14
                    s_add_u32 s{sT1}, s{sT1}, {half * 65536}
                    v_xor_b32 v{va}, s{sT0}, v{vTR}
                    v_add_u32 v{va}, s{sT1}, v{va}""")
                    d = dest((mat, T, 2 * lo + half))
                    for m in range(4):
                        a(f"ds_read_b64_tr_b16 {wr(d + 2*m, 2)}, v{va} offset:{m*4096}")
        else:
            for pl in range(2):
                for kk in range(4):
                    va = vTA + (n & 1); n += 1
                    a(f"""s_xor_b32 s{sT1}, s{sW}, {kk}
                    s_and_b32 s{sT0}, s{sT1}, 1
                    s_lshl_b32 s{sCNT}, s{sT0}, 9
                    s_lshl_b32 s{sT0}, s{sT0}, 6
                    s_xor_b32 s{sT0}, s{sT0}, {64 * pl}
                    s_and_b32 s{sS}, s{sW}, 1
                    s_lshl_b32 s{sS}, s{sS}, 7
                    s_add_u32 s{sT0}, s{sT0}, s{sS}
                    s_lshr_b32 s{sT1}, s{sT1}, 1
                    s_and_b32 s{sS}, s{sW}, 2
                    s_add_u32 s{sT1}, s{sT1}, s{sS}
                    s_lshl_b32 s{sT1}, s{sT1}, 14
                    s_add_u32 s{sT1}, s{sT1}, s{sCNT}
                    s_add_u32 s{sT1}, s{sT1}, {half * 65536}
                    v_xor_b32 v{va}, s{sT0}, v{vTO}
                    v_add_u32 v{va}, s{sT1}, v{va}""")
                    d = dest((3, 2 * half + pl, kk))
                    for m in range(4):
                        a(f"ds_read_b64_tr_b16 {wr(d + 2*m, 2)}, v{va} offset:{m*4096}")
        a("s_waitcnt lgkmcnt(0)")
    def spill(fs):
        for f in fs:
            base, off = (vG, f * 8192) if f < 8 else (vWL1, (f - 8) * 8192)
            for hh in range(2):
                a(f"ds_write_b128 v{base}, {vr(hold(f) + 4*hh, 4)} offset:{off + 1024*hh}")
        a("s_waitcnt lgkmcnt(0)")
    issue(0); issue(1)
    a(f"""
    v_and_b32 v{t0}, 15, v{vLane}
    v_lshrrev_b32 v{t1}, 4, v{vLane}
    v_and_b32 v{t2}, 3, v{vLane}
    v_bfe_u32 v{t3}, v{vLane}, 2, 2
    """)
    a(f"""
    s_lshl_b32 s{sT0}, s{sW}, 8
    s_add_u32 s{sT1}, s{sT0}, {L_X}
    v_mul_u32_u24 v{t5}, {XP}, v{t1}
    v_lshl_add_u32 v{t5}, v{t0}, 3, v{t5}
    v_add_u32 v{vXW}, s{sT1}, v{t5}
    """)
    a(f"""
    v_and_b32 v{t4}, 1, v{t1}
    v_lshl_add_u32 v{t4}, v{t4}, 2, v{t3}
    v_lshrrev_b32 v{t5}, 1, v{t1}
    v_lshl_add_u32 v{t4}, v{t5}, 4, v{t4}
    v_mul_u32_u24 v{t5}, {XP}, v{t2}
    v_lshl_add_u32 v{t4}, v{t4}, 3, v{t5}
    v_add_u32 v{vXR}, {L_X}, v{t4}
    v_and_b32 v{vHR}, 31, v{vLane}
    v_lshlrev_b32 v{vHR}, 2, v{vHR}
    v_cmp_lt_u32 vcc, 1, v{t2}
    v_mov_b32 v{t5}, 0x4444
    v_mov_b32 v{t6}, 0xeeee
    v_cndmask_b32 v{vIDX}, v{t5}, v{t6}, vcc
    """)
    a(f"""
    v_and_b32 v{t4}, 1, v{vLane}
    v_lshl_add_u32 v{t7}, v{t3}, 1, v{t4}
    v_lshlrev_b32 v{t4}, 4, v{t7}
    v_lshl_add_u32 v{t4}, v{t1}, 7, v{t4}
    s_lshl_b32 s{sT0}, s{sW}, 9
    s_add_u32 s{sT0}, s{sT0}, {L_OX}
    v_add_u32 v{vOW}, s{sT0}, v{t4}
    v_mov_b32 v{t6}, 0x80000000
    """)
    a(f"""
    v_lshl_add_u32 v{t4}, v{t1}, 2, v{t2}
    v_lshlrev_b32 v{t4}, 4, v{t4}
    v_bfe_u32 v{t5}, v{vLane}, 2, 1
    v_lshl_add_u32 v{t4}, v{t5}, 3, v{t4}
    s_lshl_b32 s{sT0}, s{sH}, 8
    v_add_u32 v{t4}, s{sT0}, v{t4}
    v_cmp_lt_u32 vcc, 7, v{t0}
    v_cndmask_b32 v{vMS}, v{t4}, v{t6}, vcc
    s_lshl_b32 s{sT1}, s{sW}, 3
    v_bfe_u32 v{t5}, v{vLane}, 3, 1
    v_add_u32 v{t5}, s{sT1}, v{t5}
    v_mul_u32_u24 v{t5}, {INB_STRIDE}, v{t5}
    v_add_u32 v{vPS}, v{t5}, v{t4}
    """)
    a(f"""
    v_lshlrev_b32 v{t4}, 10, v{t7}
    v_bfe_u32 v{t5}, v{vLane}, 1, 1
    v_lshl_add_u32 v{t4}, v{t5}, 5, v{t4}
    v_lshrrev_b32 v{t5}, 1, v{t1}
    v_lshl_add_u32 v{t4}, v{t5}, 6, v{t4}
    v_and_b32 v{t5}, 1, v{t1}
    v_lshl_add_u32 v{vM0}, v{t5}, 4, v{t4}
    """)
    a(f"""
    v_and_b32 v{t5}, 1, v{vLane}
    v_lshlrev_b32 v{t5}, 4, v{t5}
    v_mov_b32 v{t6}, 0x3f80
    v_lshlrev_b32 v{t5}, v{t5}, v{t6}
    v_bfe_u32 v{t6}, v{vLane}, 1, 2
    """)
    for d in range(4):
        a(f"""v_cmp_eq_u32 vcc, {d}, v{t6}
        v_cndmask_b32 v{PM+d}, 0, v{t5}, vcc""")
    a(f"""ds_write_b128 v{vLB}, v[{PM}:{PM+3}] offset:{L_SEL-L_MB}
    s_waitcnt lgkmcnt(0)
    v_mov_b64 v[{PM}:{PM+1}], 0
    v_mov_b64 v[{PM+2}:{PM+3}], 0
    """)
    for c in range(8):
        a(f"s_waitcnt vmcnt({16 if c < 7 else 0})")
        a("s_barrier")
        consume(c)
        a("s_barrier")
        if c + 2 < 8: issue(c + 2)
        if c == 6: spill(range(0, 8))
    spill(range(8, 16))
    set_srd(a, SRD_T, S_MEM0, 8192)
    a(f"""
    s_lshl_b32 s{sT0}, s{sW}, 8
    buffer_load_dwordx4 {vr(MA,4)}, v{vM0}, s[{SRD_T}:{SRD_T+3}], s{sT0} offen
    buffer_load_dwordx4 {vr(MA+4,4)}, v{vM0}, s[{SRD_T}:{SRD_T+3}], s{sT0} offen offset:128
    s_mov_b32 s{sS}, -1
    s_lshl_b32 s{sT0}, s{sH}, 13
    s_add_u32 s{sKX}, s{sT0}, {WS_KX}
    s_add_u32 s{sVX}, s{sT0}, {WS_VX}
    s_lshl_b32 s{sT0}, s{sH}, 12
    s_add_u32 s{sKM}, s{sT0}, {WS_KM - 128*KB}
    s_lshl_b32 s{sT0}, s{sW}, 10
    s_sub_u32 s{sKM}, s{sKM}, s{sT0}
    s_mov_b32 s{sXM}, 0x33333333
    s_mov_b32 s{sXM+1}, 0x33333333
    s_mov_b32 s{sC2}, 0x3e0293ee
    s_mov_b32 s{sC2+1}, 0x3e0293ee
    s_mov_b32 s{sONE2}, 0x3f803f80
    s_mov_b32 s{sONE2+1}, 0x3f803f80
    """)
    for p in range(4): a(f"s_mov_b32 s{sINW+p}, {WS_INBOX + 2 * p * INB_STRIDE}")

def zlist(b, n):
    return [f"v_mov_b64 v[{b+i}:{b+i+1}], 0" for i in range(0, n, 2)]

def smf(acc, A, B):
    return f"v_smfmac_f32_16x16x64_bf16 {vr(acc,4)}, {vr(A,4)}, {B}, v{vIDX}"

NST = 10
def mark(a, prof, name):
    if (prof or MEAN) and os.environ.get("MARK") == name: a("s_memtime s[74:75]")
MEAN = bool(os.environ.get("MEAN"))
def stamp(a, prof, k):
    if MEAN and k in (6, 7):
        a(f"s_memtime s[{70+2*k}:{71+2*k}]")
        if k == 6:
            a(f"""s_waitcnt lgkmcnt(0)
            s_sub_u32 s76, s74, s84
            s_sub_u32 s77, s82, s84
            s_sub_u32 s78, s84, s79
            s_mov_b32 s79, s84
            s_cmp_ge_u32 s{sS}, 8
            s_cselect_b32 s76, s76, 0
            s_cselect_b32 s77, s77, 0
            s_cselect_b32 s78, s78, 0
            s_add_u32 s70, s70, s76
            s_add_u32 s71, s71, s77
            s_add_u32 s72, s72, s78
            s_cmp_lg_u32 s{sW}, 0""")
        return
    if prof:
        if CFG["light"] and k not in (7, 8, 9, CFG["only"]): return
        if k == 9: a(f"s_memrealtime s[{70+2*k}:{71+2*k}]")
        else: a(f"s_memtime s[{70+2*k}:{71+2*k}]")

PUB = X + 12
def pub_prepare(a, part=3):
    if part & 1:
        a(f"""s_lshl_b32 s{sT0}, s{sW}, 8
        v_add_u32 v{vT}, s{sT0}, v{vXR}
        ds_read_b64_tr_b16 {vr(PUB,2)}, v{vT}
        ds_read_b64_tr_b16 {vr(PUB+2,2)}, v{vT} offset:64""")
    if part & 2:
        a(f"""v_mov_b32_dpp v{aV+2}, v{aV} quad_perm:[2,3,2,3] row_mask:0xf bank_mask:0xf
        v_mov_b32_dpp v{aV+3}, v{aV+1} quad_perm:[2,3,2,3] row_mask:0xf bank_mask:0xf
        s_waitcnt lgkmcnt(0)
        s_mov_b64 exec, s[{sXM}:{sXM+1}]
        v_mov_b64 {vr(PUB,2)}, {vr(aV,2)}
        v_mov_b64 {vr(PUB+2,2)}, {vr(aV+2,2)}
        s_mov_b64 exec, -1""")
PUBST = f"buffer_store_dwordx4 {vr(PUB,4)}, v{vG}, {W}, s{sKM} offen sc1"
MR = X + 4
FLG = X + 10
def kv_min(a):
    for j in range(NG):
        a(f"s_lshl_b32 s{sKV+j}, s{sKV+j}, 2")
        if j: a(f"s_add_u32 s{sKV+j}, s{sKV+j}, {j}\ns_min_u32 s{sKV}, s{sKV}, s{sKV+j}")
def kv_gate(a, name, need_expr):
    a(need_expr)
    a(f"s_min_u32 s{sT1}, s{sT1}, 64")
    a.label(name)
    a(f"""s_cmp_ge_u32 s{sRDY}, s{sT1}
    s_cbranch_scc1 {name}_OK
    s_load_dwordx4 s[{sKV}:{sKV+3}], s[{sKVA}:{sKVA+1}], {WS_FLAGS + F_KV} glc
    s_add_u32 s{sCNT}, s{sCNT}, 1
    s_cmp_gt_u32 s{sCNT}, {SPIN_MAX}
    s_cbranch_scc1 CH_DONE
    s_waitcnt lgkmcnt(0)""")
    kv_min(a)
    a(f"""s_mov_b32 s{sRDY}, s{sKV}
    s_branch {name}""")
    a.label(name + "_OK")
def hop_prep(a, part=7):
    if part & 1:
        pub_prepare(a, 1)
        for l in ring_load(0): a(l)
    if part & 2:
        hop_prep2(a)
    if part & 4:
        pub_prepare(a, 2)
        for l in zlist(aQK + 4, 20): a(l)
def hop_prep2(a):
    for lo in range(1, 4): a(f"v_xor_b32 v{MR+lo}, {2048*lo}, v{vG2}")
    a(f"""s_add_u32 s{sPF}, s{sPF}, {256*KB*CFG["adv"]}
    s_sub_u32 s{sT0}, s{sFM}, {F_M - F_KV + 3}
    v_lshl_add_u32 v{MR}, v{vLB}, 1, s{sPF}
    s_mov_b64 exec, 0x8888
    v_lshrrev_b32 v{MR}, 2, v{vHR}
    v_add_u32 v{MR}, s{sT0}, v{MR}
    s_mov_b64 exec, -1
    v_mov_b32 v{FLG}, s{sS}
    v_sub_u32 v{FLG+1}, 0, v{vG}
    v_lshrrev_b32 v{FLG+1}, 1, v{FLG+1}
    s_add_u32 s{sKX}, s{sKX}, {256*KB*CFG["adv"]}
    s_add_u32 s{sVX}, s{sVX}, {256*KB*CFG["adv"]}
    s_mov_b32 m0, s{sLKX}""")

def chain_loop(a, tag, stf, prof=False):
    q = LdsQ(a)
    ck = vT
    a.label(f"CH_TOP_{tag}")
    Q0, K0, Q1, K1 = aQK, aQK + 4, aQK + 8, aQK + 12
    acc = lambda mat, T: (aQK + 8 * T + 4 * mat) if mat < 2 else aV + 4 * T
    N = len(QKSEQ)
    pre = {i: [] for i in range(N)}
    post = {i: [] for i in range(N)}
    W1 = CFG["w1"]
    JOIN, B2 = CFG["join"], CFG["bar"]
    x = lambda l: ("x", l, None)
    PB = CFG["pub"]
    post[1] = [f"v_max_u32 v{ck}, v{MA}, v{MA+2}"]
    pre[2] = [x(f"buffer_load_dwordx4 {vr(VX,4)}, v{vG}, {W}, s{sVX} offen sc1")]
    pre[W1] = [x("s_waitcnt vmcnt(3)")]
    post[W1] = [f"v_max3_u32 v{ck}, v{ck}, v{MA+4}, v{MA+6}"]
    post[W1+1] = [f"v_cmp_eq_u32 vcc, -1, v{ck}"]
    pre[6] = [x(f"buffer_load_dwordx4 {vr(VX+4,4)}, v{vG}, {W}, s{sVX} offen offset:1024 sc1")]
    pre[JOIN] += [x(f"s_cbranch_vccnz CH_RETRY_{tag}"), ("lab", f"CH_JOIN_{tag}", None)]
    if PB:
        pre[CFG["pa"]] += [x(PUBST)]
        pre[CFG["pb"]] += [x(f"buffer_store_dword v{FLG}, v{FLG+1}, {W}, s{sFM} offen sc1")]
    PB *= 2
    sc = step_scalars()
    mr = {kk: ("lds", f"ds_read_b128 {vr(MA+4*kk,4)}, v{MR+(kk>>1)} offset:{1024*(kk&1)}", f"m{kk}") for kk in range(2, 8)}
    pre[JOIN] += [x(f"s_waitcnt vmcnt(3)"), x("s_barrier"), mr[2]]
    pre[JOIN+1] += [mr[4], mr[6]]
    pre[B2] += [x(f"s_waitcnt vmcnt({2 + PB})"), x("s_barrier"), mr[3]]
    pre[B2+1] += [mr[5], mr[7]]
    if prof: pre[B2+1] += [x(f"s_mov_b64 exec, 0xffff\nbuffer_store_dword v{X+8}, v{X+9}, {W}, s34 offen\ns_mov_b64 exec, -1")]
    rB, rC = ring_load(1), ring_load(2)
    for i, sl in enumerate(RBS): pre[sl].append(("lds", rB[i], f"rB{i}"))
    for n, kk in enumerate(KORD): pre[11 + 3 * n].append(("w", f"m{kk}", None))
    for i in range(8): pre[RB0 + 1 + i].insert(0, ("lds", rC[i], f"rC{i}"))
    for i in range(4): pre[RB0 - 1 + i].append(("w", f"rB{2*i+1}", None))
    vm = [f"buffer_load_dwordx4 v{vG}, {W}, s{sKX} offen sc1 lds",
          f"buffer_load_dwordx4 v{vG}, {W}, s{sKX} offen offset:1024 sc1 lds",
          f"buffer_load_dword v{MR}, {W}, 0 offen sc1 lds"]
    for i, l in zip((17, 21, 28), vm): pre[i].insert(0 if i < 25 else 1, x(l))
    pre[13].append(x(f"s_add_u32 m0, s{sKXO}, s{sLKX}"))
    pre[22].append(x(f"s_xor_b32 s{sKXO}, s{sKXO}, {8192 ^ 16384}"))
    pre[27].append(x(f"s_mov_b32 m0, {L_JUNK}"))
    for i, l in zip((29, 30, 31, 32, 33, 33, 34, 34, 35, 35), sc): pre[i].append(x(l))
    assert len(sc) <= 10
    NY = len(vm) + PB + (1 if prof else 0)
    post[23].append(f"v_add_u32 v{vT}, s{sKXO}, v{vLB}")
    def fin2(b, dst): return [f"v_add_f32 v{b}, v{b}, v{b+2}", f"v_add_f32 v{b+1}, v{b+1}, v{b+3}", f"v_cvt_pk_bf16_f32 v{dst}, v{b}, v{b+1}"]
    f = fin2(Q0, Q0) + fin2(K0, Q0 + 1) + fin2(Q1, Q1)
    for i, l in enumerate(f[:7]): post[29 + i].append(l)
    tok = {}
    a("s_waitcnt vmcnt(3)")
    mark(a, prof, 's0')
    for i, key in enumerate(QKSEQ):
        a(smf(acc(key[0], key[1]), MA + 4 * key[2], wop(key)))
        for kind, l, name in pre[i]:
            if kind == "lds": tok[name] = q.op(l)
            elif kind == "w": q.wait(tok[l])
            elif kind == "lab": a.label(l)
            else: a(l)
        for l in post[i]: a(l)
        mark(a, prof, f"q{i}")
    vi = 0
    def vnext(n=1):
        nonlocal vi
        for _ in range(n):
            key = VSEQ[vi]; vi += 1
            a(smf(aV + 4*key[1], MA + 4*key[2], wop(key)))
    vnext()
    q.op(f"ds_write_b64 v{vXW}, {vr(Q0,2)}")
    a(f[7])
    vnext()
    q.wait(tok["rC7"])
    a(f[8])
    for l in fin2(K1, Q1 + 1): a(l)
    xw = q.op(f"ds_write_b64 v{vXW}, {vr(Q1,2)} offset:128")
    vnext(5)
    q.wait(xw)
    mark(a, prof, "xw")
    a("s_barrier")
    mark(a, prof, "b2")
    xr = []
    for k in range(8):
        xr.append(q.op(f"ds_read_b64_tr_b16 {vr(X+2*k,2)}, v{vXR} offset:{(k>>1)*256 + (k&1)*64}"))
        if k in (1, 3, 5, 7): vnext()
    kxl = [f"ds_read_b128 {vr(RING+4*i,4)}, v{vT} offset:{1024*i}" for i in range(8)]
    kx = [q.op(kxl[0]), q.op(kxl[1])]
    vnext()
    kx += [q.op(kxl[2])]
    assert vi == 12
    mark(a, prof, 's2')
    SX, SM, m_, t_ = aQK, aQK + 8, aQK + 12, aQK + 14
    OACC, OA, ONES, LA = MA, MA + 16, MA + 16, X + 4
    sfill = [f"v_mov_b64 {vr(ONES,2)}, s[{sONE2}:{sONE2+1}]", f"v_mov_b64 {vr(ONES+2,2)}, s[{sONE2}:{sONE2+1}]"] + zlist(OACC, 16)
    vfin = fin2(aV, aV) + fin2(aV + 4, aV + 1)
    def sm(acc_, A, ks):
        c = "0" if ks == 0 else vr(acc_, 4)
        a(f"v_mfma_f32_16x16x32_bf16 {vr(acc_,4)}, {vr(A,4)}, {vr(X+4*ks,4)}, {c}")
    q.wait(xr[1])
    for ks in range(4):
        sm(SM, X + 4*ks, ks)
        kx.append(q.op(kxl[3 + ks]))
        if ks == 3: kx.append(q.op(kxl[7]))
        q.wait(xr[2*ks+3] if ks < 3 else kx[0])
    fl = sfill + vfin
    for j in range(8):
        kt, ks = j >> 2, j & 3
        sm(SX + 4*kt, RING + 4*j, ks)
        if j < 7: q.wait(kx[j + 1])
        if j == 6:
            a(f"v_max3_f32 v{m_}, v{SM+2}, v{SM+3}, v{SX}")
            a(f"v_max3_f32 v{m_}, v{m_}, v{SX+1}, v{SX+2}")
        else:
            a(fl.pop(0)); a(fl.pop(0))
    rD = ring_load(3)
    for l in fl: a(l)
    a(f"v_max_f32 v{m_}, v{m_}, v{SX+3}")
    mark(a, prof, 's3')
    a(f"v_max3_f32 v{m_}, v{m_}, v{SX+4}, v{SX+5}")
    a(f"v_max3_f32 v{t_}, v{m_}, v{SX+6}, v{SX+7}")
    a(f"v_max3_f32 v{m_}, v{m_}, v{SX+6}, v{SX+7}")
    a(f"v_permlane16_swap_b32 v{m_}, v{t_}")
    a(f"v_max_f32 v{t_+1}, v{m_}, v{t_}")
    a(f"v_max_f32 v{m_}, v{m_}, v{t_}")
    a(f"v_permlane32_swap_b32 v{m_}, v{t_+1}")
    a(f"v_max_f32 v{m_}, v{m_}, v{t_+1}")
    a(f"v_mul_f32 v{m_}, s{sC2}, v{m_}")
    def pf(r): a(f"v_pk_fma_f32 {vr(r,2)}, {vr(r,2)}, s[{sC2}:{sC2+1}], {vr(m_,2)} op_sel_hi:[1,1,0] neg_lo:[0,0,1] neg_hi:[0,0,1]")
    P, OAc = X, X + 8
    mark(a, prof, "mx")
    pf(SM + 2)
    for i in range(4): pf(SX + 2*i)
    a(f"v_exp_f32 v{SM+2}, v{SM+2}")
    a(f"v_exp_f32 v{SM+3}, v{SM+3}")
    a(f"v_exp_f32 v{SX}, v{SX}")
    a(f"v_cvt_pk_bf16_f32 v{PM}, v{SM+2}, v{SM+3}")
    a(f"v_cvt_pk_bf16_f32 v{PM+3}, v{SM+2}, v{SM+3}")
    a(f"v_exp_f32 v{SX+1}, v{SX+1}")
    a(f"v_mfma_f32_16x16x16_bf16 {vr(LA,4)}, {vr(ONES,2)}, {vr(PM,2)}, 0")
    a(f"s_cmp_eq_u32 s{sS}, 63")
    a(f"v_exp_f32 v{SX+2}, v{SX+2}")
    a(f"v_mfma_f32_16x16x16_bf16 {vr(OAc,4)}, {vr(aV,2)}, {vr(PM,2)}, 0")
    a(f"s_cbranch_scc1 CH_LAST")
    a(f"v_exp_f32 v{SX+3}, v{SX+3}")
    a(f"v_mfma_f32_16x16x16_bf16 {vr(OAc+4,4)}, {vr(aV,2)}, {vr(PM+2,2)}, 0")
    for i in range(4, 8): a(f"v_exp_f32 v{SX+i}, v{SX+i}")
    for i in range(4): a(f"v_cvt_pk_bf16_f32 v{P+i}, v{SX+2*i}, v{SX+2*i+1}")
    OAD = aQK + 4
    a(f"v_mfma_f32_16x16x32_bf16 {vr(LA,4)}, {vr(ONES,4)}, {vr(P,4)}, {vr(LA,4)}")
    a(f"s_waitcnt vmcnt({NY})")
    a(f"v_xor_b32 v{OAD+1}, 512, v{vOW}")
    a(f"v_xor_b32 v{OAD+2}, 1024, v{vOW}")
    a(f"v_mfma_f32_16x16x32_bf16 {vr(OAc,4)}, {vr(VX,4)}, {vr(P,4)}, {vr(OAc,4)}")
    a(f"v_xor_b32 v{OAD+3}, 1536, v{vOW}")
    a(f"v_mfma_f32_16x16x32_bf16 {vr(OAc+4,4)}, {vr(VX+4,4)}, {vr(P,4)}, {vr(OAc+4,4)}")
    mark(a, prof, "pv")
    DP = "quad_perm:[0,1,0,1] row_mask:0xf bank_mask:0xf"
    a(f"v_rcp_f32_dpp v{t_}, v{LA} {DP}")
    for i in range(8):
        a(f"v_mul_f32_dpp v{OAc+i}, v{OAc+i}, v{t_} {DP}")
        if i == 3:
            a(f"v_cvt_pk_bf16_f32 v{OA}, v{OAc}, v{OAc+1}")
            a(f"v_cvt_pk_bf16_f32 v{OA+1}, v{OAc+2}, v{OAc+3}")
    a(f"v_cvt_pk_bf16_f32 v{OA+2}, v{OAc+4}, v{OAc+5}")
    a(f"v_cvt_pk_bf16_f32 v{OA+3}, v{OAc+6}, v{OAc+7}")
    mark(a, prof, 's4')
    if CFG["e1"]: a(f"s_mov_b64 exec, s[{sXM}:{sXM+1}]")
    ow = q.op(f"ds_write_b128 v{vOW}, {vr(OA,4)}")
    if CFG["e1"]: a(f"s_mov_b64 exec, -1")
    PK = X + 4
    SEL = aQK
    def fin(p):
        b = OACC + 4 * p
        return [f"v_cvt_pk_bf16_f32 v{PK+2*p}, v{b}, v{b+1}", f"v_cvt_pk_bf16_f32 v{PK+2*p+1}, v{b+2}, v{b+3}",
                f"v_bfi_b32 v{PK+2*p}, 1, s{sTAG}, v{PK+2*p}"]
    def pst(p): return f"buffer_store_dwordx2 {vr(PK+2*p,2)}, v{vPS}, {W}, s{sINW+p} offen {stf}"
    def osm(i): a(smf(OACC + 4*OSEQ[i][1], OA + 4*OSEQ[i][2], wop(OSEQ[i])))
    late = rD + [f"ds_read_b128 {vr(SEL,4)}, v{vLB} offset:{L_SEL-L_MB}"]
    rd = []
    for i in range(3):
        osm(i)
        if i >= 3 - CFG["re"]: rd.append(q.op(late.pop(0)))
    q.wait(ow)
    mark(a, prof, "ow")
    a("s_barrier")
    mark(a, prof, "b4")
    oa = [q.op(f"ds_read_b128 {vr(OA+4*k,4)}, v{OAD+k}") for k in range(1, 4)]
    osm(3)
    q.wait(oa[0])
    mark(a, prof, 's5')
    post = {8: fin(0)[0:2], 9: fin(0)[2:], 11: fin(1)[0:2], 12: fin(1)[2:], 14: fin(2)[0:2], 15: fin(2)[2:]}
    for i in range(4, 16):
        osm(i)
        n = 0
        while late and n < (1 if (i in post or i < 6 or i == 10) else 2):
            rd.append(q.op(late.pop(0))); n += 1
        if i < 6: q.wait(oa[i - 3])
        if i in (11, 12, 13, 14): q.wait(rd[2 * (i - 11) + 1])
        if i in (10, 13): a(pst((i - 10) // 3))
        if i == 15: a(f"s_cmp_lg_u32 s{sW}, 0")
        for l in post.get(i, []): a(l)
    assert not late
    a(pst(2))
    for l in fin(3): a(l)
    a(pst(3))
    stamp(a, prof, 6)
    a(f"s_cbranch_scc1 CH_HK_{tag}")
    HV = X + 8
    RA = X
    HV = aQK + 8
    a(f"""v_mov_b32 v{HV}, s{sS}
    v_lshlrev_b32 v{HV+1}, 5, v{vHR}
    v_mov_b32 v{HV+2}, -1""")
    hint = lambda r: f"""s_mov_b64 exec, 0xff
    buffer_store_dword v{r}, v{HV+1}, {W}, s{sHW} offen {stf}
    s_mov_b64 exec, -1"""
    delay(a, CFG["d1"])
    def sweep(base, pace=0):
        for m in range(8):
            a(f"buffer_load_dwordx4 {vr(base+4*m,4)}, v{vG}, {W}, s{sINB_R if m < 4 else sINB_R2} offen offset:{1024*(m&3)} sc1")
            if m < 7: delay(a, pace)
    def reduce_(base, younger, fail, peek=None):
        for m in range(8):
            b = base + 4 * m
            a(f"s_waitcnt vmcnt({7 - m + younger})")
            a(f"v_mfma_f32_16x16x32_bf16 {vr(RA,4)}, {vr(b,4)}, {vr(SEL,4)}, {'0' if m == 0 else vr(RA,4)}")
            if m == 0: a(f"v_xor_b32 v{ck}, s{sTAG}, v{b}")
            else: a(f"v_bitop3_b32 v{ck}, v{ck}, v{b}, s{sTAG} bitop3:0xf6")
            a(f"v_bitop3_b32 v{ck}, v{ck}, v{b+2}, s{sTAG} bitop3:0xf6")
            if peek and m == CFG["pk"]: a(f"ds_read_b32 v{X+8}, v{vLB} offset:{L_JUNK + 256 - L_MB}")
        if peek:
            a(f"""s_waitcnt lgkmcnt(0)
            v_cmp_eq_u32 vcc, s{sS}, v{X+8}
            s_cbranch_vccnz {peek}""")
        a(f"""v_and_b32 v{ck}, 1, v{ck}
        v_cmp_ne_u32 vcc, 0, v{ck}
        v_cvt_pk_bf16_f32 v{RA}, v{RA}, v{RA+1}
        v_cvt_pk_bf16_f32 v{RA+1}, v{RA+2}, v{RA+3}
        s_cbranch_vccnz {fail}
        buffer_store_dwordx2 {vr(RA,2)}, v{vMS}, {W}, s{sMR} offen {stf}""")
    DS = CFG["ds"]
    sweep(MA)
    if DS: sweep(RING)
    a(hint(HV))
    pub_prepare(a, 1)
    if not DS:
        for l in ring_load(0): a(l)
    hop_prep(a, 2)
    a(f"s_waitcnt lgkmcnt({2 if DS else 10})")
    reduce_(MA, 1, f"CH_RED2_{tag}")
    if prof and CFG["light"]: a("s_memtime s[72:73]")
    a.label(f"CH_MST_{tag}")
    hop_prep(a, 4)
    ld = f"""buffer_load_dwordx4 {vr(MA,4)}, v{vG}, {W}, s{sMR} offen sc1
    buffer_load_dwordx4 {vr(MA+4,4)}, v{vG}, {W}, s{sMR} offen offset:1024 sc1"""
    ld0, ld1 = ld.split("\n")
    assert not DS
    a.label(f"CH_POLL_{tag}")
    a("s_barrier")
    stamp(a, prof, 7)
    a(ld0); delay(a, CFG["ga"]); a(ld1)
    delay(a, CFG["g2"])
    a(f"buffer_load_dwordx4 v{vG}, {W}, s{sMR} offen sc1 lds")
    delay(a, CFG["g3"])
    a(f"buffer_load_dwordx4 v{vG}, {W}, s{sMR} offen offset:1024 sc1 lds")
    for l in zlist(aQK, 4): a(l)
    if prof:
        stamp(a, prof, 8)
        stamp(a, prof, 9)
        a(f"""s_waitcnt lgkmcnt(0)
        s_lshl_b32 s{sT0}, s{sS}, 6
        s_lshl_b32 s{sT1}, s{sW}, 12
        s_add_u32 s{sT0}, s{sT0}, s{sT1}
        v_mov_b32 v{X+8}, 0""")
        for k in range(NST):
            if not CFG["light"] or k in (1, 2, 6, 7, 8, 9): a(f"v_writelane_b32 v{X+8}, s{70+2*k}, {k}")
        a(f"v_writelane_b32 v{X+8}, s{sPROF}, {NST}")
        a(f"v_writelane_b32 v{X+8}, s{sCNT}, {NST+1}")
        a(f"""s_mov_b32 s{sPROF}, 0
        s_lshl_b32 s{sT1}, s{sH}, 14
        s_add_u32 s{sT0}, s{sT0}, s{sT1}
        s_add_u32 s34, s{sT0}, {WS_PROF - (L_MB >> 2)}
        v_lshrrev_b32 v{X+9}, 2, v{vLB}""")
    a(f"s_branch CH_TOP_{tag}")
    a.label(f"CH_RED2_{tag}")
    sweep(MA)
    a(f"""s_add_u32 s{sCNT}, s{sCNT}, 1
    s_cmp_gt_u32 s{sCNT}, {SPIN_MAX}
    s_cbranch_scc1 CH_DONE""")
    reduce_(MA, 0, f"CH_RED2_{tag}")
    if prof and CFG["light"]: a("s_memtime s[72:73]")
    delay(a, CFG["dr"])
    a(f"s_branch CH_MST_{tag}")
    a.label(f"CH_RETRY_{tag}")
    chk = f"""v_max3_u32 v{ck}, v{MA}, v{MA+2}, v{MA+4}
    v_max_u32 v{ck}, v{ck}, v{MA+6}
    v_cmp_eq_u32 vcc, -1, v{ck}"""
    a(f"""s_mov_b64 exec, vcc
    {ld}
    s_mov_b64 exec, -1""")
    if prof: a(f"s_add_u32 s{sPROF}, s{sPROF}, 1")
    a(f"""s_waitcnt vmcnt(4)
    ds_read_b128 {vr(MA+8,4)}, v{vG2}
    ds_read_b128 {vr(MA+12,4)}, v{vG2} offset:1024""")
    for l in zlist(aQK, 24): a(l)
    a(f"""s_mov_b64 exec, vcc
    s_waitcnt lgkmcnt(0)""")
    for i in range(0, 8, 2): a(f"v_mov_b64 {vr(MA+i,2)}, {vr(MA+8+i,2)}")
    a(f"""{chk}
    {ld}
    s_mov_b64 exec, -1
    s_cbranch_vccnz CH_RETRY2_{tag}""")
    a.label(f"CH_FIN_{tag}")
    a(f"""ds_write_b128 v{vG2}, {vr(MA,4)}
    ds_write_b128 v{vG2}, {vr(MA+4,4)} offset:1024""")
    for key in QKSEQ[:JOIN + 1]: a(smf(acc(key[0], key[1]), MA + 4 * key[2], wop(key)))
    a(f"""s_waitcnt vmcnt(0) lgkmcnt(0)
    s_branch CH_JOIN_{tag}""")
    a.label(f"CH_RETRY2_{tag}")
    a(f"""s_mov_b64 exec, vcc
    {ld}
    s_add_u32 s{sCNT}, s{sCNT}, 1""")
    if prof: a(f"s_add_u32 s{sPROF}, s{sPROF}, 1")
    a(f"""s_waitcnt vmcnt(4)
    {chk}
    s_cmp_gt_u32 s{sCNT}, {SPIN_MAX}
    s_cbranch_scc1 CH_DONE
    s_mov_b64 exec, -1
    s_cbranch_vccz CH_FIN_{tag}
    s_branch CH_RETRY2_{tag}""")
    a.label(f"CH_HK_{tag}")
    a(f"""s_cmp_eq_u32 s{sW}, 1
    s_cbranch_scc0 CH_HK23_{tag}""")
    NPR = CFG["pd"] + 1
    PRB = MA + 10
    hop_prep(a)
    delay(a, CFG["d1"] + CFG["p0"])
    for i in range(NPR - 1):
        a(f"buffer_load_dword v{PRB+i}, v{vHR}, {W}, s{sHR} offen sc1")
        delay(a, CFG["pg"] + CFG["pq"])
    a.label(f"CH_PROBE_{tag}")
    for i in range(NPR):
        a(f"""buffer_load_dword v{PRB+(i+NPR-1)%NPR}, v{vHR}, {W}, s{sHR} offen sc1
        s_waitcnt vmcnt({NPR-1})
        v_cmp_ne_u32 vcc, s{sS}, v{PRB+i}
        s_cbranch_vccz CH_POLL_{tag}""")
        if prof: a(f"s_add_u32 s{sPROF}, s{sPROF}, 0x100")
        delay(a, CFG["pg"] - (4 if prof else 0))
    a(f"""s_add_u32 s{sCNT}, s{sCNT}, 1
    s_cmp_gt_u32 s{sCNT}, {SPIN_MAX}
    s_cbranch_scc0 CH_PROBE_{tag}
    s_branch CH_DONE""")
    a.label(f"CH_HK23_{tag}")
    delay(a, 256)
    hop_prep(a)
    a(f"""s_waitcnt vmcnt(0)
    s_cmp_eq_u32 s{sW}, 2
    s_cbranch_scc1 CH_POLL_{tag}""")
    a(f"""v_mov_b32 v{X}, -1
    v_lshrrev_b32 v{X+1}, 2, v{vLB}
    s_waitcnt vmcnt(0)
    buffer_store_dword v{X}, v{X+1}, {W}, s{sPOM} offen {stf}""")
    if CFG["gate"]:
        a(f"""v_add_u32 v{ck}, {L_JUNK}, v{vHR}
        ds_read_b32 v{ck}, v{ck}
        s_waitcnt lgkmcnt(0)""")
        for j in range(NG): a(f"v_readlane_b32 s{sKV+j}, v{ck}, {4*j+3}")
        kv_min(a)
        a(f"s_max_u32 s{sRDY}, s{sRDY}, s{sKV}")
        kv_gate(a, f"CH_KV_{tag}", f"s_add_u32 s{sT1}, s{sS}, 3")
    a(f"s_branch CH_POLL_{tag}")

def step_scalars():
    return f"""s_add_u32 s{sS}, s{sS}, 1
    s_and_b32 s{sTAG}, s{sS}, 1
    s_mov_b32 s{sCNT}, 0
    s_add_u32 s{sT2}, s{sS}, 3
    s_and_b32 s{sT2}, s{sT2}, 3
    s_lshl_b32 s{sT0}, s{sT2}, 13
    s_add_u32 s{sPOM}, s{sT0}, s{sFREE0}
    s_xor_b32 s{sT0}, s{sT0}, 16384
    s_add_u32 s{sMR}, s{sT0}, {WS_MBUF}
    s_add_u32 s{sKM}, s{sKM}, {128*KB*CFG["advp"]}""".split("\n")

def chain_role(a, prof=False):
    a.label("CHAIN")
    if prof: a("s_memrealtime s[92:93]")
    chain_startup(a)
    rt(a, 2, X + 2)
    a(f"s_mov_b32 s{sMODE}, 1")
    all_arrived(a, "CH_ROSTER", X, X + 1, sCNT, sT0, "CH_DONE", early="CH_MODE")
    a(f"s_mov_b32 s{sMODE}, 0")
    a.label("CH_MODE")
    a(f"""s_mov_b32 s{sCNT}, 0
    v_mov_b32 v{X}, {D_INIT}""")
    a.label("CH_INIT")
    a(f"""global_load_dword v{X+1}, v{X}, s[{S_DBG}:{S_DBG+1}] sc1
    s_add_u32 s{sCNT}, s{sCNT}, 1
    s_waitcnt vmcnt(0)
    v_readfirstlane_b32 s{sT0}, v{X+1}
    s_cmp_gt_u32 s{sCNT}, {SPIN_MAX}
    s_cbranch_scc1 CH_DONE
    s_cmp_lt_u32 s{sT0}, 128
    s_cbranch_scc1 CH_INIT""")
    rt(a, 3, X + 2)
    if CFG["gate"]: kv_gate(a, "CH_KV0", f"s_mov_b32 s{sT1}, 2")
    a(f"""s_lshl_b32 s{sT0}, s{sW}, 11
    s_add_u32 s{sLKX}, s{sT0}, {L_MB}
    s_add_u32 m0, s{sLKX}, 8192
    s_mov_b32 s{sKXO}, 16384
    buffer_load_dwordx4 v{vG}, {W}, s{sKX} offen sc1 lds
    buffer_load_dwordx4 v{vG}, {W}, s{sKX} offen offset:1024 sc1 lds
    s_add_u32 s{sPF}, s{sVX}, s{sT0}
    s_sub_u32 s{sPF}, s{sPF}, {2*L_MB}
    s_sub_u32 s{sVX}, s{sVX}, {256*KB}
    v_lshlrev_b32 v{X+2}, 1, v{vLB}
    buffer_load_dword v{X+3}, v{X+2}, {W}, s{sPF} offen
    s_lshl_b32 s{sFREE0}, s{sH}, 8
    s_add_u32 s{sFREE0}, s{sFREE0}, {WS_MBUF - (L_MB >> 2)}
    s_mov_b32 s{sMR}, {WS_MBUF}
    s_mov_b32 s34, {WS_PROF + 600*KB}
    v_mov_b32 v{X+9}, 0
    s_mov_b32 s70, 0
    s_mov_b32 s71, 0
    s_mov_b32 s72, 0
    s_mov_b32 s{sPROF}, 0""")
    for l in ring_load(0): a(l)
    for l in zlist(aQK, 24): a(l)
    hop_prep2(a)
    a(f"""s_waitcnt vmcnt(0)
    ds_write_b128 v{vG2}, {vr(MA,4)}
    ds_write_b128 v{vG2}, {vr(MA+4,4)} offset:1024
    v_mov_b32 v{X}, -1
    ds_write_b32 v{vLB}, v{X} offset:{L_JUNK + 256 - L_MB}""")
    rt(a, 4, X + 2)
    if prof: a("s_memrealtime s[94:95]")
    a(f"""s_waitcnt lgkmcnt(0)
    s_cmp_eq_u32 s{sMODE}, {CFG['fast']}
    s_cbranch_scc0 CH_TOP_slow""")
    chain_loop(a, "fast", "", prof is True)
    chain_loop(a, "slow", "sc1", prof is True)
    a.label("CH_LAST")
    pub_prepare(a)
    a(PUBST)
    a(f"""v_mov_b32 v{MA+4}, 64
    v_sub_u32 v{MA+5}, 0, v{vG}
    v_lshrrev_b32 v{MA+5}, 1, v{MA+5}
    s_waitcnt vmcnt(0)
    s_barrier
    buffer_store_dword v{MA+4}, v{MA+5}, {W}, s{sFM} offen sc1""")
    if prof:
        a(f"""s_memrealtime s[96:97]
        s_waitcnt lgkmcnt(0)
        v_mov_b32 v{MA}, s92
        v_mov_b32 v{MA+1}, s94
        v_mov_b32 v{MA+2}, s96
        v_mov_b32 v{MA+3}, 0
        s_lshl_b32 s{sT0}, s{sH}, 4
        s_add_u32 s{sT0}, s{sT0}, {WS_PROF + 512*KB}
        buffer_store_dwordx4 {vr(MA,4)}, v{MA+3}, {W}, s{sT0} offen""")
    if MEAN:
        a(f"""v_mov_b32 v{MA+8}, s70
        v_mov_b32 v{MA+9}, s71
        v_mov_b32 v{MA+10}, s72
        v_mov_b32 v{MA+11}, 0
        s_lshl_b32 s{sT0}, s{sH}, 2
        s_add_u32 s{sT0}, s{sT0}, s{sW}
        s_lshl_b32 s{sT0}, s{sT0}, 4
        s_add_u32 s{sT0}, s{sT0}, {WS_PROF}
        buffer_store_dwordx4 {vr(MA+8,4)}, v{MA+11}, {W}, s{sT0} offen""")
    rt(a, 7)
    a.label("CH_DONE")
    a("""s_waitcnt vmcnt(0)
    s_endpgm""")
```

```python
from asmlib import *
from layout import *
import os

S_AX, S_WR, S_WI, S_BX, S_MEM0, S_WQ, S_WK, S_WV, S_WO, S_SEG, S_OUT, S_DBG, S_WS = 8,10,12,14,16,18,20,22,24,26,28,30,32
SRD_WS = 36
SRD_T  = 40
sW, sROLE, sXCC = 44, 45, 46
sLKX = 47
sC2, sONE2 = 48, 50
sH, sS, sT0, sT1, sT2, sCNT, sINB_R, sINB_R2, sKXO, sFREE0, sMR, sKX, sVX, sKM, sTAG, sPOM, sPROF, sPF = range(52, 70)
sXM = 90
sINW = 98
sMODE = 35
sHM = 100
sPV = 12
sHW, sHR, sFM, sRDY = 4, 5, 6, 7
sKVA = 0
sKV = 8

SPIN_MAX = 1 << 16
CFG = {k: int(os.environ.get(k.upper(), v)) for k, v in dict(d1=296, d2=0, adv=1, advp=1, dep=3, gap=64, pub=1, pad=256, bar=15, w1=4, join=8, dr=192, pace=12, pk=5, pa=11, pb=10, ga=40, g3=48, light=0, only=6, at=-1, e1=0, e2=0, e3=1, e4=1, hm=0, pg=4, pq=40, pd=6, hr=8, hb=4, p0=40, np=0, ps=32, pf=4, ds=0, g2=48, re=2, fast=1, gate=1).items()}
INB_STRIDE = 8192 + CFG["pad"]

L_WL = 0
L_MB = 131072
L_OX = L_MB
L_KXB = L_MB + 8192
L_X = L_KXB + 16384
XP = 1088
L_SEL = L_X + 4 * XP
L_JUNK = L_SEL + 1024

vLB, vG, vWL1, vG2, vXW, vXR, vOW, vIDX, vPS, vMS, vHR, vT = range(12)
PM = 12
aQK, aV, X, VX, MA, RING = 16, 32, 40, 56, 64, 96

KORD = (2, 4, 6, 3, 5, 7)
QKSEQ = [(m, T, kk) for kk in range(2) for (m, T) in ((0, 0), (1, 0), (0, 1), (1, 1), (2, 0), (2, 1))] + \
        [(m, T, kk) for kk in KORD for (m, T) in ((0, 0), (1, 0), (0, 1))] + [(1, 1, kk) for kk in KORD]
VSEQ = [(2, T, kk) for kk in range(2, 8) for T in range(2)]
OSEQ = [(3, p, 0) for p in range(4)] + [(3, p, kk) for p in range(4) for kk in range(1, 4)]
RB0 = 24
RBS = (12, 12, 13, 14, 18, 18, 19, 19)
def wfrag_map():
    m = {}
    for i in range(4):
        m[QKSEQ[i]] = ("lds", i, i)
        m[QKSEQ[RB0 + i]] = ("lds", 4 + i, i)
        m[VSEQ[2 + i]] = ("lds", 8 + i, i)
        m[OSEQ[12 + i]] = ("lds", 12 + i, i)
    nxt = 128
    for k in QKSEQ + VSEQ + OSEQ:
        if k not in m:
            m[k] = ("reg", nxt); nxt += 8
    assert nxt == 512
    return m
WF = wfrag_map()
def wop(key):
    e = WF[key]
    return wr(e[1], 8) if e[0] == "reg" else vr(RING + 8 * e[2], 8)

class LdsQ:
    def __init__(self, a): self.a = a; self.n = 0
    def op(self, text):
        self.a(text); self.n += 1; return self.n
    def wait(self, tok):
        k = self.n - tok
        self.a(f"s_waitcnt lgkmcnt({min(k, 15)})")

def ring_load(rnd):
    L = []
    for slot in range(4):
        f = 4 * rnd + slot
        base, off = (vG, f * 8192) if f < 8 else (vWL1, (f - 8) * 8192)
        for hh in range(2):
            L.append(f"ds_read_b128 {vr(RING + 8*slot + 4*hh, 4)}, v{base} offset:{off + 1024*hh}")
    return L

def set_srd(a, srd, sptr, nbytes):
    a(f"""s_mov_b32 s{srd}, s{sptr}
    s_mov_b32 s{srd+1}, s{sptr+1}
    s_mov_b32 s{srd+2}, {nbytes}
    s_mov_b32 s{srd+3}, 0x20000""")

W = f"s[{SRD_WS}:{SRD_WS+3}]"

RT = {"on": False}
def rt(a, k, vt=126):
    if not RT["on"]: return
    lab = a.uid("RT")
    if os.environ.get("RTDBG"):
        MAP = {(0,1):5, (0,2):6, (0,4):7, (0,7):8, (32,4):9, (32,7):10, (160,2):11, (160,3):12, (160,4):13, (160,5):14, (160,7):15}
        a(f"s_cmp_lg_u32 s{sW}, 0\ns_cbranch_scc1 {lab}\ns_mov_b32 s3, 0")
        for (r, kk), wd in MAP.items():
            if kk == k: a(f"s_cmp_eq_u32 s{sROLE}, {r}\ns_cselect_b32 s3, {4*wd}, s3")
        a(f"""s_cmp_eq_u32 s3, 0
        s_cbranch_scc1 {lab}
        v_mov_b32 v{vt+1}, s3
        s_memrealtime s[2:3]
        s_waitcnt lgkmcnt(0)
        s_and_b32 s2, s2, 0xffffff
        v_mov_b32 v{vt}, s2
        global_store_dword v{vt+1}, v{vt}, s[{S_DBG}:{S_DBG+1}]
        s_waitcnt vmcnt(0)""")
        a.label(lab)
        return
    a(f"""s_cmp_lg_u32 s{sW}, 0
    s_cbranch_scc1 {lab}
    s_memrealtime s[2:3]
    s_waitcnt lgkmcnt(0)
    v_mov_b32 v{vt}, s2
    s_lshl_b32 s2, s{sROLE}, 6
    s_add_u32 s2, s2, {WS_PROF + 640*KB + 4*k}
    v_mov_b32 v{vt+1}, 0
    buffer_store_dword v{vt}, v{vt+1}, {W}, s2 offen
    s_waitcnt vmcnt(0)""")
    a.label(lab)

def delay(a, cyc):
    n = cyc // 4
    while n > 0:
        k = min(n, 16); a(f"s_nop {k-1}"); n -= k

def all_arrived(a, name, va, vd, sC, sT, fail, early=None):
    a(f"""v_mbcnt_lo_u32_b32 v{va}, -1, 0
    v_and_b32 v{va}, 15, v{va}
    v_lshlrev_b32 v{va}, 2, v{va}
    v_add_u32 v{va}, {D_TICK - 4}, v{va}
    v_writelane_b32 v{va}, 0, 0
    s_mov_b32 s{sC}, 0""")
    a.label(name)
    a(f"""global_load_dword v{vd}, v{va}, s[{S_DBG}:{S_DBG+1}] sc1
    s_add_u32 s{sC}, s{sC}, 1
    s_cmp_gt_u32 s{sC}, {SPIN_MAX}
    s_cbranch_scc1 {fail}
    s_waitcnt vmcnt(0)
    v_readlane_b32 s{sT}, v{vd}, 0""")
    if early: a(f"s_cmp_ge_u32 s{sT}, 32\ns_cbranch_scc1 {early}")
    for i in range(1, 9): a(f"v_readlane_b32 vcc_lo, v{vd}, {i}\ns_add_u32 s{sT}, s{sT}, vcc_lo")
    a(f"""s_cmp_lt_u32 s{sT}, 256
    s_cbranch_scc1 {name}""")

def init_role(a):
    a.label("INIT")
    a(f"""s_cmp_ge_u32 s{sROLE}, 256
    s_cbranch_scc1 EXIT
    s_sub_u32 s48, s{sROLE}, 224
    v_lshlrev_b32 v1, 4, v0
    v_mov_b64 v[4:5], -1
    v_mov_b64 v[6:7], -1
    s_mul_i32 s49, s48, {INB_STRIDE}
    s_add_u32 s49, s49, {WS_INBOX}
    buffer_store_dwordx4 v[4:7], v1, {W}, s49 offen sc1
    s_add_u32 s49, s49, 4096
    buffer_store_dwordx4 v[4:7], v1, {W}, s49 offen sc1
    v_lshlrev_b32 v2, 2, v0
    s_lshl_b32 s49, s48, 10
    s_add_u32 s50, s49, {WS_MBUF}
    buffer_store_dword v4, v2, {W}, s50 offen sc1
    s_add_u32 s50, s49, {WS_HINT}
    buffer_store_dword v4, v2, {W}, s50 offen sc1
    v_mov_b32 v3, 0
    s_add_u32 s50, s49, {WS_FLAGS}
    buffer_store_dword v3, v2, {W}, s50 offen sc1
    s_waitcnt vmcnt(0)
    v_mov_b32 v4, 1
    v_mov_b32 v5, {D_INIT}
    s_mov_b64 exec, 1
    global_atomic_add v5, v4, s[{S_DBG}:{S_DBG+1}]
    s_mov_b64 exec, -1
    s_lshl_b32 s49, s48, 17""")
    set_srd(a, SRD_T, S_WO, 4 * MB)
    for i in range(32 * int(os.environ.get('WOPF', '0'))):
        a(f"""buffer_load_dwordx4 {vr(8 + 4*i, 4)}, v1, s[{SRD_T}:{SRD_T+3}], s49 offen
        s_add_u32 s49, s49, 4096""")
    a(f"""s_waitcnt vmcnt(0)
    s_cmp_eq_u32 s{sROLE}, 224
    s_cbranch_scc1 PA""")

def chain_startup(a):
    t0, t1, t2, t3, t4, t5, t6, t7 = 16, 17, 18, 19, 20, 21, 22, 23
    vLane, vDQ, vDO, vTR, vTA, vM0, vTO = 24, 25, 26, 27, 28, 30, 31
    a(f"""
    v_and_b32 v{vLane}, 63, v0
    v_lshlrev_b32 v{vLB}, 4, v{vLane}
    s_lshl_b32 s{sT0}, s{sW}, 11
    v_add_u32 v{vG}, s{sT0}, v{vLB}
    v_add_u32 v{vLB}, {L_MB}, v{vLB}
    v_add_u32 v{vWL1}, 0x10000, v{vG}
    v_add_u32 v{vG2}, {L_MB}, v{vG}
    """)
    a(f"""
    s_mul_i32 s{sINB_R}, s{sH}, {INB_STRIDE}
    s_add_u32 s{sINB_R}, s{sINB_R}, {WS_INBOX}
    s_lshl_b32 s{sT0}, s{sW}, 11
    s_sub_u32 s{sINB_R}, s{sINB_R}, s{sT0}
    s_add_u32 s{sINB_R2}, s{sINB_R}, 4096
    s_lshl_b32 s{sHW}, s{sH}, 2
    s_add_u32 s{sHW}, s{sHW}, {WS_HINT}
    s_and_b32 s{sHR}, s{sH}, 7
    s_lshl_b32 s{sHR}, s{sHR}, 7
    s_add_u32 s{sHR}, s{sHR}, {WS_HINT}
    s_lshl_b32 s{sFM}, s{sH}, 7
    s_add_u32 s{sKVA}, s{S_WS}, s{sFM}
    s_addc_u32 s{sKVA+1}, s{S_WS+1}, 0
    s_add_u32 s{sFM}, s{sFM}, {WS_FLAGS + F_M}
    s_mov_b32 s{sRDY}, 0""")
    a(f"""
    v_lshrrev_b32 v{t0}, 4, v{vLane}
    s_and_b32 s{sT0}, s{sW}, 1
    s_lshl_b32 s{sT1}, s{sT0}, 2
    v_add_u32 v{t1}, s{sT1}, v{t0}
    v_lshlrev_b32 v{t1}, 1, v{t1}
    v_and_b32 v{t2}, 15, v{vLane}
    v_xor_b32 v{t1}, v{t1}, v{t2}
    v_lshlrev_b32 v{t1}, 4, v{t1}
    v_lshrrev_b32 v{t2}, 1, v{t0}
    v_and_b32 v{t3}, 1, v{t0}
    v_lshl_add_u32 v{vDQ}, v{t2}, 4, v{t3}
    s_lshl_b32 s{sT1}, s{sW}, 2
    v_add_u32 v{vDQ}, s{sT1}, v{vDQ}
    v_lshl_add_u32 v{vDQ}, v{vDQ}, 13, v{t1}
    s_lshl_b32 s{sT1}, s{sH}, 8
    v_add_u32 v{vDQ}, s{sT1}, v{vDQ}
    v_lshl_add_u32 v{t2}, v{t2}, 5, v{t3}
    s_lshl_b32 s{sT0}, s{sT0}, 4
    s_lshr_b32 s{sT1}, s{sW}, 1
    s_lshl_b32 s{sT1}, s{sT1}, 2
    s_add_u32 s{sT0}, s{sT0}, s{sT1}
    v_add_u32 v{t2}, s{sT0}, v{t2}
    v_and_b32 v{t3}, 128, v{t1}
    v_add_u32 v{t1}, v{t1}, v{t3}
    v_lshl_add_u32 v{vDO}, v{t2}, 10, v{t1}
    s_lshl_b32 s{sT1}, s{sH}, 17
    v_add_u32 v{vDO}, s{sT1}, v{vDO}
    """)
    a(f"""
    v_lshrrev_b32 v{t0}, 4, v{vLane}
    v_bfe_u32 v{t1}, v{vLane}, 2, 2
    v_and_b32 v{t2}, 3, v{vLane}
    v_and_b32 v{t3}, 1, v{t0}
    v_lshl_add_u32 v{t3}, v{t3}, 2, v{t1}
    v_lshlrev_b32 v{t3}, 5, v{t3}
    v_lshl_add_u32 v{t3}, v{t2}, 3, v{t3}
    v_lshl_add_u32 v{t3}, v{t1}, 8, v{t3}
    v_lshl_add_u32 v{vTR}, v{t0}, 10, v{t3}
    v_and_b32 v{t4}, 1, v{t1}
    v_lshrrev_b32 v{t5}, 1, v{t1}
    v_xor_b32 v{t5}, v{t5}, v{t4}
    v_and_b32 v{t3}, 1, v{t0}
    v_lshl_add_u32 v{t5}, v{t3}, 2, v{t5}
    v_lshlrev_b32 v{t5}, 5, v{t5}
    v_lshl_add_u32 v{t5}, v{t2}, 3, v{t5}
    v_lshl_add_u32 v{t5}, v{t4}, 8, v{t5}
    v_lshl_add_u32 v{vTO}, v{t0}, 10, v{t5}
    s_lshl_b32 s{sT2}, s{sW}, 10
    """)
    ptrs = [S_WQ, S_WK, S_WV, S_WO]
    MORD = (1, 2, 0, 3)
    def issue(u):
        c, mh = u >> 1, u & 1
        mat, half = MORD[c >> 1], c & 1
        if u & 3 == 0: set_srd(a, SRD_T, ptrs[mat], 4 * MB)
        for tl in range(4):
            for m in (2 * mh, 2 * mh + 1):
                if mat < 3:
                    so = (64 * (2 * tl + half) + 32 * (m >> 1) + 2 * (m & 1)) * 8192
                    v = vDQ
                else:
                    so = (64 * (tl & 1) + 8 * (m >> 1) + 2 * (m & 1)) * 1024 + (tl >> 1) * 512 + half * 128
                    v = vDO
                a(f"""s_add_u32 m0, s{sT2}, {half * 65536 + (tl * 4 + m) * 4096}
                s_mov_b32 s{sT0}, {so}
                buffer_load_dwordx4 v{v}, s[{SRD_T}:{SRD_T+3}], s{sT0} offen lds""")
    def hold(f): return 32 + 8 * (f if f < 12 else f - 12)
    def dest(key):
        e = WF[key]
        return e[1] if e[0] == "reg" else hold(e[1])
    def addrs(omat):
        for n in range(8):
            va = 16 + n
            if not omat:
                T, lo = n >> 2, n & 3
                a(f"""s_lshl_b32 s{sT0}, s{sW}, 6
                s_add_u32 s{sT0}, s{sT0}, {32 * T}
                s_xor_b32 s{sT1}, s{sW}, {lo}
                s_lshl_b32 s{sT1}, s{sT1}, 14
                v_xor_b32 v{va}, s{sT0}, v{vTR}
                v_add_u32 v{va}, s{sT1}, v{va}""")
            else:
                pl, kk = n >> 2, n & 3
                a(f"""s_xor_b32 s{sT1}, s{sW}, {kk}
                s_and_b32 s{sT0}, s{sT1}, 1
                s_lshl_b32 s{sCNT}, s{sT0}, 9
                s_lshl_b32 s{sT0}, s{sT0}, 6
                s_xor_b32 s{sT0}, s{sT0}, {64 * pl}
                s_and_b32 s{sTAG}, s{sW}, 1
                s_lshl_b32 s{sTAG}, s{sTAG}, 7
                s_add_u32 s{sT0}, s{sT0}, s{sTAG}
                s_lshr_b32 s{sT1}, s{sT1}, 1
                s_and_b32 s{sTAG}, s{sW}, 2
                s_add_u32 s{sT1}, s{sT1}, s{sTAG}
                s_lshl_b32 s{sT1}, s{sT1}, 14
                s_add_u32 s{sT1}, s{sT1}, s{sCNT}
                v_xor_b32 v{va}, s{sT0}, v{vTO}
                v_add_u32 v{va}, s{sT1}, v{va}""")
    def consume(u):
        c, mh = u >> 1, u & 1
        mat, half = MORD[c >> 1], c & 1
        for n in range(8):
            d = dest((mat, n >> 2, 2 * (n & 3) + half)) if mat < 3 else dest((3, 2 * half + (n >> 2), n & 3))
            for m in (2 * mh, 2 * mh + 1):
                a(f"ds_read_b64_tr_b16 {wr(d + 2*m, 2)}, v{16+n} offset:{m*4096}")
        a("s_waitcnt lgkmcnt(0)")
    def spill(fs):
        for f in fs:
            base, off = (vG, f * 8192) if f < 8 else (vWL1, (f - 8) * 8192)
            for hh in range(2):
                a(f"ds_write_b128 v{base}, {vr(hold(f) + 4*hh, 4)} offset:{off + 1024*hh}")
        a("s_waitcnt lgkmcnt(0)")
    for u in range(4): issue(u)
    a(f"""
    v_and_b32 v{t0}, 15, v{vLane}
    v_lshrrev_b32 v{t1}, 4, v{vLane}
    v_and_b32 v{t2}, 3, v{vLane}
    v_bfe_u32 v{t3}, v{vLane}, 2, 2
    """)
    a(f"""
    s_lshl_b32 s{sT0}, s{sW}, 8
    s_add_u32 s{sT1}, s{sT0}, {L_X}
    v_mul_u32_u24 v{t5}, {XP}, v{t1}
    v_lshl_add_u32 v{t5}, v{t0}, 3, v{t5}
    v_add_u32 v{vXW}, s{sT1}, v{t5}
    """)
    a(f"""
    v_and_b32 v{t4}, 1, v{t1}
    v_lshl_add_u32 v{t4}, v{t4}, 2, v{t3}
    v_lshrrev_b32 v{t5}, 1, v{t1}
    v_lshl_add_u32 v{t4}, v{t5}, 4, v{t4}
    v_mul_u32_u24 v{t5}, {XP}, v{t2}
    v_lshl_add_u32 v{t4}, v{t4}, 3, v{t5}
    v_add_u32 v{vXR}, {L_X}, v{t4}
    v_and_b32 v{vHR}, 31, v{vLane}
    v_lshlrev_b32 v{vHR}, 2, v{vHR}
    v_cmp_lt_u32 vcc, 1, v{t2}
    v_mov_b32 v{t5}, 0x4444
    v_mov_b32 v{t6}, 0xeeee
    v_cndmask_b32 v{vIDX}, v{t5}, v{t6}, vcc
    """)
    a(f"""
    v_and_b32 v{t4}, 1, v{vLane}
    v_lshl_add_u32 v{t7}, v{t3}, 1, v{t4}
    v_lshlrev_b32 v{t4}, 4, v{t7}
    v_lshl_add_u32 v{t4}, v{t1}, 7, v{t4}
    s_lshl_b32 s{sT0}, s{sW}, 9
    s_add_u32 s{sT0}, s{sT0}, {L_OX}
    v_add_u32 v{vOW}, s{sT0}, v{t4}
    v_mov_b32 v{t6}, 0x80000000
    """)
    a(f"""
    v_lshl_add_u32 v{t4}, v{t1}, 2, v{t2}
    v_lshlrev_b32 v{t4}, 4, v{t4}
    v_bfe_u32 v{t5}, v{vLane}, 2, 1
    v_lshl_add_u32 v{t4}, v{t5}, 3, v{t4}
    s_lshl_b32 s{sT0}, s{sH}, 8
    v_add_u32 v{t4}, s{sT0}, v{t4}
    v_cmp_lt_u32 vcc, 7, v{t0}
    v_cndmask_b32 v{vMS}, v{t4}, v{t6}, vcc
    s_lshl_b32 s{sT1}, s{sW}, 3
    v_bfe_u32 v{t5}, v{vLane}, 3, 1
    v_add_u32 v{t5}, s{sT1}, v{t5}
    v_mul_u32_u24 v{t5}, {INB_STRIDE}, v{t5}
    v_add_u32 v{vPS}, v{t5}, v{t4}
    """)
    a(f"""
    v_lshlrev_b32 v{t4}, 10, v{t7}
    v_bfe_u32 v{t5}, v{vLane}, 1, 1
    v_lshl_add_u32 v{t4}, v{t5}, 5, v{t4}
    v_lshrrev_b32 v{t5}, 1, v{t1}
    v_lshl_add_u32 v{t4}, v{t5}, 6, v{t4}
    v_and_b32 v{t5}, 1, v{t1}
    v_lshl_add_u32 v{vM0}, v{t5}, 4, v{t4}
    """)
    a(f"""
    v_and_b32 v{t5}, 1, v{vLane}
    v_lshlrev_b32 v{t5}, 4, v{t5}
    v_mov_b32 v{t6}, 0x3f80
    v_lshlrev_b32 v{t5}, v{t5}, v{t6}
    v_bfe_u32 v{t6}, v{vLane}, 1, 2
    """)
    for d in range(4):
        a(f"""v_cmp_eq_u32 vcc, {d}, v{t6}
        v_cndmask_b32 v{PM+d}, 0, v{t5}, vcc""")
    a(f"""ds_write_b128 v{vLB}, v[{PM}:{PM+3}] offset:{L_SEL-L_MB}
    s_waitcnt lgkmcnt(0)
    v_mov_b64 v[{PM}:{PM+1}], 0
    v_mov_b64 v[{PM+2}:{PM+3}], 0
    """)
    a(f"""
    s_mov_b32 s{sS}, -1
    s_lshl_b32 s{sT0}, s{sH}, 13
    s_add_u32 s{sKX}, s{sT0}, {WS_KX}
    s_add_u32 s{sVX}, s{sT0}, {WS_VX - 256*KB}
    s_lshl_b32 s{sT0}, s{sH}, 12
    s_add_u32 s{sKM}, s{sT0}, {WS_KM - 128*KB}
    s_lshl_b32 s{sT0}, s{sW}, 10
    s_sub_u32 s{sKM}, s{sKM}, s{sT0}
    s_mov_b32 s{sXM}, 0x33333333
    s_mov_b32 s{sXM+1}, 0x33333333
    s_mov_b32 s{sC2}, 0x3e0293ee
    s_mov_b32 s{sC2+1}, 0x3e0293ee
    s_mov_b32 s{sONE2}, 0x3f803f80
    s_mov_b32 s{sONE2+1}, 0x3f803f80
    s_lshl_b32 s{sT0}, s{sW}, 11
    s_add_u32 s{sLKX}, s{sT0}, {L_MB}
    s_mov_b32 s{sKXO}, 16384
    s_add_u32 s{sPF}, s{sVX}, s{sT0}
    s_add_u32 s{sPF}, s{sPF}, {256*KB - 2*L_MB}
    s_lshl_b32 s{sFREE0}, s{sH}, 8
    s_add_u32 s{sFREE0}, s{sFREE0}, {WS_MBUF - (L_MB >> 2)}
    s_mov_b32 s{sMR}, {WS_MBUF}
    s_mov_b32 s{sPOM}, 0
    """)
    for p in range(4): a(f"s_mov_b32 s{sINW+p}, {WS_INBOX + 2 * p * INB_STRIDE}")
    addrs(False)
    for u in range(16):
        if u == 12: addrs(True)
        elif u and u & 1 == 0:
            for n in range(8): a(f"v_xor_b32 v{16+n}, 0x10000, v{16+n}")
        if u == 13: start_gates(a)
        if u == 13: first_kv(a, "A", vTA, blocking=False)
        a(f"s_waitcnt vmcnt({8 * min(3, 15 - u)})")
        a("s_barrier")
        consume(u)
        a("s_barrier")
        if u == 8:
            a(f"""v_mov_b32 v{PM}, 0
            global_load_dwordx2 v[28:29], v{PM}, s[{S_DBG}:{S_DBG+1}] sc1""")
        if u + 4 < 16: issue(u + 4)
        if u == 13:
            spill(range(0, 8))
            set_srd(a, SRD_T, S_MEM0, 8192)
            a(f"""s_lshl_b32 s{sT0}, s{sW}, 8
            buffer_load_dwordx4 {vr(MA,4)}, v{vM0}, s[{SRD_T}:{SRD_T+3}], s{sT0} offen
            buffer_load_dwordx4 {vr(MA+4,4)}, v{vM0}, s[{SRD_T}:{SRD_T+3}], s{sT0} offen offset:128""")
    a(f"""ds_write_b128 v{vG2}, {vr(MA,4)}
    ds_write_b128 v{vG2}, {vr(MA+4,4)} offset:1024""")
    spill(range(8, 16))
    first_kv(a, "B", vTA, blocking=True)

def start_gates(a):
    a(f"""v_readfirstlane_b32 s{sT0}, v28
    v_readfirstlane_b32 s{sT1}, v29
    s_mov_b32 s{sMODE}, 1
    s_cmp_ge_u32 s{sT0}, 32
    s_cbranch_scc1 CH_MODE""")
    all_arrived(a, "CH_ROSTER", 28, 29, sCNT, sT0, "CH_DONE", early="CH_MODE")
    a(f"s_mov_b32 s{sMODE}, 0")
    a.label("CH_MODE")
    a(f"s_mov_b32 s{sCNT}, 0")
    a.label("CH_INIT")
    a(f"""s_cmp_ge_u32 s{sT1}, 128
    s_cbranch_scc1 CH_G2
    global_load_dword v29, v{PM}, s[{S_DBG}:{S_DBG+1}] offset:{D_INIT} sc1
    s_add_u32 s{sCNT}, s{sCNT}, 1
    s_cmp_gt_u32 s{sCNT}, {SPIN_MAX}
    s_cbranch_scc1 CH_DONE
    s_waitcnt vmcnt(0)
    v_readfirstlane_b32 s{sT1}, v29
    s_branch CH_INIT""")
    a.label("CH_G2")

def first_kv(a, tag, vt, blocking):
    a(f"""s_cmp_lg_u32 s{sPOM}, 0
    s_cbranch_scc1 CH_FK_{tag}
    s_mov_b32 s{sCNT}, 0""")
    if CFG["gate"]:
        if blocking: kv_gate(a, "CH_KV0", f"s_mov_b32 s{sT1}, 2")
        else:
            a(f"""s_load_dwordx4 s[{sKV}:{sKV+3}], s[{sKVA}:{sKVA+1}], {WS_FLAGS + F_KV} glc
            s_waitcnt lgkmcnt(0)""")
            kv_min(a)
            a(f"""s_mov_b32 s{sRDY}, s{sKV}
            s_cmp_lt_u32 s{sRDY}, 2
            s_cbranch_scc1 CH_FK_{tag}""")
    a(f"""s_add_u32 m0, s{sLKX}, 8192
    s_mov_b32 s{sPOM}, 1
    buffer_load_dwordx4 v{vG}, {W}, s{sKX} offen sc1 lds
    buffer_load_dwordx4 v{vG}, {W}, s{sKX} offen offset:1024 sc1 lds
    v_lshlrev_b32 v{vt}, 1, v{vLB}
    s_mov_b32 m0, {L_JUNK}
    buffer_load_dword v{vt}, {W}, s{sPF} offen sc1 lds""")
    a.label(f"CH_FK_{tag}")

def zlist(b, n):
    return [f"v_mov_b64 v[{b+i}:{b+i+1}], 0" for i in range(0, n, 2)]

def smf(acc, A, B):
    return f"v_smfmac_f32_16x16x64_bf16 {vr(acc,4)}, {vr(A,4)}, {B}, v{vIDX}"

NST = 10
def mark(a, prof, name):
    if (prof or MEAN) and os.environ.get("MARK") == name: a("s_memtime s[74:75]")
MEAN = bool(os.environ.get("MEAN"))
def stamp(a, prof, k):
    if MEAN and k in (6, 7):
        a(f"s_memtime s[{70+2*k}:{71+2*k}]")
        if k == 6:
            a(f"""s_waitcnt lgkmcnt(0)
            s_sub_u32 s76, s74, s84
            s_sub_u32 s77, s82, s84
            s_sub_u32 s78, s84, s79
            s_mov_b32 s79, s84
            s_cmp_ge_u32 s{sS}, 8
            s_cselect_b32 s76, s76, 0
            s_cselect_b32 s77, s77, 0
            s_cselect_b32 s78, s78, 0
            s_add_u32 s70, s70, s76
            s_add_u32 s71, s71, s77
            s_add_u32 s72, s72, s78
            s_cmp_lg_u32 s{sW}, 0""")
        return
    if prof:
        if CFG["light"] and k not in (7, 8, 9, CFG["only"]): return
        if k == 9: a(f"s_memrealtime s[{70+2*k}:{71+2*k}]")
        else: a(f"s_memtime s[{70+2*k}:{71+2*k}]")

PUB = X + 12
def pub_prepare(a, part=3):
    if part & 1:
        a(f"""s_lshl_b32 s{sT0}, s{sW}, 8
        v_add_u32 v{vT}, s{sT0}, v{vXR}
        ds_read_b64_tr_b16 {vr(PUB,2)}, v{vT}
        ds_read_b64_tr_b16 {vr(PUB+2,2)}, v{vT} offset:64""")
    if part & 2:
        a(f"""v_mov_b32_dpp v{aV+2}, v{aV} quad_perm:[2,3,2,3] row_mask:0xf bank_mask:0xf
        v_mov_b32_dpp v{aV+3}, v{aV+1} quad_perm:[2,3,2,3] row_mask:0xf bank_mask:0xf
        s_waitcnt lgkmcnt(0)
        s_mov_b64 exec, s[{sXM}:{sXM+1}]
        v_mov_b64 {vr(PUB,2)}, {vr(aV,2)}
        v_mov_b64 {vr(PUB+2,2)}, {vr(aV+2,2)}
        s_mov_b64 exec, -1""")
PUBST = f"buffer_store_dwordx4 {vr(PUB,4)}, v{vG}, {W}, s{sKM} offen sc1"
MR = X + 4
FLG = X + 10
def kv_min(a):
    for j in range(NG):
        a(f"s_lshl_b32 s{sKV+j}, s{sKV+j}, 2")
        if j: a(f"s_add_u32 s{sKV+j}, s{sKV+j}, {j}\ns_min_u32 s{sKV}, s{sKV}, s{sKV+j}")
def kv_gate(a, name, need_expr):
    a(need_expr)
    a(f"s_min_u32 s{sT1}, s{sT1}, 64")
    a.label(name)
    a(f"""s_cmp_ge_u32 s{sRDY}, s{sT1}
    s_cbranch_scc1 {name}_OK
    s_load_dwordx4 s[{sKV}:{sKV+3}], s[{sKVA}:{sKVA+1}], {WS_FLAGS + F_KV} glc
    s_add_u32 s{sCNT}, s{sCNT}, 1
    s_cmp_gt_u32 s{sCNT}, {SPIN_MAX}
    s_cbranch_scc1 CH_DONE
    s_waitcnt lgkmcnt(0)""")
    kv_min(a)
    a(f"""s_mov_b32 s{sRDY}, s{sKV}
    s_branch {name}""")
    a.label(name + "_OK")
def hop_prep(a, part=7):
    if part & 1:
        pub_prepare(a, 1)
        for l in ring_load(0): a(l)
    if part & 2:
        hop_prep2(a)
    if part & 4:
        pub_prepare(a, 2)
        for l in zlist(aQK + 4, 20): a(l)
def hop_prep2(a):
    for lo in range(1, 4): a(f"v_xor_b32 v{MR+lo}, {2048*lo}, v{vG2}")
    a(f"""s_add_u32 s{sPF}, s{sPF}, {256*KB*CFG["adv"]}
    s_sub_u32 s{sT0}, s{sFM}, {F_M - F_KV + 3}
    v_lshl_add_u32 v{MR}, v{vLB}, 1, s{sPF}
    s_mov_b64 exec, 0x8888
    v_lshrrev_b32 v{MR}, 2, v{vHR}
    v_add_u32 v{MR}, s{sT0}, v{MR}
    s_mov_b64 exec, -1
    v_mov_b32 v{FLG}, s{sS}
    v_sub_u32 v{FLG+1}, 0, v{vG}
    v_lshrrev_b32 v{FLG+1}, 1, v{FLG+1}
    s_add_u32 s{sKX}, s{sKX}, {256*KB*CFG["adv"]}
    s_add_u32 s{sVX}, s{sVX}, {256*KB*CFG["adv"]}
    s_mov_b32 m0, s{sLKX}""")

def chain_loop(a, tag, stf, prof=False):
    q = LdsQ(a)
    ck = vT
    a.label(f"CH_TOP_{tag}")
    Q0, K0, Q1, K1 = aQK, aQK + 4, aQK + 8, aQK + 12
    acc = lambda mat, T: (aQK + 8 * T + 4 * mat) if mat < 2 else aV + 4 * T
    N = len(QKSEQ)
    pre = {i: [] for i in range(N)}
    post = {i: [] for i in range(N)}
    W1 = CFG["w1"]
    JOIN, B2 = CFG["join"], CFG["bar"]
    x = lambda l: ("x", l, None)
    PB = CFG["pub"]
    post[1] = [f"v_max_u32 v{ck}, v{MA}, v{MA+2}"]
    pre[2] = [x(f"buffer_load_dwordx4 {vr(VX,4)}, v{vG}, {W}, s{sVX} offen sc1")]
    pre[W1] = [x("s_waitcnt vmcnt(3)")]
    post[W1] = [f"v_max3_u32 v{ck}, v{ck}, v{MA+4}, v{MA+6}"]
    post[W1+1] = [f"v_cmp_eq_u32 vcc, -1, v{ck}"]
    pre[6] = [x(f"buffer_load_dwordx4 {vr(VX+4,4)}, v{vG}, {W}, s{sVX} offen offset:1024 sc1")]
    pre[JOIN] += [x(f"s_cbranch_vccnz CH_RETRY_{tag}"), ("lab", f"CH_JOIN_{tag}", None)]
    if PB:
        pre[CFG["pa"]] += [x(PUBST)]
        pre[CFG["pb"]] += [x(f"buffer_store_dword v{FLG}, v{FLG+1}, {W}, s{sFM} offen sc1")]
    PB *= 2
    sc = step_scalars()
    mr = {kk: ("lds", f"ds_read_b128 {vr(MA+4*kk,4)}, v{MR+(kk>>1)} offset:{1024*(kk&1)}", f"m{kk}") for kk in range(2, 8)}
    pre[JOIN] += [x(f"s_waitcnt vmcnt(3)"), x("s_barrier"), mr[2]]
    pre[JOIN+1] += [mr[4], mr[6]]
    pre[B2] += [x(f"s_waitcnt vmcnt({2 + PB})"), x("s_barrier"), mr[3]]
    pre[B2+1] += [mr[5], mr[7]]
    if prof: pre[B2+1] += [x(f"s_mov_b64 exec, 0xffff\nbuffer_store_dword v{X+8}, v{X+9}, {W}, s34 offen\ns_mov_b64 exec, -1")]
    rB, rC = ring_load(1), ring_load(2)
    for i, sl in enumerate(RBS): pre[sl].append(("lds", rB[i], f"rB{i}"))
    for n, kk in enumerate(KORD): pre[11 + 3 * n].append(("w", f"m{kk}", None))
    for i in range(8): pre[RB0 + 1 + i].insert(0, ("lds", rC[i], f"rC{i}"))
    for i in range(4): pre[RB0 - 1 + i].append(("w", f"rB{2*i+1}", None))
    vm = [f"buffer_load_dwordx4 v{vG}, {W}, s{sKX} offen sc1 lds",
          f"buffer_load_dwordx4 v{vG}, {W}, s{sKX} offen offset:1024 sc1 lds",
          f"buffer_load_dword v{MR}, {W}, 0 offen sc1 lds"]
    for i, l in zip((17, 21, 28), vm): pre[i].insert(0 if i < 25 else 1, x(l))
    pre[13].append(x(f"s_add_u32 m0, s{sKXO}, s{sLKX}"))
    pre[22].append(x(f"s_xor_b32 s{sKXO}, s{sKXO}, {8192 ^ 16384}"))
    pre[27].append(x(f"s_mov_b32 m0, {L_JUNK}"))
    for i, l in zip((29, 30, 31, 32, 33, 33, 34, 34, 35, 35), sc): pre[i].append(x(l))
    assert len(sc) <= 10
    NY = len(vm) + PB + (1 if prof else 0)
    post[23].append(f"v_add_u32 v{vT}, s{sKXO}, v{vLB}")
    def fin2(b, dst): return [f"v_add_f32 v{b}, v{b}, v{b+2}", f"v_add_f32 v{b+1}, v{b+1}, v{b+3}", f"v_cvt_pk_bf16_f32 v{dst}, v{b}, v{b+1}"]
    f = fin2(Q0, Q0) + fin2(K0, Q0 + 1) + fin2(Q1, Q1)
    for i, l in enumerate(f[:7]): post[29 + i].append(l)
    tok = {}
    a("s_waitcnt vmcnt(3)")
    mark(a, prof, 's0')
    for i, key in enumerate(QKSEQ):
        a(smf(acc(key[0], key[1]), MA + 4 * key[2], wop(key)))
        for kind, l, name in pre[i]:
            if kind == "lds": tok[name] = q.op(l)
            elif kind == "w": q.wait(tok[l])
            elif kind == "lab": a.label(l)
            else: a(l)
        for l in post[i]: a(l)
        mark(a, prof, f"q{i}")
    vi = 0
    def vnext(n=1):
        nonlocal vi
        for _ in range(n):
            key = VSEQ[vi]; vi += 1
            a(smf(aV + 4*key[1], MA + 4*key[2], wop(key)))
    vnext()
    q.op(f"ds_write_b64 v{vXW}, {vr(Q0,2)}")
    a(f[7])
    vnext()
    q.wait(tok["rC7"])
    a(f[8])
    for l in fin2(K1, Q1 + 1): a(l)
    xw = q.op(f"ds_write_b64 v{vXW}, {vr(Q1,2)} offset:128")
    vnext(5)
    q.wait(xw)
    mark(a, prof, "xw")
    a("s_barrier")
    mark(a, prof, "b2")
    xr = []
    for k in range(8):
        xr.append(q.op(f"ds_read_b64_tr_b16 {vr(X+2*k,2)}, v{vXR} offset:{(k>>1)*256 + (k&1)*64}"))
        if k in (1, 3, 5, 7): vnext()
    kxl = [f"ds_read_b128 {vr(RING+4*i,4)}, v{vT} offset:{1024*i}" for i in range(8)]
    kx = [q.op(kxl[0]), q.op(kxl[1])]
    vnext()
    kx += [q.op(kxl[2])]
    assert vi == 12
    mark(a, prof, 's2')
    SX, SM, m_, t_ = aQK, aQK + 8, aQK + 12, aQK + 14
    OACC, OA, ONES, LA = MA, MA + 16, MA + 16, X + 4
    sfill = [f"v_mov_b64 {vr(ONES,2)}, s[{sONE2}:{sONE2+1}]", f"v_mov_b64 {vr(ONES+2,2)}, s[{sONE2}:{sONE2+1}]"] + zlist(OACC, 16)
    vfin = fin2(aV, aV) + fin2(aV + 4, aV + 1)
    def sm(acc_, A, ks):
        c = "0" if ks == 0 else vr(acc_, 4)
        a(f"v_mfma_f32_16x16x32_bf16 {vr(acc_,4)}, {vr(A,4)}, {vr(X+4*ks,4)}, {c}")
    q.wait(xr[1])
    for ks in range(4):
        sm(SM, X + 4*ks, ks)
        kx.append(q.op(kxl[3 + ks]))
        if ks == 3: kx.append(q.op(kxl[7]))
        q.wait(xr[2*ks+3] if ks < 3 else kx[0])
    fl = sfill + vfin
    for j in range(8):
        kt, ks = j >> 2, j & 3
        sm(SX + 4*kt, RING + 4*j, ks)
        if j < 7: q.wait(kx[j + 1])
        if j == 6:
            a(f"v_max3_f32 v{m_}, v{SM+2}, v{SM+3}, v{SX}")
            a(f"v_max3_f32 v{m_}, v{m_}, v{SX+1}, v{SX+2}")
        else:
            a(fl.pop(0)); a(fl.pop(0))
    rD = ring_load(3)
    for l in fl: a(l)
    a(f"v_max_f32 v{m_}, v{m_}, v{SX+3}")
    mark(a, prof, 's3')
    a(f"v_max3_f32 v{m_}, v{m_}, v{SX+4}, v{SX+5}")
    a(f"v_max3_f32 v{t_}, v{m_}, v{SX+6}, v{SX+7}")
    a(f"v_max3_f32 v{m_}, v{m_}, v{SX+6}, v{SX+7}")
    a(f"v_permlane16_swap_b32 v{m_}, v{t_}")
    a(f"v_max_f32 v{t_+1}, v{m_}, v{t_}")
    a(f"v_max_f32 v{m_}, v{m_}, v{t_}")
    a(f"v_permlane32_swap_b32 v{m_}, v{t_+1}")
    a(f"v_max_f32 v{m_}, v{m_}, v{t_+1}")
    a(f"v_mul_f32 v{m_}, s{sC2}, v{m_}")
    def pf(r): a(f"v_pk_fma_f32 {vr(r,2)}, {vr(r,2)}, s[{sC2}:{sC2+1}], {vr(m_,2)} op_sel_hi:[1,1,0] neg_lo:[0,0,1] neg_hi:[0,0,1]")
    P, OAc = X, X + 8
    mark(a, prof, "mx")
    pf(SM + 2)
    for i in range(4): pf(SX + 2*i)
    a(f"v_exp_f32 v{SM+2}, v{SM+2}")
    a(f"v_exp_f32 v{SM+3}, v{SM+3}")
    a(f"v_exp_f32 v{SX}, v{SX}")
    a(f"v_cvt_pk_bf16_f32 v{PM}, v{SM+2}, v{SM+3}")
    a(f"v_cvt_pk_bf16_f32 v{PM+3}, v{SM+2}, v{SM+3}")
    a(f"v_exp_f32 v{SX+1}, v{SX+1}")
    a(f"v_mfma_f32_16x16x16_bf16 {vr(LA,4)}, {vr(ONES,2)}, {vr(PM,2)}, 0")
    a(f"s_cmp_eq_u32 s{sS}, 63")
    a(f"v_exp_f32 v{SX+2}, v{SX+2}")
    a(f"v_mfma_f32_16x16x16_bf16 {vr(OAc,4)}, {vr(aV,2)}, {vr(PM,2)}, 0")
    a(f"s_cbranch_scc1 CH_LAST")
    a(f"v_exp_f32 v{SX+3}, v{SX+3}")
    a(f"v_mfma_f32_16x16x16_bf16 {vr(OAc+4,4)}, {vr(aV,2)}, {vr(PM+2,2)}, 0")
    for i in range(4, 8): a(f"v_exp_f32 v{SX+i}, v{SX+i}")
    for i in range(4): a(f"v_cvt_pk_bf16_f32 v{P+i}, v{SX+2*i}, v{SX+2*i+1}")
    OAD = aQK + 4
    a(f"v_mfma_f32_16x16x32_bf16 {vr(LA,4)}, {vr(ONES,4)}, {vr(P,4)}, {vr(LA,4)}")
    a(f"s_waitcnt vmcnt({NY})")
    a(f"v_xor_b32 v{OAD+1}, 512, v{vOW}")
    a(f"v_xor_b32 v{OAD+2}, 1024, v{vOW}")
    a(f"v_mfma_f32_16x16x32_bf16 {vr(OAc,4)}, {vr(VX,4)}, {vr(P,4)}, {vr(OAc,4)}")
    a(f"v_xor_b32 v{OAD+3}, 1536, v{vOW}")
    a(f"v_mfma_f32_16x16x32_bf16 {vr(OAc+4,4)}, {vr(VX+4,4)}, {vr(P,4)}, {vr(OAc+4,4)}")
    mark(a, prof, "pv")
    DP = "quad_perm:[0,1,0,1] row_mask:0xf bank_mask:0xf"
    a(f"v_rcp_f32_dpp v{t_}, v{LA} {DP}")
    for i in range(8):
        a(f"v_mul_f32_dpp v{OAc+i}, v{OAc+i}, v{t_} {DP}")
        if i == 3:
            a(f"v_cvt_pk_bf16_f32 v{OA}, v{OAc}, v{OAc+1}")
            a(f"v_cvt_pk_bf16_f32 v{OA+1}, v{OAc+2}, v{OAc+3}")
    a(f"v_cvt_pk_bf16_f32 v{OA+2}, v{OAc+4}, v{OAc+5}")
    a(f"v_cvt_pk_bf16_f32 v{OA+3}, v{OAc+6}, v{OAc+7}")
    mark(a, prof, 's4')
    if CFG["e1"]: a(f"s_mov_b64 exec, s[{sXM}:{sXM+1}]")
    ow = q.op(f"ds_write_b128 v{vOW}, {vr(OA,4)}")
    if CFG["e1"]: a(f"s_mov_b64 exec, -1")
    PK = X + 4
    SEL = aQK
    def fin(p):
        b = OACC + 4 * p
        return [f"v_cvt_pk_bf16_f32 v{PK+2*p}, v{b}, v{b+1}", f"v_cvt_pk_bf16_f32 v{PK+2*p+1}, v{b+2}, v{b+3}",
                f"v_bfi_b32 v{PK+2*p}, 1, s{sTAG}, v{PK+2*p}"]
    def pst(p): return f"buffer_store_dwordx2 {vr(PK+2*p,2)}, v{vPS}, {W}, s{sINW+p} offen {stf}"
    def osm(i): a(smf(OACC + 4*OSEQ[i][1], OA + 4*OSEQ[i][2], wop(OSEQ[i])))
    late = rD + [f"ds_read_b128 {vr(SEL,4)}, v{vLB} offset:{L_SEL-L_MB}"]
    rd = []
    for i in range(3):
        osm(i)
        if i >= 3 - CFG["re"]: rd.append(q.op(late.pop(0)))
    q.wait(ow)
    mark(a, prof, "ow")
    a("s_barrier")
    mark(a, prof, "b4")
    oa = [q.op(f"ds_read_b128 {vr(OA+4*k,4)}, v{OAD+k}") for k in range(1, 4)]
    osm(3)
    q.wait(oa[0])
    mark(a, prof, 's5')
    post = {8: fin(0)[0:2], 9: fin(0)[2:], 11: fin(1)[0:2], 12: fin(1)[2:], 14: fin(2)[0:2], 15: fin(2)[2:]}
    for i in range(4, 16):
        osm(i)
        n = 0
        while late and n < (1 if (i in post or i < 6 or i == 10) else 2):
            rd.append(q.op(late.pop(0))); n += 1
        if i < 6: q.wait(oa[i - 3])
        if i in (11, 12, 13, 14): q.wait(rd[2 * (i - 11) + 1])
        if i in (10, 13): a(pst((i - 10) // 3))
        if i == 15: a(f"s_cmp_lg_u32 s{sW}, 0")
        for l in post.get(i, []): a(l)
    assert not late
    a(pst(2))
    for l in fin(3): a(l)
    a(pst(3))
    stamp(a, prof, 6)
    a(f"s_cbranch_scc1 CH_HK_{tag}")
    HV = X + 8
    RA = X
    HV = aQK + 8
    a(f"""v_mov_b32 v{HV}, s{sS}
    v_lshlrev_b32 v{HV+1}, 5, v{vHR}
    v_mov_b32 v{HV+2}, -1""")
    hint = lambda r: f"""s_mov_b64 exec, 0xff
    buffer_store_dword v{r}, v{HV+1}, {W}, s{sHW} offen {stf}
    s_mov_b64 exec, -1"""
    delay(a, CFG["d1"])
    def sweep(base, pace=0):
        for m in range(8):
            a(f"buffer_load_dwordx4 {vr(base+4*m,4)}, v{vG}, {W}, s{sINB_R if m < 4 else sINB_R2} offen offset:{1024*(m&3)} sc1")
            if m < 7: delay(a, pace)
    def reduce_(base, younger, fail, peek=None):
        for m in range(8):
            b = base + 4 * m
            a(f"s_waitcnt vmcnt({7 - m + younger})")
            a(f"v_mfma_f32_16x16x32_bf16 {vr(RA,4)}, {vr(b,4)}, {vr(SEL,4)}, {'0' if m == 0 else vr(RA,4)}")
            if m == 0: a(f"v_xor_b32 v{ck}, s{sTAG}, v{b}")
            else: a(f"v_bitop3_b32 v{ck}, v{ck}, v{b}, s{sTAG} bitop3:0xf6")
            a(f"v_bitop3_b32 v{ck}, v{ck}, v{b+2}, s{sTAG} bitop3:0xf6")
            if peek and m == CFG["pk"]: a(f"ds_read_b32 v{X+8}, v{vLB} offset:{L_JUNK + 256 - L_MB}")
        if peek:
            a(f"""s_waitcnt lgkmcnt(0)
            v_cmp_eq_u32 vcc, s{sS}, v{X+8}
            s_cbranch_vccnz {peek}""")
        a(f"""v_and_b32 v{ck}, 1, v{ck}
        v_cmp_ne_u32 vcc, 0, v{ck}
        v_cvt_pk_bf16_f32 v{RA}, v{RA}, v{RA+1}
        v_cvt_pk_bf16_f32 v{RA+1}, v{RA+2}, v{RA+3}
        s_cbranch_vccnz {fail}
        buffer_store_dwordx2 {vr(RA,2)}, v{vMS}, {W}, s{sMR} offen {stf}""")
    DS = CFG["ds"]
    sweep(MA)
    if DS: sweep(RING)
    a(hint(HV))
    pub_prepare(a, 1)
    if not DS:
        for l in ring_load(0): a(l)
    hop_prep(a, 2)
    a(f"s_waitcnt lgkmcnt({2 if DS else 10})")
    reduce_(MA, 1, f"CH_RED2_{tag}")
    if prof and CFG["light"]: a("s_memtime s[72:73]")
    a.label(f"CH_MST_{tag}")
    hop_prep(a, 4)
    ld = f"""buffer_load_dwordx4 {vr(MA,4)}, v{vG}, {W}, s{sMR} offen sc1
    buffer_load_dwordx4 {vr(MA+4,4)}, v{vG}, {W}, s{sMR} offen offset:1024 sc1"""
    ld0, ld1 = ld.split("\n")
    assert not DS
    a.label(f"CH_POLL_{tag}")
    a("s_barrier")
    stamp(a, prof, 7)
    a(ld0); delay(a, CFG["ga"]); a(ld1)
    delay(a, CFG["g2"])
    a(f"buffer_load_dwordx4 v{vG}, {W}, s{sMR} offen sc1 lds")
    delay(a, CFG["g3"])
    a(f"buffer_load_dwordx4 v{vG}, {W}, s{sMR} offen offset:1024 sc1 lds")
    for l in zlist(aQK, 4): a(l)
    if prof:
        stamp(a, prof, 8)
        stamp(a, prof, 9)
        a(f"""s_waitcnt lgkmcnt(0)
        s_lshl_b32 s{sT0}, s{sS}, 6
        s_lshl_b32 s{sT1}, s{sW}, 12
        s_add_u32 s{sT0}, s{sT0}, s{sT1}
        v_mov_b32 v{X+8}, 0""")
        for k in range(NST):
            if not CFG["light"] or k in (1, 2, 6, 7, 8, 9): a(f"v_writelane_b32 v{X+8}, s{70+2*k}, {k}")
        a(f"v_writelane_b32 v{X+8}, s{sPROF}, {NST}")
        a(f"v_writelane_b32 v{X+8}, s{sCNT}, {NST+1}")
        a(f"""s_mov_b32 s{sPROF}, 0
        s_lshl_b32 s{sT1}, s{sH}, 14
        s_add_u32 s{sT0}, s{sT0}, s{sT1}
        s_add_u32 s34, s{sT0}, {WS_PROF - (L_MB >> 2)}
        v_lshrrev_b32 v{X+9}, 2, v{vLB}""")
    a(f"s_branch CH_TOP_{tag}")
    a.label(f"CH_RED2_{tag}")
    sweep(MA)
    a(f"""s_add_u32 s{sCNT}, s{sCNT}, 1
    s_cmp_gt_u32 s{sCNT}, {SPIN_MAX}
    s_cbranch_scc1 CH_DONE""")
    reduce_(MA, 0, f"CH_RED2_{tag}")
    if prof and CFG["light"]: a("s_memtime s[72:73]")
    delay(a, CFG["dr"])
    a(f"s_branch CH_MST_{tag}")
    a.label(f"CH_RETRY_{tag}")
    chk = f"""v_max3_u32 v{ck}, v{MA}, v{MA+2}, v{MA+4}
    v_max_u32 v{ck}, v{ck}, v{MA+6}
    v_cmp_eq_u32 vcc, -1, v{ck}"""
    a(f"""s_mov_b64 exec, vcc
    {ld}
    s_mov_b64 exec, -1""")
    if prof: a(f"s_add_u32 s{sPROF}, s{sPROF}, 1")
    a(f"""s_waitcnt vmcnt(4)
    ds_read_b128 {vr(MA+8,4)}, v{vG2}
    ds_read_b128 {vr(MA+12,4)}, v{vG2} offset:1024""")
    for l in zlist(aQK, 24): a(l)
    a(f"""s_mov_b64 exec, vcc
    s_waitcnt lgkmcnt(0)""")
    for i in range(0, 8, 2): a(f"v_mov_b64 {vr(MA+i,2)}, {vr(MA+8+i,2)}")
    a(f"""{chk}
    {ld}
    s_mov_b64 exec, -1
    s_cbranch_vccnz CH_RETRY2_{tag}""")
    a.label(f"CH_FIN_{tag}")
    a(f"""ds_write_b128 v{vG2}, {vr(MA,4)}
    ds_write_b128 v{vG2}, {vr(MA+4,4)} offset:1024""")
    for key in QKSEQ[:JOIN + 1]: a(smf(acc(key[0], key[1]), MA + 4 * key[2], wop(key)))
    a(f"""s_waitcnt vmcnt(0) lgkmcnt(0)
    s_branch CH_JOIN_{tag}""")
    a.label(f"CH_RETRY2_{tag}")
    a(f"""s_mov_b64 exec, vcc
    {ld}
    s_add_u32 s{sCNT}, s{sCNT}, 1""")
    if prof: a(f"s_add_u32 s{sPROF}, s{sPROF}, 1")
    a(f"""s_waitcnt vmcnt(4)
    {chk}
    s_cmp_gt_u32 s{sCNT}, {SPIN_MAX}
    s_cbranch_scc1 CH_DONE
    s_mov_b64 exec, -1
    s_cbranch_vccz CH_FIN_{tag}
    s_branch CH_RETRY2_{tag}""")
    a.label(f"CH_HK_{tag}")
    a(f"""s_cmp_eq_u32 s{sW}, 1
    s_cbranch_scc0 CH_HK23_{tag}""")
    NPR = CFG["pd"] + 1
    PRB = MA + 10
    hop_prep(a)
    delay(a, CFG["d1"] + CFG["p0"])
    for i in range(NPR - 1):
        a(f"buffer_load_dword v{PRB+i}, v{vHR}, {W}, s{sHR} offen sc1")
        delay(a, CFG["pg"] + CFG["pq"])
    a.label(f"CH_PROBE_{tag}")
    for i in range(NPR):
        a(f"""buffer_load_dword v{PRB+(i+NPR-1)%NPR}, v{vHR}, {W}, s{sHR} offen sc1
        s_waitcnt vmcnt({NPR-1})
        v_cmp_ne_u32 vcc, s{sS}, v{PRB+i}
        s_cbranch_vccz CH_POLL_{tag}""")
        if prof: a(f"s_add_u32 s{sPROF}, s{sPROF}, 0x100")
        delay(a, CFG["pg"] - (4 if prof else 0))
    a(f"""s_add_u32 s{sCNT}, s{sCNT}, 1
    s_cmp_gt_u32 s{sCNT}, {SPIN_MAX}
    s_cbranch_scc0 CH_PROBE_{tag}
    s_branch CH_DONE""")
    a.label(f"CH_HK23_{tag}")
    delay(a, 256)
    hop_prep(a)
    a(f"""s_waitcnt vmcnt(0)
    s_cmp_eq_u32 s{sW}, 2
    s_cbranch_scc1 CH_POLL_{tag}""")
    a(f"""v_mov_b32 v{X}, -1
    v_lshrrev_b32 v{X+1}, 2, v{vLB}
    s_waitcnt vmcnt(0)
    buffer_store_dword v{X}, v{X+1}, {W}, s{sPOM} offen {stf}""")
    if CFG["gate"]:
        a(f"""v_add_u32 v{ck}, {L_JUNK}, v{vHR}
        ds_read_b32 v{ck}, v{ck}
        s_waitcnt lgkmcnt(0)""")
        for j in range(NG): a(f"v_readlane_b32 s{sKV+j}, v{ck}, {4*j+3}")
        kv_min(a)
        a(f"s_max_u32 s{sRDY}, s{sRDY}, s{sKV}")
        kv_gate(a, f"CH_KV_{tag}", f"s_add_u32 s{sT1}, s{sS}, 3")
    a(f"s_branch CH_POLL_{tag}")

def step_scalars():
    return f"""s_add_u32 s{sS}, s{sS}, 1
    s_and_b32 s{sTAG}, s{sS}, 1
    s_mov_b32 s{sCNT}, 0
    s_add_u32 s{sT2}, s{sS}, 3
    s_and_b32 s{sT2}, s{sT2}, 3
    s_lshl_b32 s{sT0}, s{sT2}, 13
    s_add_u32 s{sPOM}, s{sT0}, s{sFREE0}
    s_xor_b32 s{sT0}, s{sT0}, 16384
    s_add_u32 s{sMR}, s{sT0}, {WS_MBUF}
    s_add_u32 s{sKM}, s{sKM}, {128*KB*CFG["advp"]}""".split("\n")

def chain_role(a, prof=False):
    a.label("CHAIN")
    if prof: a("s_memrealtime s[92:93]")
    chain_startup(a)
    rt(a, 2, X + 2)
    a(f"""s_mov_b32 s34, {WS_PROF + 600*KB}
    v_mov_b32 v{X+9}, 0
    s_mov_b32 s70, 0
    s_mov_b32 s71, 0
    s_mov_b32 s72, 0
    s_mov_b32 s{sCNT}, 0
    s_mov_b32 s{sPROF}, 0""")
    for l in ring_load(0): a(l)
    for l in zlist(aQK, 24): a(l)
    hop_prep2(a)
    rt(a, 4, X + 2)
    if prof: a("s_memrealtime s[94:95]")
    a(f"""s_waitcnt vmcnt(0) lgkmcnt(0)
    s_cmp_eq_u32 s{sMODE}, {CFG['fast']}
    s_cbranch_scc0 CH_TOP_slow""")
    chain_loop(a, "fast", "", prof is True)
    chain_loop(a, "slow", "sc1", prof is True)
    a.label("CH_LAST")
    pub_prepare(a)
    a(PUBST)
    a(f"""v_mov_b32 v{MA+4}, 64
    v_sub_u32 v{MA+5}, 0, v{vG}
    v_lshrrev_b32 v{MA+5}, 1, v{MA+5}
    s_waitcnt vmcnt(0)
    s_barrier
    buffer_store_dword v{MA+4}, v{MA+5}, {W}, s{sFM} offen sc1""")
    if prof:
        a(f"""s_memrealtime s[96:97]
        s_waitcnt lgkmcnt(0)
        v_mov_b32 v{MA}, s92
        v_mov_b32 v{MA+1}, s94
        v_mov_b32 v{MA+2}, s96
        v_mov_b32 v{MA+3}, 0
        s_lshl_b32 s{sT0}, s{sH}, 4
        s_add_u32 s{sT0}, s{sT0}, {WS_PROF + 512*KB}
        buffer_store_dwordx4 {vr(MA,4)}, v{MA+3}, {W}, s{sT0} offen""")
    if MEAN:
        a(f"""v_mov_b32 v{MA+8}, s70
        v_mov_b32 v{MA+9}, s71
        v_mov_b32 v{MA+10}, s72
        v_mov_b32 v{MA+11}, 0
        s_lshl_b32 s{sT0}, s{sH}, 2
        s_add_u32 s{sT0}, s{sT0}, s{sW}
        s_lshl_b32 s{sT0}, s{sT0}, 4
        s_add_u32 s{sT0}, s{sT0}, {WS_PROF}
        buffer_store_dwordx4 {vr(MA+8,4)}, v{MA+11}, {W}, s{sT0} offen""")
    rt(a, 7)
    a.label("CH_DONE")
    a("""s_waitcnt vmcnt(0)
    s_endpgm""")
```

```python
from asmlib import *
from layout import *
from chain import (S_AX, S_WR, S_WI, S_OUT, S_DBG, SRD_WS, SRD_T, sW, sROLE, W, set_srd, LdsQ, SPIN_MAX, rt)
import qa
from qa import wait_dbg, stage_consts, x_consts, x_issue, vXS, vA, sT0, sT1, sT2, sCNT

sR, sK, sRE, sIM, sSC, sPASS, sB0, sL = 48, 49, 50, 55, 56, 57, 58, 59
SRD_U = 60
T = f"s[{SRD_T}:{SRD_T+3}]"
U = f"s[{SRD_U}:{SRD_U+3}]"
SRD_V = 64
V = f"s[{SRD_V}:{SRD_V+3}]"
lane, vO = 2, 3
ACC, FR, TM, CN = 16, 80, 112, 128
def perm(r): return 16 * (r >> 3) + 8 * ((r & 7) >> 2) + (r & 3)
def fbits(x):
    import struct
    return "0x%08x" % struct.unpack("<I", struct.pack("<f", x))[0]

def arrive(a, off, t0, t1, wb=True):
    lab = a.uid("PA_ARR")
    a(f"""s_waitcnt vmcnt(0)
    s_barrier
    s_cmp_lg_u32 s{sW}, 0
    s_cbranch_scc1 {lab}""")
    if wb: a("buffer_wbl2 sc1\ns_waitcnt vmcnt(0)")
    a(f"""v_mov_b32 v{t0}, 1
    v_mov_b32 v{t1}, {off}
    s_mov_b64 exec, 1
    global_atomic_add v{t1}, v{t0}, s[{S_DBG}:{S_DBG+1}]
    s_mov_b64 exec, -1""")
    a.label(lab)

def stage1(a):
    t0, t1, t2, kf, base = TM, TM + 1, TM + 2, TM + 3, TM + 4
    P = TM + 8
    x_consts(a, lane, t0, t1)
    set_srd(a, SRD_T, S_AX, 2 * MB)
    a(f"""s_lshr_b32 s{sB0}, s{sR}, 2
    s_lshl_b32 s{sB0}, s{sB0}, 2
    s_lshl_b32 s{sT2}, s{sW}, 19
    s_lshl_b32 s{sT0}, s{sB0}, 10
    s_add_u32 s{sT2}, s{sT2}, s{sT0}
    s_lshl_b32 s{sL}, s{sW}, 13""")
    for i in range(4):
        x_issue(a, sT2, 65536, sL, t0)
        a(f"""s_add_u32 s{sT2}, s{sT2}, 1024
        s_add_u32 s{sL}, s{sL}, 32768""")
    wload(a, 0)
    a(f"""s_and_b32 s{sT0}, s{sR}, 3
    s_lshl_b32 s{sT0}, s{sT0}, 2
    s_add_u32 s{sT0}, s{sT0}, s{sW}
    s_lshl_b32 s{sT0}, s{sT0}, 5
    v_and_b32 v{t0}, 31, v{lane}
    v_add_u32 v{t0}, s{sT0}, v{t0}
    v_lshrrev_b32 v{t1}, 5, v{lane}
    v_lshlrev_b32 v{vO}, 12, v{t0}
    v_lshl_add_u32 v{vO}, v{t1}, 10, v{vO}
    v_lshrrev_b32 v{kf}, 1, v{t0}
    v_and_b32 v{base}, 1, v{t0}
    v_lshlrev_b32 v{base}, 7, v{base}
    v_cmp_eq_u32 vcc, 1, v{t0}
    v_mov_b32 v{t2}, 256
    v_cndmask_b32 v{kf}, v{kf}, v{t2}, vcc
    v_cndmask_b32 v{base}, v{base}, 0, vcc
    v_lshlrev_b32 v{t1}, 3, v{t1}
    v_mad_u32_u24 v{base}, v{kf}, v{t1}, v{base}
    v_cvt_f32_u32 v{kf}, v{kf}
    v_cvt_f32_u32 v{base}, v{base}
    v_mul_f32 v{kf}, {fbits(1/512)}, v{kf}
    v_mul_f32 v{base}, {fbits(1/512)}, v{base}
    v_mul_f32 v{t2}, {fbits(16.0)}, v{kf}""")
    for ks in range(32):
        a(f"v_fract_f32 v{P}, v{base}")
        for j in range(1, 8): a(f"v_add_f32 v{P+j}, v{P+j-1}, v{kf}")
        a(f"v_add_f32 v{base}, v{P}, v{t2}")
        for j in range(8): a(f"v_cos_f32 v{P+j}, v{P+j}")
        for j in range(4): a(f"v_cvt_pk_bf16_f32 v{CN+4*ks+j}, v{P+2*j}, v{P+2*j+1}")
    a(f"""s_lshl_b32 s{sT2}, s{sB0}, 4
    s_add_u32 s{sT2}, s{sT2}, {WS_A1}
    s_waitcnt vmcnt(16)
    s_barrier""")
    for i in range(4):
        q = LdsQ(a)
        if i == 2:
            for v in range(8): a(f"v_add_u32 v{vA+v}, 0x10000, v{vA+v}")
        rd = lambda ks: f"ds_read_b128 {vr(FR + 4*(ks & 7), 4)}, v{vA + (ks & 7)} offset:{256 * (ks >> 3) + 32768 * (i & 1)}"
        tk = {}
        for ks in range(6): tk[ks] = q.op(rd(ks))
        acc = vr(ACC + 16 * i, 16)
        for ks in range(32):
            q.wait(tk[ks])
            a(f"v_mfma_f32_32x32x16_bf16 {acc}, {vr(FR+4*(ks&7),4)}, {vr(CN+4*ks,4)}, {'0' if ks == 0 else acc}")
            if ks + 6 < 32: tk[ks + 6] = q.op(rd(ks + 6))
    a(f"""s_barrier
    s_lshl_b32 s{sT0}, s{sW}, 13
    v_and_b32 v{t0}, 31, v{lane}
    v_lshrrev_b32 v{t1}, 5, v{lane}
    v_lshlrev_b32 v{t0}, 8, v{t0}
    v_lshl_add_u32 v{t0}, v{t1}, 6, v{t0}
    v_add_u32 v{t0}, s{sT0}, v{t0}
    v_lshlrev_b32 v{t1}, 4, v{lane}
    v_add_u32 v{t1}, s{sT0}, v{t1}
    v_lshrrev_b32 v{vO}, 2, v{lane}
    v_lshlrev_b32 v{vO}, 10, v{vO}
    v_and_b32 v{t2}, 3, v{lane}
    v_lshl_add_u32 v{vO}, v{t2}, 4, v{vO}
    s_and_b32 s{sT0}, s{sR}, 3
    s_lshl_b32 s{sT0}, s{sT0}, 2
    s_add_u32 s{sT0}, s{sT0}, s{sW}
    s_lshl_b32 s{sT0}, s{sT0}, 17
    s_add_u32 s{sT2}, s{sT2}, s{sT0}""")
    for i in range(4):
        for j in range(8): a(f"v_cvt_pk_bf16_f32 v{FR+8*i+j}, v{ACC+16*i+2*j}, v{ACC+16*i+2*j+1}")
        for k in range(2): a(f"ds_write_b128 v{t0}, {vr(FR+8*i+4*k,4)} offset:{128*k + 16*i}")
    a("s_waitcnt lgkmcnt(0)")
    for n in range(8): a(f"ds_read_b128 {vr(ACC+4*n,4)}, v{t1} offset:{1024*n}")
    for n in range(8):
        a(f"""s_waitcnt lgkmcnt({7-n})
        buffer_store_dwordx4 {vr(ACC+4*n,4)}, v{vO}, {W}, s{sT2} offen sc1
        s_add_u32 s{sT2}, s{sT2}, 16384""")
    a("s_waitcnt vmcnt(8)")
    wload(a, 1)
    arrive(a, 12, t0, t1, wb=False)

C32, C64 = CN, CN + 24
def c32(t, k): return vr(C32 + 8 * t + 4 * k, 4)
def c64(t, tile, b): return vr(C64 + 32 * t + 16 * tile + 4 * b, 4)

def gen_consts(a):
    f, h4, p = TM, TM + 1, TM + 2
    def block(dst_c, dst_s, dst_n, k0):
        for jj in range(8):
            a(f"v_add_f32 v{p}, {fbits(float(k0 + 8*(jj>>2) + (jj&3)))}, v{h4}")
            a(f"v_mul_f32 v{p}, v{p}, v{f}")
            a(f"v_fract_f32 v{p}, v{p}")
            a(f"v_cos_f32 v{p+2+(jj&1)}, v{p}")
            a(f"v_sin_f32 v{p+4+(jj&1)}, v{p}")
            if jj & 1:
                a(f"v_cvt_pk_bf16_f32 v{dst_c+(jj>>1)}, v{p+2}, v{p+3}")
                a(f"v_cvt_pk_bf16_f32 v{dst_s+(jj>>1)}, v{p+4}, v{p+5}")
                a(f"v_xor_b32 v{dst_n+(jj>>1)}, 0x80008000, v{dst_s+(jj>>1)}")
    a(f"""v_lshrrev_b32 v{h4}, 5, v{lane}
    v_lshlrev_b32 v{h4}, 2, v{h4}
    v_cvt_f32_u32 v{h4}, v{h4}
    v_and_b32 v{f}, 31, v{lane}
    v_cvt_f32_u32 v{f}, v{f}
    v_mul_f32 v{f}, {fbits(1/32)}, v{f}""")
    for k in range(2): block(C32 + 4*k, C32 + 8 + 4*k, C32 + 16 + 4*k, 16 * k)
    a(f"v_mul_f32 v{f}, 0.5, v{f}")
    for tile in range(2):
        if tile: a(f"v_add_f32 v{f}, 0.5, v{f}")
        for b in range(4): block(C64 + 16*tile + 4*b, C64 + 32 + 16*tile + 4*b, C64 + 64 + 16*tile + 4*b, 16 * b)

L_W = 131072
WT = 64
def wload(a, part):
    t0, t1, vW = 4, 5, 6
    if part == 0:
        set_srd(a, SRD_V, S_WR, 2048 * 257 * 2)
        set_srd(a, SRD_U, S_WI, 2048 * 257 * 2)
        a(f"""v_and_b32 v{t0}, 31, v{lane}
        v_lshrrev_b32 v{t1}, 5, v{lane}
        v_lshl_add_u32 v{vW}, v{t1}, 7, v{t0}
        v_mul_u32_u24 v{vW}, 514, v{vW}
        s_lshl_b32 s{sPASS}, s{sR}, 2
        s_min_u32 s{sPASS}, s{sPASS}, 253
        s_mul_i32 s{sT1}, s{sW}, {32 * 16 * 514}
        s_add_u32 s{sT1}, s{sT1}, s{sPASS}
        s_add_u32 s{sT1}, s{sT1}, s{sPASS}""")
        for r in range(8):
            a(f"""s_add_u32 s{sT0}, s{sT1}, {32 * perm(r) * 514}
            buffer_load_dwordx2 {ar(WT+4*r,2)}, v{vW}, {V}, s{sT0} offen
            buffer_load_dwordx2 {ar(WT+4*r+2,2)}, v{vW}, {U}, s{sT0} offen""")
    elif part == 1:
        a(f"""s_lshl_b32 s{sT0}, s{sW}, 12
        s_add_u32 s{sT0}, s{sT0}, {L_W}
        v_lshlrev_b32 v{t0}, 3, v{lane}
        v_add_u32 v{t0}, s{sT0}, v{t0}""")
        for r in range(8):
            a(f"ds_write_b64 v{t0}, {ar(WT+4*r,2)} offset:{512*r}")
            a(f"ds_write_b64 v{t0}, {ar(WT+4*r+2,2)} offset:{16384 + 512*r}")
        a("s_waitcnt lgkmcnt(0)")
    else:
        a(f"""s_sub_u32 s{sT0}, s{sK}, s{sPASS}
        s_lshl_b32 s{sT0}, s{sT0}, 1
        s_add_u32 s{sT0}, s{sT0}, {L_W}
        v_lshlrev_b32 v{t0}, 3, v{lane}
        v_add_u32 v{t0}, s{sT0}, v{t0}""")
        for i in range(64): a(f"v_accvgpr_write_b32 a{i}, 0")
        for i in range(64): a(f"ds_read_u16_d16_hi a{i}, v{t0} offset:{512*i}")
        a("s_waitcnt lgkmcnt(0)")

def stage2(a):
    t0, t1, vW, vLD, vIM, vSI = 4, 5, 6, 7, 8, 9
    R = lambda tile: ACC + 32 * tile
    I = lambda tile: ACC + 32 * tile + 16
    fr = lambda part, beta: FR + 16 * part + 4 * beta
    a(f"""v_and_b32 v{t0}, 31, v{lane}
    v_lshrrev_b32 v{t1}, 5, v{lane}
    v_lshlrev_b32 v{vLD}, 4, v{t0}
    v_lshl_add_u32 v{vLD}, v{t1}, 10, v{vLD}
    v_lshlrev_b32 v{vO}, 4, v{lane}""")
    a(f"""s_lshl_b32 s{sRE}, s{sK}, 13
    s_mov_b32 s{sSC}, {fbits(2.0**-19)}
    s_mov_b32 s{sIM}, 4096
    s_and_b32 s{sT0}, s{sK}, 255
    s_cmp_eq_u32 s{sT0}, 0
    s_cselect_b32 s{sSC}, {fbits(2.0**-20)}, s{sSC}
    s_cselect_b32 s{sIM}, 0x40000000, s{sIM}
    s_cmp_eq_u32 s{sK}, 256
    s_cselect_b32 s{sRE}, 4096, s{sRE}
    v_add_u32 v{vIM}, s{sIM}, v{vLD}
    v_add_u32 v{vSI}, s{sIM}, v{vO}""")
    gen_consts(a)
    wait_dbg(a, "PA2_W", 12, 64, t0, t1, sCNT, sT0, "EXIT")
    a(f"s_add_u32 s{sT0}, s{sRE}, {WS_A1}")
    for part in range(2):
        for bt in range(2):
            for k in range(2):
                a(f"buffer_load_dwordx4 {vr(fr(part, 2*bt+k),4)}, v{vIM if part else vLD}, {W}, s{sT0} offen offset:{2048*k + 512*bt} sc1")
    a("s_waitcnt vmcnt(0)")
    def mm(acc, terms):
        for n, (x, y) in enumerate(terms):
            a(f"v_mfma_f32_32x32x16_bf16 {vr(acc,16)}, {x}, {y}, {'0' if n == 0 else vr(acc,16)}")
    F = lambda part, beta: vr(fr(part, beta), 4)
    def small(sgn):
        for bt in range(2):
            mm(R(bt), [(F(0, 2*bt+k), c32(0, k)) for k in range(2)] + [(F(1, 2*bt+k), c32(2 if sgn else 1, k)) for k in range(2)])
            mm(I(bt), [(F(1, 2*bt+k), c32(0, k)) for k in range(2)] + [(F(0, 2*bt+k), c32(1 if sgn else 2, k)) for k in range(2)])
    def pack():
        for tile in range(2):
            for j in range(8):
                a(f"v_cvt_pk_bf16_f32 v{FR+8*tile+j}, v{R(tile)+2*j}, v{R(tile)+2*j+1}")
                a(f"v_cvt_pk_bf16_f32 v{FR+16+8*tile+j}, v{I(tile)+2*j}, v{I(tile)+2*j+1}")
    def cmul(x, y, c, s, t, conj):
        a(f"v_mul_f32 v{t}, v{y}, v{s}")
        a(f"v_mul_f32 v{y}, v{y}, v{c}")
        a(f"v_fma_f32 v{y}, {'-' if conj else ''}v{x}, v{s}, v{y}")
        a(f"v_fma_f32 v{x}, v{x}, v{c}, {'' if conj else '-'}v{t}")
    def twiddle(fwd):
        f, h4 = TM, TM + 1
        a(f"""v_lshrrev_b32 v{h4}, 5, v{lane}
        v_lshlrev_b32 v{h4}, 2, v{h4}
        v_cvt_f32_u32 v{h4}, v{h4}
        v_and_b32 v{f}, 31, v{lane}
        v_cvt_f32_u32 v{f}, v{f}
        v_mul_f32 v{f}, {fbits(1/2048)}, v{f}""")
        for tile in range(2):
            if tile and not fwd: a(f"v_add_f32 v{f}, {fbits(32/2048)}, v{f}")
            for r in range(16):
                p = TM + 4 + 4 * (r & 1)
                x = perm(r) + (32 * tile if fwd else 0)
                a(f"v_add_f32 v{p}, {fbits(float(x))}, v{h4}")
                a(f"v_mul_f32 v{p}, v{p}, v{f}")
                a(f"v_cos_f32 v{p+1}, v{p}")
                a(f"v_sin_f32 v{p+2}, v{p}")
                cmul(R(tile) + r, I(tile) + r, p + 1, p + 2, p + 3, conj=fwd)
    small(0)
    twiddle(True)
    pack()
    for et in range(2):
        mm(R(et), [(c64(0, et, b), F(0, b)) for b in range(4)] + [(c64(1, et, b), F(1, b)) for b in range(4)])
        mm(I(et), [(c64(0, et, b), F(1, b)) for b in range(4)] + [(c64(2, et, b), F(0, b)) for b in range(4)])
    for et in range(2):
        for r in range(16):
            p = TM + 4 + 4 * (r & 1)
            a(f"v_accvgpr_read_b32 v{p+1}, a{16*et+r}")
            a(f"v_accvgpr_read_b32 v{p+2}, a{32+16*et+r}")
            cmul(R(et) + r, I(et) + r, p + 1, p + 2, p + 3, conj=False)
    pack()
    for bt in range(2):
        mm(R(bt), [(F(0, e), c64(0, bt, e)) for e in range(4)] + [(F(1, e), c64(2, bt, e)) for e in range(4)])
        mm(I(bt), [(F(1, e), c64(0, bt, e)) for e in range(4)] + [(F(0, e), c64(1, bt, e)) for e in range(4)])
    twiddle(False)
    pack()
    small(1)
    for i in range(64): a(f"v_mul_f32 v{ACC+i}, s{sSC}, v{ACC+i}")
    pack()
    a(f"s_add_u32 s{sT0}, s{sRE}, {WS_A2}")
    for part in range(2):
        for b in range(4):
            a(f"buffer_store_dwordx4 {F(part, b)}, v{vSI if part else vO}, {W}, s{sT0} offen offset:{1024*b} sc1")
    a.label("PA2_END")
    arrive(a, 16, t0, t1, wb=False)

def stage3(a):
    t0, t1, t2, vD, vTR = 4, 5, 6, 7, 8
    df, base, P = TM, TM + 1, TM + 8
    stage_consts(a, vD, vTR, lane, t0, t1, t2, 12)
    for tt in range(1, 4): a(f"v_xor_b32 v{vTR+tt}, {64*tt}, v{vTR}")
    for tt in range(4): a(f"v_add_u32 v{vTR+4+tt}, 0x10000, v{vTR+tt}")
    a(f"""s_and_b32 s{sT0}, s{sR}, 3
    s_lshl_b32 s{sT0}, s{sT0}, 2
    s_add_u32 s{sT0}, s{sT0}, s{sW}
    s_lshl_b32 s{sB0}, s{sT0}, 5
    v_and_b32 v{t0}, 3, v{lane}
    v_bfe_u32 v{t1}, v{lane}, 2, 1
    v_lshl_add_u32 v{t2}, v{t1}, 4, v{t0}
    v_bfe_u32 v{df}, v{lane}, 3, 2
    v_lshl_add_u32 v{t2}, v{df}, 2, v{t2}
    v_add_u32 v{t2}, s{sB0}, v{t2}
    v_lshl_add_u32 v{vO}, v{t1}, 3, v{t0}
    v_lshl_add_u32 v{vO}, v{df}, 6, v{vO}
    v_lshrrev_b32 v{t1}, 5, v{lane}
    v_lshlrev_b32 v{vO}, 11, v{vO}
    v_lshl_add_u32 v{vO}, v{t1}, 5, v{vO}
    v_cvt_f32_u32 v{df}, v{t2}
    v_mul_f32 v{df}, {fbits(1/512)}, v{df}
    v_lshlrev_b32 v{t1}, 2, v{t1}
    v_cvt_f32_u32 v{base}, v{t1}
    v_mul_f32 v{base}, v{base}, v{df}
    v_mul_f32 v{t2}, {fbits(8.0)}, v{df}
    v_mul_f32 v{t0}, {fbits(256.0)}, v{df}
    v_fract_f32 v{t0}, v{t0}
    v_cmp_gt_u32 vcc, 32, v{lane}""")
    for ks in range(32):
        a(f"v_fract_f32 v{P}, v{base}")
        for j in range(1, 4): a(f"v_add_f32 v{P+2*j}, v{P+2*j-2}, v{df}")
        for j in range(4): a(f"v_add_f32 v{P+2*j+1}, {fbits(0.25)}, v{P+2*j}")
        a(f"v_add_f32 v{base}, v{P}, v{t2}")
        if ks == 0: a(f"v_cndmask_b32 v{P+1}, v{P+1}, v{t0}, vcc")
        for j in range(8): a(f"v_cos_f32 v{P+j}, v{P+j}")
        for j in range(4): a(f"v_cvt_pk_bf16_f32 v{CN+4*ks+j}, v{P+2*j}, v{P+2*j+1}")
    wait_dbg(a, "PA3_W", 16, 65, t0, t1, sCNT, sT0, "EXIT")
    a(f"""s_lshr_b32 s{sT1}, s{sR}, 2
    s_lshl_b32 s{sT2}, s{sT1}, 8
    s_add_u32 s{sT2}, s{sT2}, {WS_A2}
    s_lshl_b32 s{sL}, s{sW}, 10""")
    for i in range(32):
        a(f"""s_add_u32 m0, s{sL}, {4096*i}
        s_add_u32 s{sT0}, s{sT2}, {65536*i}
        buffer_load_dwordx4 v{vD}, {W}, s{sT0} offen sc1 lds""")
    set_srd(a, SRD_T, S_OUT, 4 * MB)
    a(f"""s_and_b32 s{sT0}, s{sT1}, 1
    s_lshl_b32 s{sT2}, s{sT0}, 10
    s_lshr_b32 s{sT0}, s{sT1}, 2
    s_lshl_b32 s{sT0}, s{sT0}, 4
    s_add_u32 s{sT2}, s{sT2}, s{sT0}
    s_and_b32 s{sT0}, s{sT1}, 2
    s_lshl_b32 s{sT0}, s{sT0}, 1
    s_add_u32 s{sT2}, s{sT2}, s{sT0}
    s_lshl_b32 s{sT2}, s{sT2}, 11
    s_lshl_b32 s{sT0}, s{sB0}, 1
    s_add_u32 s{sT2}, s{sT2}, s{sT0}
    s_waitcnt vmcnt(0)
    s_barrier""")
    for tt in range(4):
        q = LdsQ(a)
        def rd(ks):
            for m in range(2):
                t = q.op(f"ds_read_b64_tr_b16 {vr(FR + 4*(ks & 7) + 2*m, 2)}, v{vTR + tt + 4*(ks >> 4)} offset:{4096*(ks & 15) + 1024*m}")
            return t
        tk = {}
        for ks in range(6): tk[ks] = rd(ks)
        acc = vr(ACC + 16 * tt, 16)
        for ks in range(32):
            q.wait(tk[ks])
            a(f"v_mfma_f32_32x32x16_bf16 {acc}, {vr(CN+4*ks,4)}, {vr(FR+4*(ks&7),4)}, {'0' if ks == 0 else acc}")
            if ks + 6 < 32: tk[ks + 6] = rd(ks + 6)
    for tt in range(4):
        for j in range(8): a(f"v_cvt_pk_bf16_f32 v{FR+8*tt+j}, v{ACC+16*tt+2*j}, v{ACC+16*tt+2*j+1}")
        for k in range(2): a(f"buffer_store_dwordx4 {vr(FR+8*tt+4*k,4)}, v{vO}, {T}, s{sT2} offen offset:{16*k} sc1")
        a(f"s_add_u32 s{sT2}, s{sT2}, 524288")

def pa_role(a, first_role):
    a.label("PA")
    a(f"""s_sub_u32 s{sR}, s{sROLE}, {first_role}
    v_and_b32 v{lane}, 63, v0
    s_lshl_b32 s{sK}, s{sR}, 2
    s_add_u32 s{sK}, s{sK}, s{sW}
    s_cmp_lt_u32 s{sR}, 64
    s_cbranch_scc1 PA1""")
    wload(a, 0); a("s_waitcnt vmcnt(0)"); wload(a, 1)
    a(f"""s_barrier
    s_cmp_gt_u32 s{sK}, 256
    s_cbranch_scc1 PA2_END
    s_branch PA2""")
    a.label("PA1")
    import os
    for _ in range(int(os.environ.get("PASL", "0"))): a("s_sleep 127")
    stage1(a); rt(a, 2)
    a.label("PA2")
    wload(a, 2)
    stage2(a); rt(a, 3)
    a(f"""s_cmp_ge_u32 s{sR}, 64
    s_cbranch_scc1 OP""")
    stage3(a); rt(a, 4)
```

```python
from asmlib import *
from layout import *
from chain import (S_BX, S_WQ, S_WK, S_WV, S_DBG, SRD_WS, SRD_T, sW, sROLE, W, set_srd, LdsQ, SPIN_MAX, rt, RT)

sH, sJ, sN, sT0, sT1, sT2, sCNT, sXO, sPA, sPB, sC, sFKV, sFO, sFM, sKXo, sMo, sOo, sL = range(48, 66)
sMASK = 66
T = f"s[{SRD_T}:{SRD_T+3}]"

vL16, vXS, vKS, vVS, vKM, vVM, vOS, vZ = range(8)
vA = 8
ACC, XR, TMP = 16, 64, 96
L_PEND = 65536

def join_init(a, t0, t1, val="1"):
    a(f"""v_mov_b32 v{t0}, {val}
    v_mov_b32 v{t1}, 8
    s_mov_b64 exec, 1
    global_atomic_add v{t1}, v{t0}, s[{S_DBG}:{S_DBG+1}]
    s_mov_b64 exec, -1""")

INIT_TARGET = 128

def wait_dbg(a, name, off, target, t0, t1, sC_, sT_, fail, mask=False):
    a(f"""s_mov_b32 s{sC_}, 0
    v_mov_b32 v{t0}, {off}""")
    a.label(name)
    a(f"""global_load_dword v{t1}, v{t0}, s[{S_DBG}:{S_DBG+1}] sc1
    s_add_u32 s{sC_}, s{sC_}, 1
    s_cmp_gt_u32 s{sC_}, {SPIN_MAX}
    s_cbranch_scc1 {fail}
    s_waitcnt vmcnt(0)
    v_readfirstlane_b32 s{sT_}, v{t1}""")
    if mask: a(f"s_and_b32 s{sT_}, s{sT_}, 0xffff")
    a(f"""s_cmp_ge_u32 s{sT_}, {target}
    s_cbranch_scc1 {name}_OK
    s_sleep 4
    s_branch {name}""")
    a.label(name + "_OK")

def stage_consts(a, vD, vTR, lane, t0, t1, t2, rowshift):
    a(f"""v_lshrrev_b32 v{t0}, 4, v{lane}
    v_lshlrev_b32 v{t1}, 2, v{t0}
    v_and_b32 v{t2}, 15, v{lane}
    v_xor_b32 v{t1}, v{t1}, v{t2}
    v_lshlrev_b32 v{t1}, 4, v{t1}
    s_lshl_b32 s{sT0}, s{sW}, 2
    v_add_u32 v{t2}, s{sT0}, v{t0}
    v_lshl_add_u32 v{vD}, v{t2}, {rowshift}, v{t1}
    v_bfe_u32 v{t1}, v{lane}, 2, 2
    v_and_b32 v{t2}, 1, v{t0}
    v_lshl_add_u32 v{t2}, v{t1}, 1, v{t2}
    v_lshlrev_b32 v{t2}, 5, v{t2}
    v_lshl_add_u32 v{t2}, v{t1}, 8, v{t2}
    v_and_b32 v{t1}, 3, v{lane}
    v_lshl_add_u32 v{t2}, v{t1}, 3, v{t2}
    v_lshrrev_b32 v{t0}, 1, v{t0}
    v_lshl_add_u32 v{vTR}, v{t0}, 11, v{t2}""")

def x_consts(a, lane, t0, t1):
    a(f"""s_and_b32 s{sT0}, s{sW}, 1
    s_lshl_b32 s{sT0}, s{sT0}, 3
    v_xor_b32 v{vXS}, s{sT0}, v{lane}
    v_lshlrev_b32 v{vXS}, 4, v{vXS}
    v_and_b32 v{t0}, 15, v{lane}
    v_lshrrev_b32 v{t1}, 5, v{lane}
    v_xor_b32 v{t0}, v{t0}, v{t1}
    v_lshlrev_b32 v{t0}, 4, v{t0}
    v_and_b32 v{t1}, 31, v{lane}
    v_lshl_add_u32 v{vA}, v{t1}, 10, v{t0}""")
    for v in range(1, 8): a(f"v_xor_b32 v{vA+v}, {32*v}, v{vA}")

def x_issue(a, sRow0, rowstride, sLds, tmp):
    for r in range(8):
        a(f"""v_xor_b32 v{tmp+(r&1)}, {16*r}, v{vXS}
        s_add_u32 m0, s{sLds}, {1024*r}
        s_add_u32 s{sT1}, s{sRow0}, {rowstride*r}
        buffer_load_dwordx4 v{tmp+(r&1)}, {T}, s{sT1} offen lds""")

def wf(mat, ks): return wr(128 + (mat * 32 + ks) * 4, 4)

def flag_store(a, name, sOff, sVal, t0):
    a(f"""s_cmp_lg_u32 s{sW}, 0
    s_cbranch_scc1 {name}
    v_mov_b32 v{t0}, s{sVal}
    s_mov_b64 exec, 1
    buffer_store_dword v{t0}, v{vZ}, {W}, s{sOff} offen sc1
    s_mov_b64 exec, -1""")
    a.label(name)

def phase_a(a, tag):
    q = LdsQ(a)
    a(f"""s_waitcnt vmcnt(0)
    s_barrier
    s_cmp_ge_u32 s{sN}, {64 // NG - 1}
    s_cbranch_scc1 QA_NOX_{tag}
    s_add_u32 s{sXO}, s{sXO}, {NG * 32 * 1024}
    s_xor_b32 s{sL}, s{sL}, 32768""")
    x_issue(a, sXO, 1024, sL, TMP)
    a.label(f"QA_NOX_{tag}")
    rd = lambda ks: f"ds_read_b128 {vr(XR + 4*(ks & 7), 4)}, v{vA + (ks & 7)} offset:{256 * (ks >> 3)}"
    tk = {}
    for ks in range(6): tk[ks] = q.op(rd(ks))
    for ks in range(32):
        q.wait(tk[ks])
        x = vr(XR + 4*(ks & 7), 4)
        for mat in range(3):
            acc = vr(ACC + 16*mat, 16)
            c = "0" if ks == 0 else acc
            if mat < 2: a(f"v_mfma_f32_32x32x16_bf16 {acc}, {wf(mat, ks)}, {x}, {c}")
            else: a(f"v_mfma_f32_32x32x16_bf16 {acc}, {x}, {wf(mat, ks)}, {c}")
            if mat == 0 and ks + 6 < 32: tk[ks + 6] = q.op(rd(ks + 6))
    for v in range(8): a(f"v_xor_b32 v{vA+v}, 0x8000, v{vA+v}")
    a(f"v_add_u32 v{XR}, s{sPA}, v{vL16}")
    ORD = (0, 1, 4, 5, 2, 3, 6, 7)
    for mat in range(3):
        for i in range(8):
            d = ORD[i] if mat == 2 else i
            a(f"v_cvt_pk_bf16_f32 v{TMP + 8*mat + i}, v{ACC + 16*mat + 2*d}, v{ACC + 16*mat + 2*d + 1}")
        for h in range(2):
            if mat == 1: a(f"buffer_store_dwordx4 {vr(TMP+8+4*h,4)}, v{vKS}, {W}, s{sKXo} offen offset:{512*h} sc1")
            if mat == 2: a(f"buffer_store_dwordx4 {vr(TMP+16+4*h,4)}, v{vVS}, {W}, s{sKXo} offen offset:{512*h} sc1")
            a(f"ds_write_b128 v{XR}, {vr(TMP+8*mat+4*h,4)} offset:{8192*mat + 1024*h}")
    a(f"""s_add_u32 s{sKXo}, s{sKXo}, {NG * 256 * KB}
    s_add_u32 s{sPA}, s{sPA}, 24576
    s_cmp_ge_u32 s{sPA}, {L_PEND + 3 * 24576}
    s_cbranch_scc0 QA_PA_{tag}
    s_sub_u32 s{sPA}, s{sPA}, {3 * 24576}""")
    a.label(f"QA_PA_{tag}")
    a(f"""s_add_u32 s{sN}, s{sN}, 1
    s_waitcnt vmcnt(0) lgkmcnt(0)
    s_barrier""")
    flag_store(a, f"QA_FA_{tag}", sFKV, sN, TMP)

def phase_b(a, tag):
    SX, SM, O = ACC, ACC + 16, ACC + 32
    q = LdsQ(a)
    a(f"""s_lshl_b32 s{sT0}, s{sW}, 11
    s_sub_u32 s{sT0}, s{sPB}, s{sT0}
    v_add_u32 v{O}, s{sT0}, v{vL16}
    v_add_u32 v{O+1}, s{sPB}, v{vL16}""")
    QF, KF = XR, TMP
    tk = []
    for k in range(8):
        q.op(f"ds_read_b128 {vr(QF+4*k,4)}, v{O} offset:{1024*k}")
        tk.append(q.op(f"ds_read_b128 {vr(KF+4*k,4)}, v{O} offset:{8192 + 1024*k}"))
        if k == 5:
            for kk in range(3):
                q.wait(tk[kk])
                a(f"v_mfma_f32_32x32x16_bf16 {vr(SX,16)}, {vr(KF+4*kk,4)}, {vr(QF+4*kk,4)}, {'0' if kk == 0 else vr(SX,16)}")
    for kk in range(3, 8):
        q.wait(tk[kk])
        a(f"v_mfma_f32_32x32x16_bf16 {vr(SX,16)}, {vr(KF+4*kk,4)}, {vr(QF+4*kk,4)}, {vr(SX,16)}")
    a(f"""s_mul_i32 s{sT1}, s{sT2}, {NG}
    s_add_u32 s{sT1}, s{sT1}, s{sJ}
    s_cmp_lg_u32 s{sW}, 0
    s_cbranch_scc1 QA_W2_{tag}
    s_mov_b32 s{sCNT}, 0""")
    a.label(f"QA_W1_{tag}")
    a(f"""buffer_load_dword v{O+2}, v{vZ}, {W}, s{sFM} offen sc1
    s_add_u32 s{sCNT}, s{sCNT}, 1
    s_cmp_gt_u32 s{sCNT}, {SPIN_MAX}
    s_cbranch_scc1 EXIT
    s_waitcnt vmcnt(0)
    v_readfirstlane_b32 s{sT0}, v{O+2}
    s_cmp_gt_i32 s{sT0}, s{sT1}
    s_cbranch_scc1 QA_W2_{tag}
    s_sleep 2
    s_branch QA_W1_{tag}""")
    a.label(f"QA_W2_{tag}")
    a("s_barrier")
    for k in range(8):
        a(f"buffer_load_dwordx4 {vr(KF+4*k,4)}, v{vKM}, {W}, s{sMo} offen offset:{512*k} sc1")
    VM = O + 4
    a(f"""buffer_load_dword v{VM}, v{vVM}, {W}, s{sMo} offen sc1
    buffer_load_dword v{VM+1}, v{vVM}, {W}, s{sMo} offen offset:256 sc1
    v_mov_b32 v{O+2}, 0xff800000""")
    for r in range(16): a(f"v_cndmask_b32 v{SX+r}, v{O+2}, v{SX+r}, s[{sMASK+2*r}:{sMASK+2*r+1}]")
    m_, t_, l_ = O + 8, O + 9, O + 10
    a(f"v_max3_f32 v{m_}, v{SX}, v{SX+1}, v{SX+2}")
    for i in range(3, 15, 2): a(f"v_max3_f32 v{m_}, v{m_}, v{SX+i}, v{SX+i+1}")
    a(f"v_max_f32 v{m_}, v{m_}, v{SX+15}")
    for k in range(8):
        a(f"s_waitcnt vmcnt({9-k})")
        a(f"v_mfma_f32_32x32x16_bf16 {vr(SM,16)}, {vr(KF+4*k,4)}, {vr(QF+4*k,4)}, {'0' if k == 0 else vr(SM,16)}")
    VF = XR
    q.op(f"ds_read_b128 {vr(VF,4)}, v{O+1} offset:16384")
    tv = q.op(f"ds_read_b128 {vr(VF+4,4)}, v{O+1} offset:17408")
    a(f"""v_max3_f32 v{m_}, v{m_}, v{SM}, v{SM+1}
    v_max3_f32 v{m_}, v{m_}, v{SM+2}, v{SM+3}
    v_mov_b32 v{t_}, v{m_}
    v_permlane32_swap_b32 v{m_}, v{t_}
    v_max_f32 v{m_}, v{m_}, v{t_}
    v_mul_f32 v{m_}, s{sC}, v{m_}""")
    for r in range(20): a(f"v_fma_f32 v{SX+r}, v{SX+r}, s{sC}, -v{m_}")
    for r in range(20): a(f"v_exp_f32 v{SX+r}, v{SX+r}")
    P = TMP
    ORD = (0, 1, 4, 5, 2, 3, 6, 7)
    for i in range(8): a(f"v_cvt_pk_bf16_f32 v{P+i}, v{SX+2*ORD[i]}, v{SX+2*ORD[i]+1}")
    a(f"""v_cvt_pk_bf16_f32 v{P+8}, v{SM}, v{SM+1}
    v_cvt_pk_bf16_f32 v{P+9}, v{SM+2}, v{SM+3}
    v_mov_b64 {vr(P+10,2)}, 0
    s_waitcnt vmcnt(0)
    v_mov_b64 {vr(VF+8,2)}, {vr(VM,2)}
    v_mov_b64 {vr(VF+10,2)}, 0""")
    L = SM + 4
    a(f"v_add_f32 v{L}, v{SX}, v{SX+1}")
    for r in range(2, 20): a(f"v_add_f32 v{L}, v{L}, v{SX+r}")
    q.wait(tv)
    for k in range(3):
        a(f"v_mfma_f32_32x32x16_bf16 {vr(O,16)}, {vr(VF+4*k,4)}, {vr(P+4*k,4)}, {'0' if k == 0 else vr(O,16)}")
    a(f"""v_mov_b32 v{L+1}, v{L}
    v_permlane32_swap_b32 v{L}, v{L+1}
    v_add_f32 v{L}, v{L}, v{L+1}
    v_rcp_f32 v{L}, v{L}""")
    for r in range(16): a(f"v_mul_f32 v{O+r}, v{O+r}, v{L}")
    for i in range(8): a(f"v_cvt_pk_bf16_f32 v{SX+i}, v{O+2*i}, v{O+2*i+1}")
    a(f"""buffer_store_dwordx4 {vr(SX,4)}, v{vOS}, {W}, s{sOo} offen sc1
    buffer_store_dwordx4 {vr(SX+4,4)}, v{vOS}, {W}, s{sOo} offen offset:512 sc1
    s_add_u32 s{sOo}, s{sOo}, {NG * 256 * KB}
    s_add_u32 s{sMo}, s{sMo}, {NG * 128 * KB}
    s_add_u32 s{sPB}, s{sPB}, 24576
    s_cmp_ge_u32 s{sPB}, {L_PEND + 3 * 24576}
    s_cbranch_scc0 QA_PB_{tag}
    s_sub_u32 s{sPB}, s{sPB}, {3 * 24576}""")
    a.label(f"QA_PB_{tag}")
    a(f"""s_add_u32 s{sT2}, s{sT2}, 1
    s_waitcnt vmcnt(0)
    s_barrier""")
    flag_store(a, f"QA_FB_{tag}", sFO, sT2, TMP)

def qa_role(a):
    a.label("QA")
    lane, vD, vTR, t0, t1, t2, vTA = 16, 17, 18, 19, 20, 21, 22
    a(f"""s_sub_u32 s{sT0}, s{sROLE}, 32
    s_lshr_b32 s{sH}, s{sT0}, 2
    s_and_b32 s{sJ}, s{sT0}, 3
    v_and_b32 v{lane}, 63, v0
    v_mov_b32 v{vZ}, 0
    s_lshl_b32 s{sFM}, s{sH}, 7
    s_lshl_b32 s{sT0}, s{sJ}, 2
    s_add_u32 s{sFKV}, s{sFM}, s{sT0}
    s_add_u32 s{sFKV}, s{sFKV}, {WS_FLAGS + F_KV}
    s_add_u32 s{sFM}, s{sFM}, {WS_FLAGS + F_M}
    s_lshl_b32 s{sFO}, s{sJ}, 7
    s_lshl_b32 s{sT0}, s{sH}, 2
    s_add_u32 s{sFO}, s{sFO}, s{sT0}
    s_add_u32 s{sFO}, s{sFO}, {WS_FLAGS + F_O}
    """)
    stage_consts(a, vD, vTR, lane, t0, t1, t2, 13)
    a(f"""s_lshl_b32 s{sT0}, s{sH}, 8
    v_add_u32 v{vD}, s{sT0}, v{vD}
    s_lshl_b32 s{sT0}, s{sW}, 6
    v_xor_b32 v{vTR}, s{sT0}, v{vTR}
    v_add_u32 v{vTA}, 0x10000, v{vTR}
    s_lshl_b32 s{sT2}, s{sW}, 10""")
    order = [1, 2, 0]
    ptrs = [S_WQ, S_WK, S_WV]
    def issue(u):
        if u & 3 == 0: set_srd(a, SRD_T, ptrs[order[u >> 2]], 4 * MB)
        for i in range(8):
            a(f"""s_add_u32 m0, s{sT2}, {(u & 3) * 32768 + i * 4096}
            s_mov_b32 s{sT0}, {(128 * (u & 3) + 16 * i) * 8192}
            buffer_load_dwordx4 v{vD}, {T}, s{sT0} offen lds""")
    for u in range(4): issue(u)
    x_consts(a, lane, t0, t1)
    a(f"""v_lshlrev_b32 v{vL16}, 4, v{lane}
    v_and_b32 v{t0}, 15, v{lane}
    v_lshrrev_b32 v{t1}, 5, v{lane}
    v_lshlrev_b32 v{t0}, 4, v{t0}
    v_lshl_add_u32 v{t0}, v{t1}, 8, v{t0}
    v_bfe_u32 v{t2}, v{lane}, 4, 1
    v_lshl_add_u32 v{vKS}, v{t2}, 12, v{t0}
    v_add_u32 v{vKS}, s{sT2}, v{vKS}
    v_lshl_add_u32 v{vVS}, v{t2}, 10, v{t0}
    s_lshl_b32 s{sT0}, s{sW}, 11
    s_add_u32 s{sPA}, s{sT0}, {L_PEND}
    s_mov_b32 s{sPB}, s{sPA}
    s_add_u32 s{sT0}, s{sT0}, {WS_VX - WS_KX}
    v_add_u32 v{vVS}, s{sT0}, v{vVS}
    """)
    a(f"""v_bfe_u32 v{t0}, v{lane}, 1, 2
    v_lshlrev_b32 v{t0}, 6, v{t0}
    v_lshl_add_u32 v{t0}, v{t1}, 8, v{t0}
    v_and_b32 v{vVM}, 1, v{lane}
    v_lshlrev_b32 v{vVM}, 4, v{vVM}
    v_add3_u32 v{vKM}, v{t0}, v{vVM}, 32
    v_lshl_add_u32 v{vVM}, v{t2}, 2, v{vVM}
    v_bfe_u32 v{t0}, v{lane}, 1, 1
    v_lshl_add_u32 v{vVM}, v{t0}, 3, v{vVM}
    v_bfe_u32 v{t0}, v{lane}, 2, 2
    v_lshl_add_u32 v{vVM}, v{t0}, 6, v{vVM}
    v_lshl_add_u32 v{vVM}, v{t1}, 9, v{vVM}
    v_add_u32 v{vVM}, s{sT2}, v{vVM}
    v_and_b32 v{t0}, 7, v{lane}
    v_lshlrev_b32 v{t0}, 4, v{t0}
    v_lshl_add_u32 v{t0}, v{t1}, 8, v{t0}
    v_bfe_u32 v{vOS}, v{lane}, 3, 2
    v_lshl_add_u32 v{vOS}, v{vOS}, 16, v{t0}
    s_lshr_b32 s{sT0}, s{sW}, 1
    s_lshl_b32 s{sT0}, s{sT0}, 10
    s_and_b32 s{sT1}, s{sW}, 1
    s_lshl_b32 s{sT1}, s{sT1}, 7
    s_add_u32 s{sT0}, s{sT0}, s{sT1}
    v_add_u32 v{vOS}, s{sT0}, v{vOS}
    v_and_b32 v{t0}, 31, v{lane}
    v_lshlrev_b32 v{t1}, 2, v{t1}
    v_sub_u32 v{t0}, v{t0}, v{t1}""")
    for r in range(16): a(f"v_cmp_le_i32 s[{sMASK+2*r}:{sMASK+2*r+1}], {8*(r>>2) + (r&3)}, v{t0}")
    a(f"""s_lshl_b32 s{sT0}, s{sJ}, 5
    s_add_u32 s{sT0}, s{sT0}, s{sH}
    s_lshl_b32 s{sKXo}, s{sT0}, 13
    s_add_u32 s{sKXo}, s{sKXo}, {WS_KX}
    s_lshl_b32 s{sMo}, s{sT0}, 12
    s_add_u32 s{sMo}, s{sMo}, {WS_KM}
    s_lshl_b32 s{sOo}, s{sJ}, 18
    s_lshl_b32 s{sT0}, s{sH}, 11
    s_add_u32 s{sOo}, s{sOo}, s{sT0}
    s_add_u32 s{sOo}, s{sOo}, {WS_O}
    s_mov_b32 s{sC}, 0x3e0293ee
    s_lshl_b32 s{sL}, s{sW}, 13
    s_lshl_b32 s{sXO}, s{sJ}, 15
    s_add_u32 s{sXO}, s{sXO}, s{sL}
    s_mov_b32 s{sN}, 0""")
    for u in range(12):
        a(f"s_waitcnt vmcnt({8 * min(3, 12 - u)})")
        a("s_barrier")
        for i in range(8):
            d = 128 + (order[u >> 2] * 32 + 8 * (u & 3) + i) * 4
            for m in range(2):
                a(f"ds_read_b64_tr_b16 {wr(d + 2*m, 2)}, v{vTA if u & 2 else vTR} offset:{(u & 1)*32768 + i*4096 + m*1024}")
        a("s_waitcnt lgkmcnt(0)")
        a("s_barrier")
        if u == 7: a(f"global_load_dword v{t2}, v{vZ}, s[{S_DBG}:{S_DBG+1}] offset:{D_INIT} sc1")
        if u + 4 < 12: issue(u + 4)
        if u == 8:
            set_srd(a, SRD_T, S_BX, 2 * MB)
            x_issue(a, sXO, 1024, sL, t0)
    a(f"""v_readfirstlane_b32 s{sT0}, v{t2}
    s_cmp_ge_u32 s{sT0}, {INIT_TARGET}
    s_cbranch_scc1 QA_INIT_OK""")
    wait_dbg(a, "QA_INIT", D_INIT, INIT_TARGET, t0, t1, sCNT, sT0, "EXIT")
    rt(a, 3)
    a(f"s_mov_b32 s{sT2}, 0")
    a.label("QA_LOOP")
    a(f"""s_cmp_ge_u32 s{sN}, {64 // NG}
    s_cbranch_scc1 QA_B""")
    phase_a(a, "l")
    if RT["on"]:
        a(f"s_cmp_lg_u32 s{sN}, 1\ns_cbranch_scc1 QA_RT")
        rt(a, 4)
        a.label("QA_RT")
    a(f"""s_cmp_lt_u32 s{sN}, 3
    s_cbranch_scc1 QA_LOOP""")
    a.label("QA_B")
    phase_b(a, "l")
    a(f"""s_cmp_lt_u32 s{sT2}, {64 // NG}
    s_cbranch_scc1 QA_LOOP""")
    rt(a, 7)
    a("""s_waitcnt vmcnt(0)
    s_endpgm""")
```

```python
import sys
from asmlib import *
from layout import *
import chain
from chain import *
import qa, op, pa

KNAME = "concat_heads__spectral_gfnet__memory_aug_recurrent_mem_tr__prompt_kernel"

def prologue(a):
    a(f"""
    s_cmp_ge_u32 s2, 256
    s_cbranch_scc1 EXIT
    s_load_dwordx16 s[8:23], s[0:1], 0
    s_load_dwordx8 s[24:31], s[0:1], 64
    s_load_dwordx2 s[32:33], s[0:1], 96
    v_lshrrev_b32 v1, 6, v0
    s_getreg_b32 s{sXCC}, hwreg(HW_REG_XCC_ID, 0, 4)
    v_readfirstlane_b32 s{sW}, v1
    s_waitcnt lgkmcnt(0)
    """)
    set_srd(a, SRD_WS, S_WS, WS_END)
    if os.environ.get("FAKEX"):
        a(f"""s_mul_hi_u32 s48, s2, {(1 << 32) // 11 + 1}
        s_mul_i32 s48, s48, 11
        s_sub_u32 s{sXCC}, s2, s48""")
    a(f"""s_sub_u32 s48, s{sXCC}, 5
    s_cmp_ge_u32 s48, 3
    s_cbranch_scc1 NOWARM
    s_bfe_u32 s49, s2, 0x50003
    s_mul_i32 s49, s49, 3
    s_add_u32 s48, s48, s49
    s_lshl_b32 s48, s48, 15
    v_lshlrev_b32 v8, 7, v0
    v_add_u32 v8, s48, v8
    v_add_u32 v9, {3 * MB}, v8""")
    n = 0
    for ptr, size in ((S_WK, 4*MB), (S_WV, 4*MB), (S_BX, 2*MB), (S_WQ, 4*MB), (S_WO, 4*MB), (S_AX, 2*MB), (S_WR, 2048*257*2), (S_WI, 2048*257*2)):
        set_srd(a, SRD_T, ptr, size)
        for v in ((8, 9) if size > 3 * MB else (8,)):
            a(f"buffer_load_dword v{20 + n}, v{v}, s[{SRD_T}:{SRD_T+3}], 0 offen"); n += 1
    a.label("NOWARM")
    a(f"""
    v_mov_b32 v2, 163836
    s_cmp_lg_u32 s{sW}, 0
    s_cbranch_scc1 ROLE_WAIT
    s_mov_b64 exec, 1
    v_mov_b32 v3, 1
    s_min_u32 s48, s{sXCC}, 8
    s_lshl_b32 s49, s48, 2
    s_add_u32 s49, s49, {D_TICK - 4}
    s_cmp_eq_u32 s48, 0
    s_cselect_b32 s49, 0, s49
    v_mov_b32 v4, s49
    global_atomic_add v6, v4, v3, s[{S_DBG}:{S_DBG+1}] sc0
    s_lshl_b32 s{sROLE}, s48, 5
    s_waitcnt vmcnt(0)
    v_readfirstlane_b32 s49, v6
    s_add_u32 s{sROLE}, s{sROLE}, s49
    s_cmp_lt_u32 s49, 32
    s_cselect_b32 s49, s48, 8
    s_cmp_lt_u32 s49, 8
    s_cbranch_scc1 ROLE_SET
    v_mov_b32 v4, {D_OVF}
    global_atomic_add v6, v4, v3, s[{S_DBG}:{S_DBG+1}] sc0
    s_waitcnt vmcnt(0)
    v_readfirstlane_b32 s50, v6
    s_mov_b64 exec, -1
    """)
    all_arrived(a, "ROLE_ALL", 4, 6, 51, 52, "ROLE_NONE")
    a("s_mov_b32 s53, 0")
    a.label("ROLE_SCAN")
    a(f"""v_readlane_b32 s48, v6, s53
    s_min_u32 s48, s48, 32
    s_sub_u32 s49, 32, s48
    s_lshl_b32 s{sROLE}, s53, 5
    s_add_u32 s{sROLE}, s{sROLE}, s48
    s_add_u32 s{sROLE}, s{sROLE}, s50
    s_cmp_lt_u32 s50, s49
    s_cbranch_scc1 ROLE_SET
    s_sub_u32 s50, s50, s49
    s_add_u32 s53, s53, 1
    s_cmp_lt_u32 s53, 8
    s_cbranch_scc1 ROLE_SCAN
    """)
    a.label("ROLE_NONE")
    a(f"s_mov_b32 s{sROLE}, 256")
    a.label("ROLE_SET")
    a(f"""
    v_mov_b32 v3, s{sROLE}
    ds_write_b32 v2, v3
    s_waitcnt lgkmcnt(0)
    s_mov_b64 exec, -1
    """)
    a.label("ROLE_WAIT")
    a(f"""
    s_waitcnt vmcnt(0)
    s_barrier
    ds_read_b32 v3, v2
    s_waitcnt lgkmcnt(0)
    v_readfirstlane_b32 s{sROLE}, v3
    s_barrier
    """)

def build(prof=False, roles=("chain",)):
    a = Asm()
    RT["on"] = bool(prof)
    if prof: a("s_memrealtime s[4:5]")
    prologue(a)
    if prof:
        a(f"""v_mov_b32 v10, s4
        s_lshl_b32 s2, s{sROLE}, 6
        s_add_u32 s2, s2, {WS_PROF + 640*KB}
        v_mov_b32 v11, 0
        buffer_store_dword v10, v11, {W}, s2 offen""")
        if os.environ.get("RTDBG"):
            a(f"""s_cmp_lg_u32 s{sROLE}, 0
            s_cbranch_scc1 RTD0
            v_and_b32 v10, 0xffffff, v10
            global_store_dword v11, v10, s[{S_DBG}:{S_DBG+1}]""")
            a.label("RTD0")
        rt(a, 1)
    a(f"""s_cmp_ge_u32 s{sROLE}, 160
    s_cbranch_scc1 REST
    s_cmp_ge_u32 s{sROLE}, 32
    s_cbranch_scc1 QA
    s_mov_b32 s{sH}, s{sROLE}
    """)
    chain_role(a, prof)
    qa.qa_role(a)
    a.label("REST")
    a(f"""s_cmp_ge_u32 s{sROLE}, 224
    s_cbranch_scc1 INIT""")
    pa.pa_role(a, 160)
    op.op_role(a, 160)
    init_role(a)
    a.label("EXIT")
    a("s_endpgm")
    body = render(fix_hazards(a.lines, verbose=True))
    hdr = open("concat_heads__spectral_gfnet__memory_aug_recurrent_mem_tr__prompt.s.ref").read().split("\n")
    head = [l for l in hdr if l.startswith(";") and "@launch" not in l][:15]
    txt = "\n".join(head) + "\n; @launch grid=(256,1,1) block=(256,1,1) lds=163840\n"
    txt += f""".amdgcn_target "amdgcn-amd-amdhsa--gfx950"
.text
.globl {KNAME}
.p2align 8
.type {KNAME},@function
{KNAME}:
""" + body + f""".section .rodata,"a"
.p2align 6
.amdhsa_kernel {KNAME}
  .amdhsa_next_free_vgpr 512
  .amdhsa_next_free_sgpr 102
  .amdhsa_accum_offset 256
  .amdhsa_group_segment_fixed_size 0
  .amdhsa_kernarg_size 104
  .amdhsa_user_sgpr_count 2
  .amdhsa_user_sgpr_kernarg_segment_ptr 1
  .amdhsa_system_sgpr_workgroup_id_x 1
.end_amdhsa_kernel
"""
    return txt

if __name__ == "__main__":
    out = sys.argv[1]
    prof = True if "prof" in sys.argv[2:] else ("rt" if "rt" in sys.argv[2:] else False)
    open(out, "w").write(build(prof=prof))
```

```python
from asmlib import *
from layout import *
import os

S_AX, S_WR, S_WI, S_BX, S_MEM0, S_WQ, S_WK, S_WV, S_WO, S_SEG, S_OUT, S_DBG, S_WS = 8,10,12,14,16,18,20,22,24,26,28,30,32
SRD_WS = 36
SRD_T  = 40
sW, sROLE, sXCC = 44, 45, 46
sLKX = 47
sC2, sONE2 = 48, 50
sH, sS, sT0, sT1, sT2, sCNT, sINB_R, sINB_R2, sKXO, sFREE0, sMR, sKX, sVX, sKM, sTAG, sPOM, sPROF, sPF = range(52, 70)
sXM = 90
sINW = 98
sMODE = 35
sHM = 100
sPV = 12
sHW, sHR, sFM, sRDY = 4, 5, 6, 7
sKVA = 0
sKV = 8

SPIN_MAX = 1 << 16
CFG = {k: int(os.environ.get(k.upper(), v)) for k, v in dict(d1=296, d2=0, adv=1, advp=1, dep=3, gap=64, pub=1, pad=256, bar=15, w1=4, join=8, dr=192, pace=12, pk=5, pa=11, pb=10, ga=40, g3=48, light=0, only=6, at=-1, e1=0, e2=0, e3=1, e4=1, hm=0, pg=4, pq=40, pd=6, hr=8, hb=4, p0=40, np=0, ps=32, pf=4, ds=0, g2=48, re=2, fast=1, gate=1).items()}
INB_STRIDE = 8192 + CFG["pad"]

L_WL = 0
L_MB = 131072
L_OX = L_MB
L_KXB = L_MB + 8192
L_X = L_KXB + 16384
XP = 1088
L_SEL = L_X + 4 * XP
L_JUNK = L_SEL + 1024

vLB, vG, vWL1, vG2, vXW, vXR, vOW, vIDX, vPS, vMS, vHR, vT = range(12)
PM = 12
aQK, aV, X, VX, MA, RING = 16, 32, 40, 56, 64, 96

KORD = (2, 4, 6, 3, 5, 7)
QKSEQ = [(m, T, kk) for kk in range(2) for (m, T) in ((0, 0), (1, 0), (0, 1), (1, 1), (2, 0), (2, 1))] + \
        [(m, T, kk) for kk in KORD for (m, T) in ((0, 0), (1, 0), (0, 1))] + [(1, 1, kk) for kk in KORD]
VSEQ = [(2, T, kk) for kk in range(2, 8) for T in range(2)]
OSEQ = [(3, p, 0) for p in range(4)] + [(3, p, kk) for p in range(4) for kk in range(1, 4)]
RB0 = 24
RBS = (12, 12, 13, 14, 18, 18, 19, 19)
def wfrag_map():
    m = {}
    for i in range(4):
        m[QKSEQ[i]] = ("lds", i, i)
        m[QKSEQ[RB0 + i]] = ("lds", 4 + i, i)
        m[VSEQ[2 + i]] = ("lds", 8 + i, i)
        m[OSEQ[12 + i]] = ("lds", 12 + i, i)
    nxt = 128
    for k in QKSEQ + VSEQ + OSEQ:
        if k not in m:
            m[k] = ("reg", nxt); nxt += 8
    assert nxt == 512
    return m
WF = wfrag_map()
def wop(key):
    e = WF[key]
    return wr(e[1], 8) if e[0] == "reg" else vr(RING + 8 * e[2], 8)

class LdsQ:
    def __init__(self, a): self.a = a; self.n = 0
    def op(self, text):
        self.a(text); self.n += 1; return self.n
    def wait(self, tok):
        k = self.n - tok
        self.a(f"s_waitcnt lgkmcnt({min(k, 15)})")

def ring_load(rnd):
    L = []
    for slot in range(4):
        f = 4 * rnd + slot
        base, off = (vG, f * 8192) if f < 8 else (vWL1, (f - 8) * 8192)
        for hh in range(2):
            L.append(f"ds_read_b128 {vr(RING + 8*slot + 4*hh, 4)}, v{base} offset:{off + 1024*hh}")
    return L

def set_srd(a, srd, sptr, nbytes):
    a(f"""s_mov_b32 s{srd}, s{sptr}
    s_mov_b32 s{srd+1}, s{sptr+1}
    s_mov_b32 s{srd+2}, {nbytes}
    s_mov_b32 s{srd+3}, 0x20000""")

W = f"s[{SRD_WS}:{SRD_WS+3}]"

RT = {"on": False}
def rt(a, k, vt=126):
    if not RT["on"]: return
    lab = a.uid("RT")
    if os.environ.get("RTDBG"):
        MAP = {(0,1):5, (0,2):6, (0,4):7, (0,7):8, (32,4):9, (32,7):10, (160,2):11, (160,3):12, (160,4):13, (160,5):14, (160,7):15}
        a(f"s_cmp_lg_u32 s{sW}, 0\ns_cbranch_scc1 {lab}\ns_mov_b32 s3, 0")
        for (r, kk), wd in MAP.items():
            if kk == k: a(f"s_cmp_eq_u32 s{sROLE}, {r}\ns_cselect_b32 s3, {4*wd}, s3")
        a(f"""s_cmp_eq_u32 s3, 0
        s_cbranch_scc1 {lab}
        v_mov_b32 v{vt+1}, s3
        s_memrealtime s[2:3]
        s_waitcnt lgkmcnt(0)
        s_and_b32 s2, s2, 0xffffff
        v_mov_b32 v{vt}, s2
        global_store_dword v{vt+1}, v{vt}, s[{S_DBG}:{S_DBG+1}]
        s_waitcnt vmcnt(0)""")
        a.label(lab)
        return
    a(f"""s_cmp_lg_u32 s{sW}, 0
    s_cbranch_scc1 {lab}
    s_memrealtime s[2:3]
    s_waitcnt lgkmcnt(0)
    v_mov_b32 v{vt}, s2
    s_lshl_b32 s2, s{sROLE}, 6
    s_add_u32 s2, s2, {WS_PROF + 640*KB + 4*k}
    v_mov_b32 v{vt+1}, 0
    buffer_store_dword v{vt}, v{vt+1}, {W}, s2 offen
    s_waitcnt vmcnt(0)""")
    a.label(lab)

def delay(a, cyc):
    n = cyc // 4
    while n > 0:
        k = min(n, 16); a(f"s_nop {k-1}"); n -= k

def all_arrived(a, name, va, vd, sC, sT, fail, early=None):
    a(f"""v_mbcnt_lo_u32_b32 v{va}, -1, 0
    v_and_b32 v{va}, 15, v{va}
    v_lshlrev_b32 v{va}, 2, v{va}
    v_add_u32 v{va}, {D_TICK - 4}, v{va}
    v_writelane_b32 v{va}, 0, 0
    s_mov_b32 s{sC}, 0""")
    a.label(name)
    a(f"""global_load_dword v{vd}, v{va}, s[{S_DBG}:{S_DBG+1}] sc1
    s_add_u32 s{sC}, s{sC}, 1
    s_cmp_gt_u32 s{sC}, {SPIN_MAX}
    s_cbranch_scc1 {fail}
    s_waitcnt vmcnt(0)
    v_readlane_b32 s{sT}, v{vd}, 0""")
    if early: a(f"s_cmp_ge_u32 s{sT}, 32\ns_cbranch_scc1 {early}")
    for i in range(1, 9): a(f"v_readlane_b32 vcc_lo, v{vd}, {i}\ns_add_u32 s{sT}, s{sT}, vcc_lo")
    a(f"""s_cmp_lt_u32 s{sT}, 256
    s_cbranch_scc1 {name}""")

def init_role(a):
    a.label("INIT")
    a(f"""s_cmp_ge_u32 s{sROLE}, 256
    s_cbranch_scc1 EXIT
    s_sub_u32 s48, s{sROLE}, 224
    v_lshlrev_b32 v1, 4, v0
    v_mov_b64 v[4:5], -1
    v_mov_b64 v[6:7], -1
    s_mul_i32 s49, s48, {INB_STRIDE}
    s_add_u32 s49, s49, {WS_INBOX}
    buffer_store_dwordx4 v[4:7], v1, {W}, s49 offen sc1
    s_add_u32 s49, s49, 4096
    buffer_store_dwordx4 v[4:7], v1, {W}, s49 offen sc1
    v_lshlrev_b32 v2, 2, v0
    s_lshl_b32 s49, s48, 10
    s_add_u32 s50, s49, {WS_MBUF}
    buffer_store_dword v4, v2, {W}, s50 offen sc1
    s_add_u32 s50, s49, {WS_HINT}
    buffer_store_dword v4, v2, {W}, s50 offen sc1
    v_mov_b32 v3, 0
    s_add_u32 s50, s49, {WS_FLAGS}
    buffer_store_dword v3, v2, {W}, s50 offen sc1
    s_waitcnt vmcnt(0)
    v_mov_b32 v4, 1
    v_mov_b32 v5, {D_INIT}
    s_mov_b64 exec, 1
    global_atomic_add v5, v4, s[{S_DBG}:{S_DBG+1}]
    s_mov_b64 exec, -1
    s_lshl_b32 s49, s48, 15
    v_lshlrev_b32 v1, 7, v0""")
    set_srd(a, SRD_T, S_BX, 512 * KB)
    a(f"buffer_load_dword v8, v1, s[{SRD_T}:{SRD_T+3}], s49 offen")
    set_srd(a, SRD_T, S_WO, 4 * MB)
    for i in range(4):
        a(f"""buffer_load_dword v{9 + i}, v1, s[{SRD_T}:{SRD_T+3}], s49 offen
        s_add_u32 s49, s49, {MB}""")
    a(f"""s_waitcnt vmcnt(0)
    s_cmp_eq_u32 s{sROLE}, 224
    s_cbranch_scc1 PA""")

def chain_startup(a):
    t0, t1, t2, t3, t4, t5, t6, t7 = 16, 17, 18, 19, 20, 21, 22, 23
    vLane, vDQ, vDO, vTR, vTA, vM0, vTO = 24, 25, 26, 27, 28, 30, 31
    a(f"""
    v_and_b32 v{vLane}, 63, v0
    v_lshlrev_b32 v{vLB}, 4, v{vLane}
    s_lshl_b32 s{sT0}, s{sW}, 11
    v_add_u32 v{vG}, s{sT0}, v{vLB}
    v_add_u32 v{vLB}, {L_MB}, v{vLB}
    v_add_u32 v{vWL1}, 0x10000, v{vG}
    v_add_u32 v{vG2}, {L_MB}, v{vG}
    """)
    a(f"""
    s_mul_i32 s{sINB_R}, s{sH}, {INB_STRIDE}
    s_add_u32 s{sINB_R}, s{sINB_R}, {WS_INBOX}
    s_lshl_b32 s{sT0}, s{sW}, 11
    s_sub_u32 s{sINB_R}, s{sINB_R}, s{sT0}
    s_add_u32 s{sINB_R2}, s{sINB_R}, 4096
    s_lshl_b32 s{sHW}, s{sH}, 2
    s_add_u32 s{sHW}, s{sHW}, {WS_HINT}
    s_and_b32 s{sHR}, s{sH}, 7
    s_lshl_b32 s{sHR}, s{sHR}, 7
    s_add_u32 s{sHR}, s{sHR}, {WS_HINT}
    s_lshl_b32 s{sFM}, s{sH}, 7
    s_add_u32 s{sKVA}, s{S_WS}, s{sFM}
    s_addc_u32 s{sKVA+1}, s{S_WS+1}, 0
    s_add_u32 s{sFM}, s{sFM}, {WS_FLAGS + F_M}
    s_mov_b32 s{sRDY}, 0""")
    a(f"""
    v_lshrrev_b32 v{t0}, 4, v{vLane}
    s_and_b32 s{sT0}, s{sW}, 1
    s_lshl_b32 s{sT1}, s{sT0}, 2
    v_add_u32 v{t1}, s{sT1}, v{t0}
    v_lshlrev_b32 v{t1}, 1, v{t1}
    v_and_b32 v{t2}, 15, v{vLane}
    v_xor_b32 v{t1}, v{t1}, v{t2}
    v_lshlrev_b32 v{t1}, 4, v{t1}
    v_lshrrev_b32 v{t2}, 1, v{t0}
    v_and_b32 v{t3}, 1, v{t0}
    v_lshl_add_u32 v{vDQ}, v{t2}, 4, v{t3}
    s_lshl_b32 s{sT1}, s{sW}, 2
    v_add_u32 v{vDQ}, s{sT1}, v{vDQ}
    v_lshl_add_u32 v{vDQ}, v{vDQ}, 13, v{t1}
    s_lshl_b32 s{sT1}, s{sH}, 8
    v_add_u32 v{vDQ}, s{sT1}, v{vDQ}
    v_lshl_add_u32 v{t2}, v{t2}, 5, v{t3}
    s_lshl_b32 s{sT0}, s{sT0}, 4
    s_lshr_b32 s{sT1}, s{sW}, 1
    s_lshl_b32 s{sT1}, s{sT1}, 2
    s_add_u32 s{sT0}, s{sT0}, s{sT1}
    v_add_u32 v{t2}, s{sT0}, v{t2}
    v_and_b32 v{t3}, 128, v{t1}
    v_add_u32 v{t1}, v{t1}, v{t3}
    v_lshl_add_u32 v{vDO}, v{t2}, 10, v{t1}
    s_lshl_b32 s{sT1}, s{sH}, 17
    v_add_u32 v{vDO}, s{sT1}, v{vDO}
    """)
    a(f"""
    v_lshrrev_b32 v{t0}, 4, v{vLane}
    v_bfe_u32 v{t1}, v{vLane}, 2, 2
    v_and_b32 v{t2}, 3, v{vLane}
    v_and_b32 v{t3}, 1, v{t0}
    v_lshl_add_u32 v{t3}, v{t3}, 2, v{t1}
    v_lshlrev_b32 v{t3}, 5, v{t3}
    v_lshl_add_u32 v{t3}, v{t2}, 3, v{t3}
    v_lshl_add_u32 v{t3}, v{t1}, 8, v{t3}
    v_lshl_add_u32 v{vTR}, v{t0}, 10, v{t3}
    v_and_b32 v{t4}, 1, v{t1}
    v_lshrrev_b32 v{t5}, 1, v{t1}
    v_xor_b32 v{t5}, v{t5}, v{t4}
    v_and_b32 v{t3}, 1, v{t0}
    v_lshl_add_u32 v{t5}, v{t3}, 2, v{t5}
    v_lshlrev_b32 v{t5}, 5, v{t5}
    v_lshl_add_u32 v{t5}, v{t2}, 3, v{t5}
    v_lshl_add_u32 v{t5}, v{t4}, 8, v{t5}
    v_lshl_add_u32 v{vTO}, v{t0}, 10, v{t5}
    s_lshl_b32 s{sT2}, s{sW}, 10
    """)
    ptrs = [S_WQ, S_WK, S_WV, S_WO]
    MORD = (1, 2, 0, 3)
    def issue(u):
        c, mh = u >> 1, u & 1
        mat, half = MORD[c >> 1], c & 1
        if u & 3 == 0: set_srd(a, SRD_T, ptrs[mat], 4 * MB)
        for tl in range(4):
            for m in (2 * mh, 2 * mh + 1):
                if mat < 3:
                    so = (64 * (2 * tl + half) + 32 * (m >> 1) + 2 * (m & 1)) * 8192
                    v = vDQ
                else:
                    so = (64 * (tl & 1) + 8 * (m >> 1) + 2 * (m & 1)) * 1024 + (tl >> 1) * 512 + half * 128
                    v = vDO
                a(f"""s_add_u32 m0, s{sT2}, {half * 65536 + (tl * 4 + m) * 4096}
                s_mov_b32 s{sT0}, {so}
                buffer_load_dwordx4 v{v}, s[{SRD_T}:{SRD_T+3}], s{sT0} offen lds""")
    def hold(f): return 32 + 8 * (f if f < 12 else f - 12)
    def dest(key):
        e = WF[key]
        return e[1] if e[0] == "reg" else hold(e[1])
    def addrs(omat):
        for n in range(8):
            va = 16 + n
            if not omat:
                T, lo = n >> 2, n & 3
                a(f"""s_lshl_b32 s{sT0}, s{sW}, 6
                s_add_u32 s{sT0}, s{sT0}, {32 * T}
                s_xor_b32 s{sT1}, s{sW}, {lo}
                s_lshl_b32 s{sT1}, s{sT1}, 14
                v_xor_b32 v{va}, s{sT0}, v{vTR}
                v_add_u32 v{va}, s{sT1}, v{va}""")
            else:
                pl, kk = n >> 2, n & 3
                a(f"""s_xor_b32 s{sT1}, s{sW}, {kk}
                s_and_b32 s{sT0}, s{sT1}, 1
                s_lshl_b32 s{sCNT}, s{sT0}, 9
                s_lshl_b32 s{sT0}, s{sT0}, 6
                s_xor_b32 s{sT0}, s{sT0}, {64 * pl}
                s_and_b32 s{sTAG}, s{sW}, 1
                s_lshl_b32 s{sTAG}, s{sTAG}, 7
                s_add_u32 s{sT0}, s{sT0}, s{sTAG}
                s_lshr_b32 s{sT1}, s{sT1}, 1
                s_and_b32 s{sTAG}, s{sW}, 2
                s_add_u32 s{sT1}, s{sT1}, s{sTAG}
                s_lshl_b32 s{sT1}, s{sT1}, 14
                s_add_u32 s{sT1}, s{sT1}, s{sCNT}
                v_xor_b32 v{va}, s{sT0}, v{vTO}
                v_add_u32 v{va}, s{sT1}, v{va}""")
    def consume(u):
        c, mh = u >> 1, u & 1
        mat, half = MORD[c >> 1], c & 1
        for n in range(8):
            d = dest((mat, n >> 2, 2 * (n & 3) + half)) if mat < 3 else dest((3, 2 * half + (n >> 2), n & 3))
            for m in (2 * mh, 2 * mh + 1):
                a(f"ds_read_b64_tr_b16 {wr(d + 2*m, 2)}, v{16+n} offset:{m*4096}")
        a("s_waitcnt lgkmcnt(0)")
    def spill(fs):
        for f in fs:
            base, off = (vG, f * 8192) if f < 8 else (vWL1, (f - 8) * 8192)
            for hh in range(2):
                a(f"ds_write_b128 v{base}, {vr(hold(f) + 4*hh, 4)} offset:{off + 1024*hh}")
        a("s_waitcnt lgkmcnt(0)")
    for u in range(4): issue(u)
    a(f"""
    v_and_b32 v{t0}, 15, v{vLane}
    v_lshrrev_b32 v{t1}, 4, v{vLane}
    v_and_b32 v{t2}, 3, v{vLane}
    v_bfe_u32 v{t3}, v{vLane}, 2, 2
    """)
    a(f"""
    s_lshl_b32 s{sT0}, s{sW}, 8
    s_add_u32 s{sT1}, s{sT0}, {L_X}
    v_mul_u32_u24 v{t5}, {XP}, v{t1}
    v_lshl_add_u32 v{t5}, v{t0}, 3, v{t5}
    v_add_u32 v{vXW}, s{sT1}, v{t5}
    """)
    a(f"""
    v_and_b32 v{t4}, 1, v{t1}
    v_lshl_add_u32 v{t4}, v{t4}, 2, v{t3}
    v_lshrrev_b32 v{t5}, 1, v{t1}
    v_lshl_add_u32 v{t4}, v{t5}, 4, v{t4}
    v_mul_u32_u24 v{t5}, {XP}, v{t2}
    v_lshl_add_u32 v{t4}, v{t4}, 3, v{t5}
    v_add_u32 v{vXR}, {L_X}, v{t4}
    v_and_b32 v{vHR}, 31, v{vLane}
    v_lshlrev_b32 v{vHR}, 2, v{vHR}
    v_cmp_lt_u32 vcc, 1, v{t2}
    v_mov_b32 v{t5}, 0x4444
    v_mov_b32 v{t6}, 0xeeee
    v_cndmask_b32 v{vIDX}, v{t5}, v{t6}, vcc
    """)
    a(f"""
    v_and_b32 v{t4}, 1, v{vLane}
    v_lshl_add_u32 v{t7}, v{t3}, 1, v{t4}
    v_lshlrev_b32 v{t4}, 4, v{t7}
    v_lshl_add_u32 v{t4}, v{t1}, 7, v{t4}
    s_lshl_b32 s{sT0}, s{sW}, 9
    s_add_u32 s{sT0}, s{sT0}, {L_OX}
    v_add_u32 v{vOW}, s{sT0}, v{t4}
    v_mov_b32 v{t6}, 0x80000000
    """)
    a(f"""
    v_lshl_add_u32 v{t4}, v{t1}, 2, v{t2}
    v_lshlrev_b32 v{t4}, 4, v{t4}
    v_bfe_u32 v{t5}, v{vLane}, 2, 1
    v_lshl_add_u32 v{t4}, v{t5}, 3, v{t4}
    s_lshl_b32 s{sT0}, s{sH}, 8
    v_add_u32 v{t4}, s{sT0}, v{t4}
    v_cmp_lt_u32 vcc, 7, v{t0}
    v_cndmask_b32 v{vMS}, v{t4}, v{t6}, vcc
    s_lshl_b32 s{sT1}, s{sW}, 3
    v_bfe_u32 v{t5}, v{vLane}, 3, 1
    v_add_u32 v{t5}, s{sT1}, v{t5}
    v_mul_u32_u24 v{t5}, {INB_STRIDE}, v{t5}
    v_add_u32 v{vPS}, v{t5}, v{t4}
    """)
    a(f"""
    v_lshlrev_b32 v{t4}, 10, v{t7}
    v_bfe_u32 v{t5}, v{vLane}, 1, 1
    v_lshl_add_u32 v{t4}, v{t5}, 5, v{t4}
    v_lshrrev_b32 v{t5}, 1, v{t1}
    v_lshl_add_u32 v{t4}, v{t5}, 6, v{t4}
    v_and_b32 v{t5}, 1, v{t1}
    v_lshl_add_u32 v{vM0}, v{t5}, 4, v{t4}
    """)
    a(f"""
    v_and_b32 v{t5}, 1, v{vLane}
    v_lshlrev_b32 v{t5}, 4, v{t5}
    v_mov_b32 v{t6}, 0x3f80
    v_lshlrev_b32 v{t5}, v{t5}, v{t6}
    v_bfe_u32 v{t6}, v{vLane}, 1, 2
    """)
    for d in range(4):
        a(f"""v_cmp_eq_u32 vcc, {d}, v{t6}
        v_cndmask_b32 v{PM+d}, 0, v{t5}, vcc""")
    a(f"""ds_write_b128 v{vLB}, v[{PM}:{PM+3}] offset:{L_SEL-L_MB}
    s_waitcnt lgkmcnt(0)
    v_mov_b64 v[{PM}:{PM+1}], 0
    v_mov_b64 v[{PM+2}:{PM+3}], 0
    """)
    a(f"""
    s_mov_b32 s{sS}, -1
    s_lshl_b32 s{sT0}, s{sH}, 13
    s_add_u32 s{sKX}, s{sT0}, {WS_KX}
    s_add_u32 s{sVX}, s{sT0}, {WS_VX - 256*KB}
    s_lshl_b32 s{sT0}, s{sH}, 12
    s_add_u32 s{sKM}, s{sT0}, {WS_KM - 128*KB}
    s_lshl_b32 s{sT0}, s{sW}, 10
    s_sub_u32 s{sKM}, s{sKM}, s{sT0}
    s_mov_b32 s{sXM}, 0x33333333
    s_mov_b32 s{sXM+1}, 0x33333333
    s_mov_b32 s{sC2}, 0x3e0293ee
    s_mov_b32 s{sC2+1}, 0x3e0293ee
    s_mov_b32 s{sONE2}, 0x3f803f80
    s_mov_b32 s{sONE2+1}, 0x3f803f80
    s_lshl_b32 s{sT0}, s{sW}, 11
    s_add_u32 s{sLKX}, s{sT0}, {L_MB}
    s_mov_b32 s{sKXO}, 16384
    s_add_u32 s{sPF}, s{sVX}, s{sT0}
    s_add_u32 s{sPF}, s{sPF}, {256*KB - 2*L_MB}
    s_lshl_b32 s{sFREE0}, s{sH}, 8
    s_add_u32 s{sFREE0}, s{sFREE0}, {WS_MBUF - (L_MB >> 2)}
    s_mov_b32 s{sMR}, {WS_MBUF}
    s_mov_b32 s{sPOM}, 0
    """)
    for p in range(4): a(f"s_mov_b32 s{sINW+p}, {WS_INBOX + 2 * p * INB_STRIDE}")
    addrs(False)
    for u in range(16):
        if u == 12: addrs(True)
        elif u and u & 1 == 0:
            for n in range(8): a(f"v_xor_b32 v{16+n}, 0x10000, v{16+n}")
        if u == 13: start_gates(a)
        if u == 13: first_kv(a, "A", vTA, blocking=False)
        a(f"s_waitcnt vmcnt({8 * min(3, 15 - u)})")
        a("s_barrier")
        consume(u)
        a("s_barrier")
        if u == 8:
            a(f"""v_mov_b32 v{PM}, 0
            global_load_dwordx2 v[28:29], v{PM}, s[{S_DBG}:{S_DBG+1}] sc1""")
        if u + 4 < 16: issue(u + 4)
        if u == 13:
            spill(range(0, 8))
            set_srd(a, SRD_T, S_MEM0, 8192)
            a(f"""s_lshl_b32 s{sT0}, s{sW}, 8
            buffer_load_dwordx4 {vr(MA,4)}, v{vM0}, s[{SRD_T}:{SRD_T+3}], s{sT0} offen
            buffer_load_dwordx4 {vr(MA+4,4)}, v{vM0}, s[{SRD_T}:{SRD_T+3}], s{sT0} offen offset:128""")
    a(f"""ds_write_b128 v{vG2}, {vr(MA,4)}
    ds_write_b128 v{vG2}, {vr(MA+4,4)} offset:1024""")
    spill(range(8, 16))
    first_kv(a, "B", vTA, blocking=True)

def start_gates(a):
    a(f"""v_readfirstlane_b32 s{sT0}, v28
    v_readfirstlane_b32 s{sT1}, v29
    s_mov_b32 s{sMODE}, 1
    s_cmp_ge_u32 s{sT0}, 32
    s_cbranch_scc1 CH_MODE""")
    all_arrived(a, "CH_ROSTER", 28, 29, sCNT, sT0, "CH_DONE", early="CH_MODE")
    a(f"s_mov_b32 s{sMODE}, 0")
    a.label("CH_MODE")
    a(f"s_mov_b32 s{sCNT}, 0")
    a.label("CH_INIT")
    a(f"""s_cmp_ge_u32 s{sT1}, 128
    s_cbranch_scc1 CH_G2
    global_load_dword v29, v{PM}, s[{S_DBG}:{S_DBG+1}] offset:{D_INIT} sc1
    s_add_u32 s{sCNT}, s{sCNT}, 1
    s_cmp_gt_u32 s{sCNT}, {SPIN_MAX}
    s_cbranch_scc1 CH_DONE
    s_waitcnt vmcnt(0)
    v_readfirstlane_b32 s{sT1}, v29
    s_branch CH_INIT""")
    a.label("CH_G2")

def first_kv(a, tag, vt, blocking):
    a(f"""s_cmp_lg_u32 s{sPOM}, 0
    s_cbranch_scc1 CH_FK_{tag}
    s_mov_b32 s{sCNT}, 0""")
    if CFG["gate"]:
        if blocking: kv_gate(a, "CH_KV0", f"s_mov_b32 s{sT1}, 2")
        else:
            a(f"""s_load_dwordx4 s[{sKV}:{sKV+3}], s[{sKVA}:{sKVA+1}], {WS_FLAGS + F_KV} glc
            s_waitcnt lgkmcnt(0)""")
            kv_min(a)
            a(f"""s_mov_b32 s{sRDY}, s{sKV}
            s_cmp_lt_u32 s{sRDY}, 2
            s_cbranch_scc1 CH_FK_{tag}""")
    a(f"""s_add_u32 m0, s{sLKX}, 8192
    s_mov_b32 s{sPOM}, 1
    buffer_load_dwordx4 v{vG}, {W}, s{sKX} offen sc1 lds
    buffer_load_dwordx4 v{vG}, {W}, s{sKX} offen offset:1024 sc1 lds
    v_lshlrev_b32 v{vt}, 1, v{vLB}
    s_mov_b32 m0, {L_JUNK}
    buffer_load_dword v{vt}, {W}, s{sPF} offen sc1 lds""")
    a.label(f"CH_FK_{tag}")

def zlist(b, n):
    return [f"v_mov_b64 v[{b+i}:{b+i+1}], 0" for i in range(0, n, 2)]

def smf(acc, A, B):
    return f"v_smfmac_f32_16x16x64_bf16 {vr(acc,4)}, {vr(A,4)}, {B}, v{vIDX}"

NST = 10
def mark(a, prof, name):
    if (prof or MEAN) and os.environ.get("MARK") == name: a("s_memtime s[74:75]")
MEAN = bool(os.environ.get("MEAN"))
def stamp(a, prof, k):
    if MEAN and k in (6, 7):
        a(f"s_memtime s[{70+2*k}:{71+2*k}]")
        if k == 6:
            a(f"""s_waitcnt lgkmcnt(0)
            s_sub_u32 s76, s74, s84
            s_sub_u32 s77, s82, s84
            s_sub_u32 s78, s84, s79
            s_mov_b32 s79, s84
            s_cmp_ge_u32 s{sS}, 8
            s_cselect_b32 s76, s76, 0
            s_cselect_b32 s77, s77, 0
            s_cselect_b32 s78, s78, 0
            s_add_u32 s70, s70, s76
            s_add_u32 s71, s71, s77
            s_add_u32 s72, s72, s78
            s_cmp_lg_u32 s{sW}, 0""")
        return
    if prof:
        if CFG["light"] and k not in (7, 8, 9, CFG["only"]): return
        if k == 9: a(f"s_memrealtime s[{70+2*k}:{71+2*k}]")
        else: a(f"s_memtime s[{70+2*k}:{71+2*k}]")

PUB = X + 12
def pub_prepare(a, part=3):
    if part & 1:
        a(f"""s_lshl_b32 s{sT0}, s{sW}, 8
        v_add_u32 v{vT}, s{sT0}, v{vXR}
        ds_read_b64_tr_b16 {vr(PUB,2)}, v{vT}
        ds_read_b64_tr_b16 {vr(PUB+2,2)}, v{vT} offset:64""")
    if part & 2:
        a(f"""v_mov_b32_dpp v{aV+2}, v{aV} quad_perm:[2,3,2,3] row_mask:0xf bank_mask:0xf
        v_mov_b32_dpp v{aV+3}, v{aV+1} quad_perm:[2,3,2,3] row_mask:0xf bank_mask:0xf
        s_waitcnt lgkmcnt(0)
        s_mov_b64 exec, s[{sXM}:{sXM+1}]
        v_mov_b64 {vr(PUB,2)}, {vr(aV,2)}
        v_mov_b64 {vr(PUB+2,2)}, {vr(aV+2,2)}
        s_mov_b64 exec, -1""")
PUBST = f"buffer_store_dwordx4 {vr(PUB,4)}, v{vG}, {W}, s{sKM} offen sc1"
MR = X + 4
FLG = X + 10
def kv_min(a):
    for j in range(NG):
        a(f"s_lshl_b32 s{sKV+j}, s{sKV+j}, 2")
        if j: a(f"s_add_u32 s{sKV+j}, s{sKV+j}, {j}\ns_min_u32 s{sKV}, s{sKV}, s{sKV+j}")
def kv_gate(a, name, need_expr):
    a(need_expr)
    a(f"s_min_u32 s{sT1}, s{sT1}, 64")
    a.label(name)
    a(f"""s_cmp_ge_u32 s{sRDY}, s{sT1}
    s_cbranch_scc1 {name}_OK
    s_load_dwordx4 s[{sKV}:{sKV+3}], s[{sKVA}:{sKVA+1}], {WS_FLAGS + F_KV} glc
    s_add_u32 s{sCNT}, s{sCNT}, 1
    s_cmp_gt_u32 s{sCNT}, {SPIN_MAX}
    s_cbranch_scc1 CH_DONE
    s_waitcnt lgkmcnt(0)""")
    kv_min(a)
    a(f"""s_mov_b32 s{sRDY}, s{sKV}
    s_branch {name}""")
    a.label(name + "_OK")
def hop_prep(a, part=7):
    if part & 1:
        pub_prepare(a, 1)
        for l in ring_load(0): a(l)
    if part & 2:
        hop_prep2(a)
    if part & 4:
        pub_prepare(a, 2)
        for l in zlist(aQK + 4, 20): a(l)
def hop_prep2(a):
    for lo in range(1, 4): a(f"v_xor_b32 v{MR+lo}, {2048*lo}, v{vG2}")
    a(f"""s_add_u32 s{sPF}, s{sPF}, {256*KB*CFG["adv"]}
    s_sub_u32 s{sT0}, s{sFM}, {F_M - F_KV + 3}
    v_lshl_add_u32 v{MR}, v{vLB}, 1, s{sPF}
    s_mov_b64 exec, 0x8888
    v_lshrrev_b32 v{MR}, 2, v{vHR}
    v_add_u32 v{MR}, s{sT0}, v{MR}
    s_mov_b64 exec, -1
    v_mov_b32 v{FLG}, s{sS}
    v_sub_u32 v{FLG+1}, 0, v{vG}
    v_lshrrev_b32 v{FLG+1}, 1, v{FLG+1}
    s_add_u32 s{sKX}, s{sKX}, {256*KB*CFG["adv"]}
    s_add_u32 s{sVX}, s{sVX}, {256*KB*CFG["adv"]}
    s_mov_b32 m0, s{sLKX}""")

def chain_loop(a, tag, stf, prof=False):
    q = LdsQ(a)
    ck = vT
    a.label(f"CH_TOP_{tag}")
    Q0, K0, Q1, K1 = aQK, aQK + 4, aQK + 8, aQK + 12
    acc = lambda mat, T: (aQK + 8 * T + 4 * mat) if mat < 2 else aV + 4 * T
    N = len(QKSEQ)
    pre = {i: [] for i in range(N)}
    post = {i: [] for i in range(N)}
    W1 = CFG["w1"]
    JOIN, B2 = CFG["join"], CFG["bar"]
    x = lambda l: ("x", l, None)
    PB = CFG["pub"]
    post[1] = [f"v_max_u32 v{ck}, v{MA}, v{MA+2}"]
    pre[2] = [x(f"buffer_load_dwordx4 {vr(VX,4)}, v{vG}, {W}, s{sVX} offen sc1")]
    pre[W1] = [x("s_waitcnt vmcnt(3)")]
    post[W1] = [f"v_max3_u32 v{ck}, v{ck}, v{MA+4}, v{MA+6}"]
    post[W1+1] = [f"v_cmp_eq_u32 vcc, -1, v{ck}"]
    pre[6] = [x(f"buffer_load_dwordx4 {vr(VX+4,4)}, v{vG}, {W}, s{sVX} offen offset:1024 sc1")]
    pre[JOIN] += [x(f"s_cbranch_vccnz CH_RETRY_{tag}"), ("lab", f"CH_JOIN_{tag}", None)]
    if PB:
        pre[CFG["pa"]] += [x(PUBST)]
        pre[CFG["pb"]] += [x(f"buffer_store_dword v{FLG}, v{FLG+1}, {W}, s{sFM} offen sc1")]
    PB *= 2
    sc = step_scalars()
    mr = {kk: ("lds", f"ds_read_b128 {vr(MA+4*kk,4)}, v{MR+(kk>>1)} offset:{1024*(kk&1)}", f"m{kk}") for kk in range(2, 8)}
    pre[JOIN] += [x(f"s_waitcnt vmcnt(3)"), x("s_barrier"), mr[2]]
    pre[JOIN+1] += [mr[4], mr[6]]
    pre[B2] += [x(f"s_waitcnt vmcnt({2 + PB})"), x("s_barrier"), mr[3]]
    pre[B2+1] += [mr[5], mr[7]]
    if prof: pre[B2+1] += [x(f"s_mov_b64 exec, 0xffff\nbuffer_store_dword v{X+8}, v{X+9}, {W}, s34 offen\ns_mov_b64 exec, -1")]
    rB, rC = ring_load(1), ring_load(2)
    for i, sl in enumerate(RBS): pre[sl].append(("lds", rB[i], f"rB{i}"))
    for n, kk in enumerate(KORD): pre[11 + 3 * n].append(("w", f"m{kk}", None))
    for i in range(8): pre[RB0 + 1 + i].insert(0, ("lds", rC[i], f"rC{i}"))
    for i in range(4): pre[RB0 - 1 + i].append(("w", f"rB{2*i+1}", None))
    vm = [f"buffer_load_dwordx4 v{vG}, {W}, s{sKX} offen sc1 lds",
          f"buffer_load_dwordx4 v{vG}, {W}, s{sKX} offen offset:1024 sc1 lds",
          f"buffer_load_dword v{MR}, {W}, 0 offen sc1 lds"]
    for i, l in zip((17, 21, 28), vm): pre[i].insert(0 if i < 25 else 1, x(l))
    pre[13].append(x(f"s_add_u32 m0, s{sKXO}, s{sLKX}"))
    pre[22].append(x(f"s_xor_b32 s{sKXO}, s{sKXO}, {8192 ^ 16384}"))
    pre[27].append(x(f"s_mov_b32 m0, {L_JUNK}"))
    for i, l in zip((29, 30, 31, 32, 33, 33, 34, 34, 35, 35), sc): pre[i].append(x(l))
    assert len(sc) <= 10
    NY = len(vm) + PB + (1 if prof else 0)
    post[23].append(f"v_add_u32 v{vT}, s{sKXO}, v{vLB}")
    def fin2(b, dst): return [f"v_add_f32 v{b}, v{b}, v{b+2}", f"v_add_f32 v{b+1}, v{b+1}, v{b+3}", f"v_cvt_pk_bf16_f32 v{dst}, v{b}, v{b+1}"]
    f = fin2(Q0, Q0) + fin2(K0, Q0 + 1) + fin2(Q1, Q1)
    for i, l in enumerate(f[:7]): post[29 + i].append(l)
    tok = {}
    a("s_waitcnt vmcnt(3)")
    mark(a, prof, 's0')
    for i, key in enumerate(QKSEQ):
        a(smf(acc(key[0], key[1]), MA + 4 * key[2], wop(key)))
        for kind, l, name in pre[i]:
            if kind == "lds": tok[name] = q.op(l)
            elif kind == "w": q.wait(tok[l])
            elif kind == "lab": a.label(l)
            else: a(l)
        for l in post[i]: a(l)
        mark(a, prof, f"q{i}")
    vi = 0
    def vnext(n=1):
        nonlocal vi
        for _ in range(n):
            key = VSEQ[vi]; vi += 1
            a(smf(aV + 4*key[1], MA + 4*key[2], wop(key)))
    vnext()
    q.op(f"ds_write_b64 v{vXW}, {vr(Q0,2)}")
    a(f[7])
    vnext()
    q.wait(tok["rC7"])
    a(f[8])
    for l in fin2(K1, Q1 + 1): a(l)
    xw = q.op(f"ds_write_b64 v{vXW}, {vr(Q1,2)} offset:128")
    vnext(5)
    q.wait(xw)
    mark(a, prof, "xw")
    a("s_barrier")
    mark(a, prof, "b2")
    xr = []
    for k in range(8):
        xr.append(q.op(f"ds_read_b64_tr_b16 {vr(X+2*k,2)}, v{vXR} offset:{(k>>1)*256 + (k&1)*64}"))
        if k in (1, 3, 5, 7): vnext()
    kxl = [f"ds_read_b128 {vr(RING+4*i,4)}, v{vT} offset:{1024*i}" for i in range(8)]
    kx = [q.op(kxl[0]), q.op(kxl[1])]
    vnext()
    kx += [q.op(kxl[2])]
    assert vi == 12
    mark(a, prof, 's2')
    SX, SM, m_, t_ = aQK, aQK + 8, aQK + 12, aQK + 14
    OACC, OA, ONES, LA = MA, MA + 16, MA + 16, X + 4
    sfill = [f"v_mov_b64 {vr(ONES,2)}, s[{sONE2}:{sONE2+1}]", f"v_mov_b64 {vr(ONES+2,2)}, s[{sONE2}:{sONE2+1}]"] + zlist(OACC, 16)
    vfin = fin2(aV, aV) + fin2(aV + 4, aV + 1)
    def sm(acc_, A, ks):
        c = "0" if ks == 0 else vr(acc_, 4)
        a(f"v_mfma_f32_16x16x32_bf16 {vr(acc_,4)}, {vr(A,4)}, {vr(X+4*ks,4)}, {c}")
    q.wait(xr[1])
    for ks in range(4):
        sm(SM, X + 4*ks, ks)
        kx.append(q.op(kxl[3 + ks]))
        if ks == 3: kx.append(q.op(kxl[7]))
        q.wait(xr[2*ks+3] if ks < 3 else kx[0])
    fl = sfill + vfin
    for j in range(8):
        kt, ks = j >> 2, j & 3
        sm(SX + 4*kt, RING + 4*j, ks)
        if j < 7: q.wait(kx[j + 1])
        if j == 6:
            a(f"v_max3_f32 v{m_}, v{SM+2}, v{SM+3}, v{SX}")
            a(f"v_max3_f32 v{m_}, v{m_}, v{SX+1}, v{SX+2}")
        else:
            a(fl.pop(0)); a(fl.pop(0))
    rD = ring_load(3)
    for l in fl: a(l)
    a(f"v_max_f32 v{m_}, v{m_}, v{SX+3}")
    mark(a, prof, 's3')
    a(f"v_max3_f32 v{m_}, v{m_}, v{SX+4}, v{SX+5}")
    a(f"v_max3_f32 v{t_}, v{m_}, v{SX+6}, v{SX+7}")
    a(f"v_max3_f32 v{m_}, v{m_}, v{SX+6}, v{SX+7}")
    a(f"v_permlane16_swap_b32 v{m_}, v{t_}")
    a(f"v_max_f32 v{t_+1}, v{m_}, v{t_}")
    a(f"v_max_f32 v{m_}, v{m_}, v{t_}")
    a(f"v_permlane32_swap_b32 v{m_}, v{t_+1}")
    a(f"v_max_f32 v{m_}, v{m_}, v{t_+1}")
    a(f"v_mul_f32 v{m_}, s{sC2}, v{m_}")
    def pf(r): a(f"v_pk_fma_f32 {vr(r,2)}, {vr(r,2)}, s[{sC2}:{sC2+1}], {vr(m_,2)} op_sel_hi:[1,1,0] neg_lo:[0,0,1] neg_hi:[0,0,1]")
    P, OAc = X, X + 8
    mark(a, prof, "mx")
    pf(SM + 2)
    for i in range(4): pf(SX + 2*i)
    a(f"v_exp_f32 v{SM+2}, v{SM+2}")
    a(f"v_exp_f32 v{SM+3}, v{SM+3}")
    a(f"v_exp_f32 v{SX}, v{SX}")
    a(f"v_cvt_pk_bf16_f32 v{PM}, v{SM+2}, v{SM+3}")
    a(f"v_cvt_pk_bf16_f32 v{PM+3}, v{SM+2}, v{SM+3}")
    a(f"v_exp_f32 v{SX+1}, v{SX+1}")
    a(f"v_mfma_f32_16x16x16_bf16 {vr(LA,4)}, {vr(ONES,2)}, {vr(PM,2)}, 0")
    a(f"s_cmp_eq_u32 s{sS}, 63")
    a(f"v_exp_f32 v{SX+2}, v{SX+2}")
    a(f"v_mfma_f32_16x16x16_bf16 {vr(OAc,4)}, {vr(aV,2)}, {vr(PM,2)}, 0")
    a(f"s_cbranch_scc1 CH_LAST")
    a(f"v_exp_f32 v{SX+3}, v{SX+3}")
    a(f"v_mfma_f32_16x16x16_bf16 {vr(OAc+4,4)}, {vr(aV,2)}, {vr(PM+2,2)}, 0")
    for i in range(4, 8): a(f"v_exp_f32 v{SX+i}, v{SX+i}")
    for i in range(4): a(f"v_cvt_pk_bf16_f32 v{P+i}, v{SX+2*i}, v{SX+2*i+1}")
    OAD = aQK + 4
    a(f"v_mfma_f32_16x16x32_bf16 {vr(LA,4)}, {vr(ONES,4)}, {vr(P,4)}, {vr(LA,4)}")
    a(f"s_waitcnt vmcnt({NY})")
    a(f"v_xor_b32 v{OAD+1}, 512, v{vOW}")
    a(f"v_xor_b32 v{OAD+2}, 1024, v{vOW}")
    a(f"v_mfma_f32_16x16x32_bf16 {vr(OAc,4)}, {vr(VX,4)}, {vr(P,4)}, {vr(OAc,4)}")
    a(f"v_xor_b32 v{OAD+3}, 1536, v{vOW}")
    a(f"v_mfma_f32_16x16x32_bf16 {vr(OAc+4,4)}, {vr(VX+4,4)}, {vr(P,4)}, {vr(OAc+4,4)}")
    mark(a, prof, "pv")
    DP = "quad_perm:[0,1,0,1] row_mask:0xf bank_mask:0xf"
    a(f"v_rcp_f32_dpp v{t_}, v{LA} {DP}")
    for i in range(8):
        a(f"v_mul_f32_dpp v{OAc+i}, v{OAc+i}, v{t_} {DP}")
        if i == 3:
            a(f"v_cvt_pk_bf16_f32 v{OA}, v{OAc}, v{OAc+1}")
            a(f"v_cvt_pk_bf16_f32 v{OA+1}, v{OAc+2}, v{OAc+3}")
    a(f"v_cvt_pk_bf16_f32 v{OA+2}, v{OAc+4}, v{OAc+5}")
    a(f"v_cvt_pk_bf16_f32 v{OA+3}, v{OAc+6}, v{OAc+7}")
    mark(a, prof, 's4')
    if CFG["e1"]: a(f"s_mov_b64 exec, s[{sXM}:{sXM+1}]")
    ow = q.op(f"ds_write_b128 v{vOW}, {vr(OA,4)}")
    if CFG["e1"]: a(f"s_mov_b64 exec, -1")
    PK = X + 4
    SEL = aQK
    def fin(p):
        b = OACC + 4 * p
        return [f"v_cvt_pk_bf16_f32 v{PK+2*p}, v{b}, v{b+1}", f"v_cvt_pk_bf16_f32 v{PK+2*p+1}, v{b+2}, v{b+3}",
                f"v_bfi_b32 v{PK+2*p}, 1, s{sTAG}, v{PK+2*p}"]
    def pst(p): return f"buffer_store_dwordx2 {vr(PK+2*p,2)}, v{vPS}, {W}, s{sINW+p} offen {stf}"
    def osm(i): a(smf(OACC + 4*OSEQ[i][1], OA + 4*OSEQ[i][2], wop(OSEQ[i])))
    late = rD + [f"ds_read_b128 {vr(SEL,4)}, v{vLB} offset:{L_SEL-L_MB}"]
    rd = []
    for i in range(3):
        osm(i)
        if i >= 3 - CFG["re"]: rd.append(q.op(late.pop(0)))
    q.wait(ow)
    mark(a, prof, "ow")
    a("s_barrier")
    mark(a, prof, "b4")
    oa = [q.op(f"ds_read_b128 {vr(OA+4*k,4)}, v{OAD+k}") for k in range(1, 4)]
    osm(3)
    q.wait(oa[0])
    mark(a, prof, 's5')
    post = {8: fin(0)[0:2], 9: fin(0)[2:], 11: fin(1)[0:2], 12: fin(1)[2:], 14: fin(2)[0:2], 15: fin(2)[2:]}
    for i in range(4, 16):
        osm(i)
        n = 0
        while late and n < (1 if (i in post or i < 6 or i == 10) else 2):
            rd.append(q.op(late.pop(0))); n += 1
        if i < 6: q.wait(oa[i - 3])
        if i in (11, 12, 13, 14): q.wait(rd[2 * (i - 11) + 1])
        if i in (10, 13): a(pst((i - 10) // 3))
        if i == 15: a(f"s_cmp_lg_u32 s{sW}, 0")
        for l in post.get(i, []): a(l)
    assert not late
    a(pst(2))
    for l in fin(3): a(l)
    a(pst(3))
    stamp(a, prof, 6)
    a(f"s_cbranch_scc1 CH_HK_{tag}")
    HV = X + 8
    RA = X
    HV = aQK + 8
    a(f"""v_mov_b32 v{HV}, s{sS}
    v_lshlrev_b32 v{HV+1}, 5, v{vHR}
    v_mov_b32 v{HV+2}, -1""")
    hint = lambda r: f"""s_mov_b64 exec, 0xff
    buffer_store_dword v{r}, v{HV+1}, {W}, s{sHW} offen {stf}
    s_mov_b64 exec, -1"""
    delay(a, CFG["d1"])
    def sweep(base, pace=0):
        for m in range(8):
            a(f"buffer_load_dwordx4 {vr(base+4*m,4)}, v{vG}, {W}, s{sINB_R if m < 4 else sINB_R2} offen offset:{1024*(m&3)} sc1")
            if m < 7: delay(a, pace)
    def reduce_(base, younger, fail, peek=None):
        for m in range(8):
            b = base + 4 * m
            a(f"s_waitcnt vmcnt({7 - m + younger})")
            a(f"v_mfma_f32_16x16x32_bf16 {vr(RA,4)}, {vr(b,4)}, {vr(SEL,4)}, {'0' if m == 0 else vr(RA,4)}")
            if m == 0: a(f"v_xor_b32 v{ck}, s{sTAG}, v{b}")
            else: a(f"v_bitop3_b32 v{ck}, v{ck}, v{b}, s{sTAG} bitop3:0xf6")
            a(f"v_bitop3_b32 v{ck}, v{ck}, v{b+2}, s{sTAG} bitop3:0xf6")
            if peek and m == CFG["pk"]: a(f"ds_read_b32 v{X+8}, v{vLB} offset:{L_JUNK + 256 - L_MB}")
        if peek:
            a(f"""s_waitcnt lgkmcnt(0)
            v_cmp_eq_u32 vcc, s{sS}, v{X+8}
            s_cbranch_vccnz {peek}""")
        a(f"""v_and_b32 v{ck}, 1, v{ck}
        v_cmp_ne_u32 vcc, 0, v{ck}
        v_cvt_pk_bf16_f32 v{RA}, v{RA}, v{RA+1}
        v_cvt_pk_bf16_f32 v{RA+1}, v{RA+2}, v{RA+3}
        s_cbranch_vccnz {fail}
        buffer_store_dwordx2 {vr(RA,2)}, v{vMS}, {W}, s{sMR} offen {stf}""")
    DS = CFG["ds"]
    sweep(MA)
    if DS: sweep(RING)
    a(hint(HV))
    pub_prepare(a, 1)
    if not DS:
        for l in ring_load(0): a(l)
    hop_prep(a, 2)
    a(f"s_waitcnt lgkmcnt({2 if DS else 10})")
    reduce_(MA, 1, f"CH_RED2_{tag}")
    if prof and CFG["light"]: a("s_memtime s[72:73]")
    a.label(f"CH_MST_{tag}")
    hop_prep(a, 4)
    ld = f"""buffer_load_dwordx4 {vr(MA,4)}, v{vG}, {W}, s{sMR} offen sc1
    buffer_load_dwordx4 {vr(MA+4,4)}, v{vG}, {W}, s{sMR} offen offset:1024 sc1"""
    ld0, ld1 = ld.split("\n")
    assert not DS
    a.label(f"CH_POLL_{tag}")
    a("s_barrier")
    stamp(a, prof, 7)
    a(ld0); delay(a, CFG["ga"]); a(ld1)
    delay(a, CFG["g2"])
    a(f"buffer_load_dwordx4 v{vG}, {W}, s{sMR} offen sc1 lds")
    delay(a, CFG["g3"])
    a(f"buffer_load_dwordx4 v{vG}, {W}, s{sMR} offen offset:1024 sc1 lds")
    for l in zlist(aQK, 4): a(l)
    if prof:
        stamp(a, prof, 8)
        stamp(a, prof, 9)
        a(f"""s_waitcnt lgkmcnt(0)
        s_lshl_b32 s{sT0}, s{sS}, 6
        s_lshl_b32 s{sT1}, s{sW}, 12
        s_add_u32 s{sT0}, s{sT0}, s{sT1}
        v_mov_b32 v{X+8}, 0""")
        for k in range(NST):
            if not CFG["light"] or k in (1, 2, 6, 7, 8, 9): a(f"v_writelane_b32 v{X+8}, s{70+2*k}, {k}")
        a(f"v_writelane_b32 v{X+8}, s{sPROF}, {NST}")
        a(f"v_writelane_b32 v{X+8}, s{sCNT}, {NST+1}")
        a(f"""s_mov_b32 s{sPROF}, 0
        s_lshl_b32 s{sT1}, s{sH}, 14
        s_add_u32 s{sT0}, s{sT0}, s{sT1}
        s_add_u32 s34, s{sT0}, {WS_PROF - (L_MB >> 2)}
        v_lshrrev_b32 v{X+9}, 2, v{vLB}""")
    a(f"s_branch CH_TOP_{tag}")
    a.label(f"CH_RED2_{tag}")
    sweep(MA)
    a(f"""s_add_u32 s{sCNT}, s{sCNT}, 1
    s_cmp_gt_u32 s{sCNT}, {SPIN_MAX}
    s_cbranch_scc1 CH_DONE""")
    reduce_(MA, 0, f"CH_RED2_{tag}")
    if prof and CFG["light"]: a("s_memtime s[72:73]")
    delay(a, CFG["dr"])
    a(f"s_branch CH_MST_{tag}")
    a.label(f"CH_RETRY_{tag}")
    chk = f"""v_max3_u32 v{ck}, v{MA}, v{MA+2}, v{MA+4}
    v_max_u32 v{ck}, v{ck}, v{MA+6}
    v_cmp_eq_u32 vcc, -1, v{ck}"""
    a(f"""s_mov_b64 exec, vcc
    {ld}
    s_mov_b64 exec, -1""")
    if prof: a(f"s_add_u32 s{sPROF}, s{sPROF}, 1")
    a(f"""s_waitcnt vmcnt(4)
    ds_read_b128 {vr(MA+8,4)}, v{vG2}
    ds_read_b128 {vr(MA+12,4)}, v{vG2} offset:1024""")
    for l in zlist(aQK, 24): a(l)
    a(f"""s_mov_b64 exec, vcc
    s_waitcnt lgkmcnt(0)""")
    for i in range(0, 8, 2): a(f"v_mov_b64 {vr(MA+i,2)}, {vr(MA+8+i,2)}")
    a(f"""{chk}
    {ld}
    s_mov_b64 exec, -1
    s_cbranch_vccnz CH_RETRY2_{tag}""")
    a.label(f"CH_FIN_{tag}")
    a(f"""ds_write_b128 v{vG2}, {vr(MA,4)}
    ds_write_b128 v{vG2}, {vr(MA+4,4)} offset:1024""")
    for key in QKSEQ[:JOIN + 1]: a(smf(acc(key[0], key[1]), MA + 4 * key[2], wop(key)))
    a(f"""s_waitcnt vmcnt(0) lgkmcnt(0)
    s_branch CH_JOIN_{tag}""")
    a.label(f"CH_RETRY2_{tag}")
    a(f"""s_mov_b64 exec, vcc
    {ld}
    s_add_u32 s{sCNT}, s{sCNT}, 1""")
    if prof: a(f"s_add_u32 s{sPROF}, s{sPROF}, 1")
    a(f"""s_waitcnt vmcnt(4)
    {chk}
    s_cmp_gt_u32 s{sCNT}, {SPIN_MAX}
    s_cbranch_scc1 CH_DONE
    s_mov_b64 exec, -1
    s_cbranch_vccz CH_FIN_{tag}
    s_branch CH_RETRY2_{tag}""")
    a.label(f"CH_HK_{tag}")
    a(f"""s_cmp_eq_u32 s{sW}, 1
    s_cbranch_scc0 CH_HK23_{tag}""")
    NPR = CFG["pd"] + 1
    PRB = MA + 10
    hop_prep(a)
    delay(a, CFG["d1"] + CFG["p0"])
    for i in range(NPR - 1):
        a(f"buffer_load_dword v{PRB+i}, v{vHR}, {W}, s{sHR} offen sc1")
        delay(a, CFG["pg"] + CFG["pq"])
    a.label(f"CH_PROBE_{tag}")
    for i in range(NPR):
        a(f"""buffer_load_dword v{PRB+(i+NPR-1)%NPR}, v{vHR}, {W}, s{sHR} offen sc1
        s_waitcnt vmcnt({NPR-1})
        v_cmp_ne_u32 vcc, s{sS}, v{PRB+i}
        s_cbranch_vccz CH_POLL_{tag}""")
        if prof: a(f"s_add_u32 s{sPROF}, s{sPROF}, 0x100")
        delay(a, CFG["pg"] - (4 if prof else 0))
    a(f"""s_add_u32 s{sCNT}, s{sCNT}, 1
    s_cmp_gt_u32 s{sCNT}, {SPIN_MAX}
    s_cbranch_scc0 CH_PROBE_{tag}
    s_branch CH_DONE""")
    a.label(f"CH_HK23_{tag}")
    delay(a, 256)
    hop_prep(a)
    a(f"""s_waitcnt vmcnt(0)
    s_cmp_eq_u32 s{sW}, 2
    s_cbranch_scc1 CH_POLL_{tag}""")
    a(f"""v_mov_b32 v{X}, -1
    v_lshrrev_b32 v{X+1}, 2, v{vLB}
    s_waitcnt vmcnt(0)
    buffer_store_dword v{X}, v{X+1}, {W}, s{sPOM} offen {stf}""")
    if CFG["gate"]:
        a(f"""v_add_u32 v{ck}, {L_JUNK}, v{vHR}
        ds_read_b32 v{ck}, v{ck}
        s_waitcnt lgkmcnt(0)""")
        for j in range(NG): a(f"v_readlane_b32 s{sKV+j}, v{ck}, {4*j+3}")
        kv_min(a)
        a(f"s_max_u32 s{sRDY}, s{sRDY}, s{sKV}")
        kv_gate(a, f"CH_KV_{tag}", f"s_add_u32 s{sT1}, s{sS}, 3")
    a(f"s_branch CH_POLL_{tag}")

def step_scalars():
    return f"""s_add_u32 s{sS}, s{sS}, 1
    s_and_b32 s{sTAG}, s{sS}, 1
    s_mov_b32 s{sCNT}, 0
    s_add_u32 s{sT2}, s{sS}, 3
    s_and_b32 s{sT2}, s{sT2}, 3
    s_lshl_b32 s{sT0}, s{sT2}, 13
    s_add_u32 s{sPOM}, s{sT0}, s{sFREE0}
    s_xor_b32 s{sT0}, s{sT0}, 16384
    s_add_u32 s{sMR}, s{sT0}, {WS_MBUF}
    s_add_u32 s{sKM}, s{sKM}, {128*KB*CFG["advp"]}""".split("\n")

def chain_role(a, prof=False):
    a.label("CHAIN")
    if prof: a("s_memrealtime s[92:93]")
    chain_startup(a)
    rt(a, 2, X + 2)
    a(f"""s_mov_b32 s34, {WS_PROF + 600*KB}
    v_mov_b32 v{X+9}, 0
    s_mov_b32 s70, 0
    s_mov_b32 s71, 0
    s_mov_b32 s72, 0
    s_mov_b32 s{sCNT}, 0
    s_mov_b32 s{sPROF}, 0""")
    for l in ring_load(0): a(l)
    for l in zlist(aQK, 24): a(l)
    hop_prep2(a)
    rt(a, 4, X + 2)
    if prof: a("s_memrealtime s[94:95]")
    a(f"""s_waitcnt vmcnt(0) lgkmcnt(0)
    s_cmp_eq_u32 s{sMODE}, {CFG['fast']}
    s_cbranch_scc0 CH_TOP_slow""")
    chain_loop(a, "fast", "", prof is True)
    chain_loop(a, "slow", "sc1", prof is True)
    a.label("CH_LAST")
    pub_prepare(a)
    a(PUBST)
    a(f"""v_mov_b32 v{MA+4}, 64
    v_sub_u32 v{MA+5}, 0, v{vG}
    v_lshrrev_b32 v{MA+5}, 1, v{MA+5}
    s_waitcnt vmcnt(0)
    s_barrier
    buffer_store_dword v{MA+4}, v{MA+5}, {W}, s{sFM} offen sc1""")
    if prof:
        a(f"""s_memrealtime s[96:97]
        s_waitcnt lgkmcnt(0)
        v_mov_b32 v{MA}, s92
        v_mov_b32 v{MA+1}, s94
        v_mov_b32 v{MA+2}, s96
        v_mov_b32 v{MA+3}, 0
        s_lshl_b32 s{sT0}, s{sH}, 4
        s_add_u32 s{sT0}, s{sT0}, {WS_PROF + 512*KB}
        buffer_store_dwordx4 {vr(MA,4)}, v{MA+3}, {W}, s{sT0} offen""")
    if MEAN:
        a(f"""v_mov_b32 v{MA+8}, s70
        v_mov_b32 v{MA+9}, s71
        v_mov_b32 v{MA+10}, s72
        v_mov_b32 v{MA+11}, 0
        s_lshl_b32 s{sT0}, s{sH}, 2
        s_add_u32 s{sT0}, s{sT0}, s{sW}
        s_lshl_b32 s{sT0}, s{sT0}, 4
        s_add_u32 s{sT0}, s{sT0}, {WS_PROF}
        buffer_store_dwordx4 {vr(MA+8,4)}, v{MA+11}, {W}, s{sT0} offen""")
    rt(a, 7)
    a.label("CH_DONE")
    a("""s_waitcnt vmcnt(0)
    s_endpgm""")
```

```python
import sys
from asmlib import *
from layout import *
import chain
from chain import *
import qa, op, pa

KNAME = "concat_heads__spectral_gfnet__memory_aug_recurrent_mem_tr__prompt_kernel"

def prologue(a):
    a(f"""
    s_cmp_ge_u32 s2, 256
    s_cbranch_scc1 EXIT
    s_load_dwordx16 s[8:23], s[0:1], 0
    s_load_dwordx8 s[24:31], s[0:1], 64
    s_load_dwordx2 s[32:33], s[0:1], 96
    v_lshrrev_b32 v1, 6, v0
    s_getreg_b32 s{sXCC}, hwreg(HW_REG_XCC_ID, 0, 4)
    v_readfirstlane_b32 s{sW}, v1
    s_waitcnt lgkmcnt(0)
    """)
    set_srd(a, SRD_WS, S_WS, WS_END)
    if os.environ.get("FAKEX"):
        a(f"""s_mul_hi_u32 s48, s2, {(1 << 32) // 11 + 1}
        s_mul_i32 s48, s48, 11
        s_sub_u32 s{sXCC}, s2, s48""")
    a(f"""s_sub_u32 s48, s{sXCC}, 5
    s_cmp_ge_u32 s48, 2
    s_cbranch_scc1 NOWARM
    s_bfe_u32 s49, s2, 0x50003
    s_lshl_b32 s49, s49, 1
    s_add_u32 s48, s48, s49
    s_lshl_b32 s48, s48, 15
    v_lshlrev_b32 v8, 7, v0
    v_add_u32 v8, s48, v8
    v_add_u32 v9, {2 * MB}, v8""")
    n = 0
    for ptr in (S_WK, S_WV, S_WQ):
        set_srd(a, SRD_T, ptr, 4 * MB)
        for v in (8, 9):
            a(f"buffer_load_dword v{20 + n}, v{v}, s[{SRD_T}:{SRD_T+3}], 0 offen"); n += 1
    a.label("NOWARM")
    a(f"""
    v_mov_b32 v2, 163836
    s_cmp_lg_u32 s{sW}, 0
    s_cbranch_scc1 ROLE_WAIT
    s_mov_b64 exec, 1
    v_mov_b32 v3, 1
    s_min_u32 s48, s{sXCC}, 8
    s_lshl_b32 s49, s48, 2
    s_add_u32 s49, s49, {D_TICK - 4}
    s_cmp_eq_u32 s48, 0
    s_cselect_b32 s49, 0, s49
    v_mov_b32 v4, s49
    global_atomic_add v6, v4, v3, s[{S_DBG}:{S_DBG+1}] sc0
    s_lshl_b32 s{sROLE}, s48, 5
    s_waitcnt vmcnt(0)
    v_readfirstlane_b32 s49, v6
    s_add_u32 s{sROLE}, s{sROLE}, s49
    s_cmp_lt_u32 s49, 32
    s_cselect_b32 s49, s48, 8
    s_cmp_lt_u32 s49, 8
    s_cbranch_scc1 ROLE_SET
    v_mov_b32 v4, {D_OVF}
    global_atomic_add v6, v4, v3, s[{S_DBG}:{S_DBG+1}] sc0
    s_waitcnt vmcnt(0)
    v_readfirstlane_b32 s50, v6
    s_mov_b64 exec, -1
    """)
    all_arrived(a, "ROLE_ALL", 4, 6, 51, 52, "ROLE_NONE")
    a("s_mov_b32 s53, 0")
    a.label("ROLE_SCAN")
    a(f"""v_readlane_b32 s48, v6, s53
    s_min_u32 s48, s48, 32
    s_sub_u32 s49, 32, s48
    s_lshl_b32 s{sROLE}, s53, 5
    s_add_u32 s{sROLE}, s{sROLE}, s48
    s_add_u32 s{sROLE}, s{sROLE}, s50
    s_cmp_lt_u32 s50, s49
    s_cbranch_scc1 ROLE_SET
    s_sub_u32 s50, s50, s49
    s_add_u32 s53, s53, 1
    s_cmp_lt_u32 s53, 8
    s_cbranch_scc1 ROLE_SCAN
    """)
    a.label("ROLE_NONE")
    a(f"s_mov_b32 s{sROLE}, 256")
    a.label("ROLE_SET")
    a(f"""
    v_mov_b32 v3, s{sROLE}
    ds_write_b32 v2, v3
    s_waitcnt lgkmcnt(0)
    s_mov_b64 exec, -1
    """)
    a.label("ROLE_WAIT")
    a(f"""
    s_waitcnt vmcnt(0)
    s_barrier
    ds_read_b32 v3, v2
    s_waitcnt lgkmcnt(0)
    v_readfirstlane_b32 s{sROLE}, v3
    s_barrier
    """)

def build(prof=False, roles=("chain",)):
    a = Asm()
    RT["on"] = bool(prof)
    if prof: a("s_memrealtime s[4:5]")
    prologue(a)
    if prof:
        a(f"""v_mov_b32 v10, s4
        s_lshl_b32 s2, s{sROLE}, 6
        s_add_u32 s2, s2, {WS_PROF + 640*KB}
        v_mov_b32 v11, 0
        buffer_store_dword v10, v11, {W}, s2 offen""")
        if os.environ.get("RTDBG"):
            a(f"""s_cmp_lg_u32 s{sROLE}, 0
            s_cbranch_scc1 RTD0
            v_and_b32 v10, 0xffffff, v10
            global_store_dword v11, v10, s[{S_DBG}:{S_DBG+1}]""")
            a.label("RTD0")
        rt(a, 1)
    a(f"""s_cmp_ge_u32 s{sROLE}, 160
    s_cbranch_scc1 REST
    s_cmp_ge_u32 s{sROLE}, 32
    s_cbranch_scc1 QA
    s_mov_b32 s{sH}, s{sROLE}
    """)
    chain_role(a, prof)
    qa.qa_role(a)
    a.label("REST")
    a(f"""s_cmp_ge_u32 s{sROLE}, 224
    s_cbranch_scc1 INIT""")
    pa.pa_role(a, 160)
    op.op_role(a, 160)
    init_role(a)
    a.label("EXIT")
    a("s_endpgm")
    body = render(fix_hazards(a.lines, verbose=True))
    hdr = open("concat_heads__spectral_gfnet__memory_aug_recurrent_mem_tr__prompt.s.ref").read().split("\n")
    head = [l for l in hdr if l.startswith(";") and "@launch" not in l][:15]
    txt = "\n".join(head) + "\n; @launch grid=(256,1,1) block=(256,1,1) lds=163840\n"
    txt += f""".amdgcn_target "amdgcn-amd-amdhsa--gfx950"
.text
.globl {KNAME}
.p2align 8
.type {KNAME},@function
{KNAME}:
""" + body + f""".section .rodata,"a"
.p2align 6
.amdhsa_kernel {KNAME}
  .amdhsa_next_free_vgpr 512
  .amdhsa_next_free_sgpr 102
  .amdhsa_accum_offset 256
  .amdhsa_group_segment_fixed_size 0
  .amdhsa_kernarg_size 104
  .amdhsa_user_sgpr_count 2
  .amdhsa_user_sgpr_kernarg_segment_ptr 1
  .amdhsa_system_sgpr_workgroup_id_x 1
.end_amdhsa_kernel
"""
    return txt

if __name__ == "__main__":
    out = sys.argv[1]
    prof = True if "prof" in sys.argv[2:] else ("rt" if "rt" in sys.argv[2:] else False)
    open(out, "w").write(build(prof=prof))
```

```python
import re

class Asm:
    def __init__(self):
        self.lines = []
        self._uid = 0
    def __call__(self, s):
        for ln in s.split("\n"):
            ln = ln.strip()
            if ln:
                self.lines.append(ln)
    def label(self, name):
        self.lines.append(name + ":")
    def uid(self, base):
        self._uid += 1
        return f"{base}_{self._uid}"
    def extend(self, other):
        self.lines.extend(other.lines)

def vr(b, n=1, p="v"):
    return f"{p}{b}" if n == 1 else f"{p}[{b}:{b+n-1}]"
def ar(b, n=1):
    return vr(b, n, "a")
def sr(b, n=1):
    return vr(b, n, "s")
def wr(b, n=1):
    return vr(b, n) if b < 256 else vr(b - 256, n, "a")

_REG = re.compile(r"^(-?)(?:abs\()?([vas])(?:(\d+)|\[(\d+):(\d+)\])\)?$")
def regs_of(op):
    op = op.strip()
    if op in ("vcc", "exec"):
        return {(op, 0), (op, 1)}
    if op in ("vcc_lo", "exec_lo"):
        return {(op[:-3], 0)}
    if op in ("vcc_hi", "exec_hi"):
        return {(op[:-3], 1)}
    if op == "m0":
        return {("m0", 0)}
    m = _REG.match(op)
    if not m:
        return set()
    k = m.group(2)
    if m.group(3) is not None:
        lo = hi = int(m.group(3))
    else:
        lo, hi = int(m.group(4)), int(m.group(5))
    return {(k, i) for i in range(lo, hi + 1)}

TRANS = ("v_exp_f32", "v_log_f32", "v_rcp_f32", "v_rsq_f32", "v_sqrt_f32", "v_sin_f32", "v_cos_f32", "v_rcp_iflag_f32")

class Ins:
    def __init__(self, text):
        self.text = text
        t = text.split(";")[0].strip()
        self.is_label = t.endswith(":")
        self.is_dir = t.startswith(".") and not self.is_label
        self.op = ""
        self.W = set(); self.R = set()
        self.kind = None
        if self.is_label or self.is_dir or not t:
            self.kind = "none"; self.name = t[:-1] if self.is_label else None
            return
        parts = t.split(None, 1)
        self.op = op = parts[0]
        rest = parts[1] if len(parts) > 1 else ""
        brk = " ".join(re.findall(r"\b[a-z_0-9]+:\[[^\]]*\]", rest))
        rest = re.sub(r"\b[a-z_0-9]+:\[[^\]]*\]", "", rest)
        rest = re.sub(r"hwreg\([^)]*\)", "hwreg", rest)
        ops = []
        for o in rest.split(","):
            o = o.strip()
            if o:
                ops.append(o)
        mods = ""
        if ops:
            last = ops[-1].split()
            ops[-1] = last[0]
            mods = " ".join(last[1:]) + " " + brk
        self.ops = ops; self.mods = mods
        R = lambda i: regs_of(ops[i]) if i < len(ops) else set()
        allr = lambda a: set().union(*[R(i) for i in range(a, len(ops))]) if len(ops) > a else set()
        self.dpp = "_dpp" in op or "row_" in mods or "quad_perm" in mods
        if op.startswith("v_mfma") or op.startswith("v_smfmac"):
            self.kind = "mfma"
            self.W = R(0)
            if op.startswith("v_smfmac"):
                self.AB = R(1) | R(2) | R(3); self.C = R(0)
            else:
                self.AB = R(1) | R(2); self.C = R(3)
            self.R = self.AB | self.C
            self.passes = 8 if "32x32" in op else 4
            assert "_f32_f32" not in op and "x2_f32" not in op and "x4_f32" not in op
        elif op.startswith("v_"):
            self.kind = "valu"
            if op.startswith("v_permlane") and "swap" in op:
                self.W = R(0) | R(1); self.R = R(0) | R(1)
            elif op.startswith("v_cmpx"):
                self.W = R(0) | regs_of("exec"); self.R = allr(1)
            elif op.startswith(("v_add_co", "v_sub_co", "v_subrev_co", "v_addc_co", "v_subb_co", "v_mad_u64_u32", "v_div_scale")):
                self.W = R(0) | R(1); self.R = allr(2)
            else:
                self.W = R(0); self.R = allr(1)
                if op.startswith(("v_fmac", "v_pk_fmac", "v_writelane", "v_dot2c")):
                    self.R |= R(0)
                if op.startswith("v_cndmask") and len(ops) == 3:
                    self.R |= regs_of("vcc")
            self.trans = op.replace("_e32", "").replace("_e64", "").replace("_dpp", "") in TRANS
        elif op.startswith("ds_"):
            self.kind = "ds"
            if op.startswith(("ds_read", "ds_bpermute", "ds_permute", "ds_swizzle")) or "_rtn" in op:
                self.W = R(0); self.R = allr(1)
            else:
                self.R = allr(0)
        elif op.startswith(("global_", "buffer_", "flat_")):
            self.kind = "vmem"
            self.ldsdma = (" lds" in (" " + mods)) or "load_lds" in op
            if op in ("buffer_inv", "buffer_wbl2"):
                pass
            elif "load" in op and not self.ldsdma:
                self.W = R(0); self.R = allr(1)
            elif "atomic" in op and "sc0" in mods:
                if op.startswith("buffer_"):
                    self.W = R(0); self.R = allr(0)
                else:
                    self.W = R(0); self.R = allr(1)
            else:
                self.R = allr(0)
            if self.ldsdma:
                self.R |= {("m0", 0)}
            self.wide_store = ("store" in op) and (op.endswith("x3") or op.endswith("x4"))
            if self.wide_store:
                self.data = R(0) if op.startswith("buffer_") else R(1)
        elif op.startswith("s_"):
            self.kind = "salu"
            if op.startswith(("s_cmp", "s_bitcmp", "s_cbranch", "s_branch", "s_waitcnt", "s_nop", "s_barrier",
                              "s_endpgm", "s_sleep", "s_setprio", "s_setreg")):
                self.R = allr(0)
            else:
                self.W = R(0); self.R = allr(1)
                if "saveexec" in op:
                    self.W |= regs_of("exec")
        else:
            raise ValueError("unknown instruction: " + text)
    def states(self):
        if self.kind == "none":
            return 0
        if self.op == "s_nop":
            return int(self.ops[0], 0) + 1
        return 1

def vec(S):
    return {r for r in S if r[0] in "va" and r[0] != "vcc"}
def sca(S):
    return {r for r in S if r[0] in ("s", "vcc")}

def need(p, c):
    n = 0
    if p.kind == "valu":
        pw = vec(p.W)
        if c.kind == "mfma" and pw & c.R:
            n = max(n, 2)
        if c.kind == "valu":
            if p.trans and (pw & c.R) and not c.trans:
                n = max(n, 1)
            if (c.op.startswith("v_permlane") or c.dpp) and (pw & c.R):
                n = max(n, 2)
            if c.op.startswith(("v_readlane", "v_readfirstlane")) and (pw & c.R):
                n = max(n, 1)
            if sca(p.W) & c.R:
                n = max(n, 4 if c.op.startswith(("v_readlane", "v_writelane", "v_div_fmas")) else 2)
            if ("exec", 0) in p.W:
                n = max(n, 5)
        if c.kind == "mfma" and ("exec", 0) in p.W:
            n = max(n, 4)
        if c.kind == "vmem" and sca(p.W) & c.R:
            n = max(n, 5)
        if c.kind == "salu" and sca(p.W) & c.R:
            n = max(n, 1)
    elif p.kind == "mfma":
        full = 8 if p.passes == 4 else 12
        if c.kind == "mfma":
            if p.W & c.AB:
                n = max(n, full)
            if p.W & c.C:
                if not (p.W == c.C and p.passes == c.passes):
                    n = max(n, 6 if p.passes == 4 else 10)
            elif p.W & c.W:
                n = max(n, full)
        elif c.kind in ("valu", "ds", "vmem"):
            if p.W & (c.R | c.W):
                n = max(n, full)
            if c.kind == "valu" and (p.C & c.W):
                n = max(n, 3 if p.passes == 4 else 7)
    elif p.kind == "salu":
        if ("m0", 0) in p.W and c.kind == "vmem" and c.ldsdma:
            n = max(n, 1)
    elif p.kind == "vmem":
        if p.wide_store and c.kind != "none" and (p.data & c.W):
            n = max(n, 2 if c.kind == "valu" else 1)
    return n

def fix_hazards(lines, verbose=False, pipe_aware=True):
    ins = [Ins(l) for l in lines]
    MAXD = 12
    out = []
    labels = {}
    for i, x in enumerate(ins):
        if x.is_label:
            labels[x.name] = i
    branches_to = {}
    for i, x in enumerate(ins):
        if x.op.startswith(("s_cbranch", "s_branch")):
            branches_to.setdefault(labels[x.ops[0]], []).append(i)
    pad = [0] * len(ins)
    def required(ci):
        c = ins[ci]
        best = 0
        seen = {}
        stack = [(ci, 0, True, None)]
        while stack:
            k, dist, first, lm = stack.pop()
            d = dist + (0 if first else pad[k])
            preds = []
            if k > 0 and ins[k-1].op not in ("s_branch", "s_endpgm", "s_setpc_b64"):
                preds.append(k - 1)
            if ins[k].is_label:
                preds += branches_to.get(k, [])
            for p in preds:
                if seen.get(p, 99) <= d:
                    continue
                seen[p] = d
                x = ins[p]
                dd = d
                nm = lm
                if x.kind == "mfma":
                    if pipe_aware and lm is not None:
                        dd = max(d, lm + x.passes)
                    nm = dd
                if x.kind != "none":
                    n = need(x, c)
                    if n - dd > best:
                        best = n - dd
                nd = dd + x.states()
                if nd < MAXD:
                    stack.append((p, nd, False, nm))
        return best
    total = 0
    for i, x in enumerate(ins):
        if x.kind in ("none",):
            continue
        r = required(i)
        if r > 0:
            pad[i] = r
            total += r
    res = []
    for i, x in enumerate(ins):
        if pad[i]:
            res.append(f"s_nop {pad[i]-1}")
        res.append(x.text)
    if verbose:
        print("inserted wait states:", total)
    return res

def render(lines):
    o = []
    for l in lines:
        if l.endswith(":") or l.startswith(".") or l.startswith(";"):
            o.append(l)
        else:
            o.append("    " + l)
    return "\n".join(o) + "\n"

def inst_sizes(lines):
    import subprocess, tempfile, os
    body = [l for l in lines if not (l.startswith(".") and not l.endswith(":"))]
    src = '.amdgcn_target "amdgcn-amd-amdhsa--gfx950"\n.text\n' + "\n".join(body) + "\n"
    d = tempfile.mkdtemp()
    open(d + "/a.s", "w").write(src)
    subprocess.check_call(["clang", "-x", "assembler", "-target", "amdgcn-amd-amdhsa", "-mcpu=gfx950", "-c", d + "/a.s", "-o", d + "/a.o"])
    out = subprocess.check_output(["llvm-objdump", "-d", "--mcpu=gfx950", d + "/a.o"], text=True)
    sz = [4 * len(l.split("//")[1].split(":")[1].split("<")[0].split()) for l in out.split("\n") if "//" in l]
    res = []; k = 0
    for l in lines:
        if l.endswith(":") or l.startswith("."): res.append(0)
        else: res.append(sz[k]); k += 1
    assert k == len(sz), (k, len(sz))
    return res

def fix_straddles(lines, start, end, window=32):
    lines = list(lines)
    sz = inst_sizes(lines)
    i0 = lines.index(start + ":"); i1 = lines.index(end + ":")
    addr = 0; pos = {}
    left = 0
    for i in range(i0, i1):
        if sz[i] == 8 and addr % window == window - 4:
            j = i - 1; done = False
            while j > i0 and (sz[j] == 0 or pos[j] >= addr - (window - 4)):
                op = lines[j].split()[0]
                if sz[j] == 4 and op.startswith("v_") and not op.startswith(("v_readfirstlane", "v_nop")) and not op.endswith(("_e64", "_dpp")):
                    lines[j] = lines[j].replace(op, op + "_e64", 1); sz[j] = 8
                    for k in range(j + 1, i): pos[k] += 4
                    addr += 4; done = True
                    break
                j -= 1
            if not done: left += 1
        pos[i] = addr; addr += sz[i]
    lines.insert(i0, ".p2align 6")
    return lines, left
```

```python
from asmlib import *
from layout import *
import os

S_AX, S_WR, S_WI, S_BX, S_MEM0, S_WQ, S_WK, S_WV, S_WO, S_SEG, S_OUT, S_DBG, S_WS = 8,10,12,14,16,18,20,22,24,26,28,30,32
SRD_WS = 36
SRD_T  = 40
sW, sROLE, sXCC = 44, 45, 46
sLKX = 47
sC2, sONE2 = 48, 50
sH, sS, sT0, sT1, sT2, sCNT, sINB_R, sINB_R2, sKXO, sFREE0, sMR, sKX, sVX, sKM, sTAG, sPOM, sPROF, sPF = range(52, 70)
sXM = 90
sINW = 98
sMODE = 35
sHM = 12
sHW, sHR, sFM, sRDY = 4, 5, 6, 7
sKVA = 0
sKV = 8

SPIN_MAX = 1 << 16
CFG = {k: int(os.environ.get(k.upper(), v)) for k, v in dict(d1=208, d2=0, adv=1, advp=1, dep=3, gap=64, pub=1, pad=256, bar=15, w1=4, join=8, dr=0, dl=320, gu=0, gt=-72, vl=0, v2=1, vw=4, n0=2, ct=0, pace=0, fe=2, pk=5, pa=11, pb=10, ga=40, g3=48, g4=56, light=0, only=6, at=-1, e1=0, e2=0, e3=1, e4=1, hm=7, pg=8, pq=20, pd=8, w0p=3, hr=8, hb=4, p0=160, np=0, ps=32, pf=4, ds=0, g2=48, re=2, fast=1, gate=1).items()}
INB_STRIDE = 8192 + CFG["pad"]

L_WL = 0
L_MB = 131072
L_OX = L_MB
L_KXB = L_MB + 8192
L_X = L_KXB + 16384
XP = 1088
L_SEL = L_X + 4 * XP
L_JUNK = L_SEL + 1024
L_SEL2 = L_JUNK + 256
L_FL = L_SEL2 + 1024

vLB, vG, vWL1, vG2, vXW, vXR, vOW, vIDX, vPS, vMS, vHR, vT = range(12)
PM = 12
aQK, aV, X, VX, MA, RING = 16, 32, 40, 56, 64, 96

KORD = (2, 4, 6, 3, 5, 7)
QKSEQ = [(m, T, kk) for kk in range(2) for (m, T) in ((0, 0), (1, 0), (0, 1), (1, 1), (2, 0), (2, 1))] + \
        [(m, T, kk) for kk in KORD[:4] for (m, T) in ((0, 0), (1, 0), (0, 1))] + \
        [(0, 0, 5), (1, 0, 5), (0, 0, 7), (1, 0, 7), (0, 1, 5), (0, 1, 7)] + [(1, 1, kk) for kk in KORD]
VSEQ = [(2, T, kk) for kk in range(2, 8) for T in range(2)]
OSEQ = [(3, p, 0) for p in range(4)] + [(3, p, kk) for p in range(4) for kk in range(1, 4)]
RB0 = 24
RBS = (12, 12, 13, 14, 18, 18, 19, 19)
def wfrag_map():
    m = {}
    for i in range(4):
        m[QKSEQ[i]] = ("lds", i, i)
        m[QKSEQ[RB0 + i]] = ("lds", 4 + i, i)
        m[VSEQ[2 + i]] = ("lds", 8 + i, i)
        m[OSEQ[12 + i]] = ("lds", 12 + i, i)
    nxt = 128
    for k in QKSEQ + VSEQ + OSEQ:
        if k not in m:
            m[k] = ("reg", nxt); nxt += 8
    assert nxt == 512
    return m
WF = wfrag_map()
def wop(key):
    e = WF[key]
    return wr(e[1], 8) if e[0] == "reg" else vr(RING + 8 * e[2], 8)

class LdsQ:
    def __init__(self, a): self.a = a; self.n = 0
    def op(self, text):
        self.a(text); self.n += 1; return self.n
    def wait(self, tok):
        k = self.n - tok
        self.a(f"s_waitcnt lgkmcnt({min(k, 15)})")

def ring_load(rnd):
    L = []
    for slot in range(4):
        f = 4 * rnd + slot
        base, off = (vG, f * 8192) if f < 8 else (vWL1, (f - 8) * 8192)
        for hh in range(2):
            L.append(f"ds_read_b128 {vr(RING + 8*slot + 4*hh, 4)}, v{base} offset:{off + 1024*hh}")
    return L

def set_srd(a, srd, sptr, nbytes):
    a(f"""s_mov_b32 s{srd}, s{sptr}
    s_mov_b32 s{srd+1}, s{sptr+1}
    s_mov_b32 s{srd+2}, {nbytes}
    s_mov_b32 s{srd+3}, 0x20000""")

W = f"s[{SRD_WS}:{SRD_WS+3}]"

RT = {"on": False}
def rt(a, k, vt=126):
    if not RT["on"]: return
    lab = a.uid("RT")
    if os.environ.get("RTDBG"):
        MAP = {(0,1):5, (0,2):6, (0,4):7, (0,7):8, (32,4):9, (32,7):10, (160,2):11, (160,3):12, (160,4):13, (160,5):14, (160,7):15}
        a(f"s_cmp_lg_u32 s{sW}, 0\ns_cbranch_scc1 {lab}\ns_mov_b32 s3, 0")
        for (r, kk), wd in MAP.items():
            if kk == k: a(f"s_cmp_eq_u32 s{sROLE}, {r}\ns_cselect_b32 s3, {4*wd}, s3")
        a(f"""s_cmp_eq_u32 s3, 0
        s_cbranch_scc1 {lab}
        v_mov_b32 v{vt+1}, s3
        s_memrealtime s[2:3]
        s_waitcnt lgkmcnt(0)
        s_and_b32 s2, s2, 0xffffff
        v_mov_b32 v{vt}, s2
        global_store_dword v{vt+1}, v{vt}, s[{S_DBG}:{S_DBG+1}]
        s_waitcnt vmcnt(0)""")
        a.label(lab)
        return
    a(f"""s_cmp_lg_u32 s{sW}, 0
    s_cbranch_scc1 {lab}
    s_memrealtime s[2:3]
    s_waitcnt lgkmcnt(0)
    v_mov_b32 v{vt}, s2
    s_lshl_b32 s2, s{sROLE}, 6
    s_add_u32 s2, s2, {WS_PROF + 640*KB + 4*k}
    v_mov_b32 v{vt+1}, 0
    buffer_store_dword v{vt}, v{vt+1}, {W}, s2 offen
    s_waitcnt vmcnt(0)""")
    a.label(lab)

def delay(a, cyc):
    n = cyc // 4
    while n > 0:
        k = min(n, 16); a(f"s_nop {k-1}"); n -= k

def all_arrived(a, name, va, vd, sC, sT, fail, early=None):
    a(f"""v_mbcnt_lo_u32_b32 v{va}, -1, 0
    v_and_b32 v{va}, 15, v{va}
    v_lshlrev_b32 v{va}, 2, v{va}
    v_add_u32 v{va}, {D_TICK - 4}, v{va}
    v_writelane_b32 v{va}, 0, 0
    s_mov_b32 s{sC}, 0""")
    a.label(name)
    a(f"""global_load_dword v{vd}, v{va}, s[{S_DBG}:{S_DBG+1}] sc1
    s_add_u32 s{sC}, s{sC}, 1
    s_cmp_gt_u32 s{sC}, {SPIN_MAX}
    s_cbranch_scc1 {fail}
    s_waitcnt vmcnt(0)
    v_readlane_b32 s{sT}, v{vd}, 0""")
    if early: a(f"s_cmp_ge_u32 s{sT}, 32\ns_cbranch_scc1 {early}")
    for i in range(1, 9): a(f"v_readlane_b32 vcc_lo, v{vd}, {i}\ns_add_u32 s{sT}, s{sT}, vcc_lo")
    a(f"""s_cmp_lt_u32 s{sT}, 256
    s_cbranch_scc1 {name}""")

def init_role(a):
    a.label("INIT")
    a(f"""s_cmp_ge_u32 s{sROLE}, 256
    s_cbranch_scc1 EXIT
    s_sub_u32 s48, s{sROLE}, 224
    v_lshlrev_b32 v1, 4, v0
    v_mov_b64 v[4:5], -1
    v_mov_b64 v[6:7], -1
    s_mul_i32 s49, s48, {INB_STRIDE}
    s_add_u32 s49, s49, {WS_INBOX}
    buffer_store_dwordx4 v[4:7], v1, {W}, s49 offen sc1
    s_add_u32 s49, s49, 4096
    buffer_store_dwordx4 v[4:7], v1, {W}, s49 offen sc1
    v_lshlrev_b32 v2, 2, v0
    s_lshl_b32 s49, s48, 10
    s_add_u32 s50, s49, {WS_MBUF}
    buffer_store_dword v4, v2, {W}, s50 offen sc1
    s_add_u32 s50, s49, {WS_HINT}
    buffer_store_dword v4, v2, {W}, s50 offen sc1
    s_lshl_b32 s50, s48, 14
    s_add_u32 s50, s50, {WS_MH + 8192}""")
    for i in range(4):
        a(f"""buffer_store_dwordx4 v[4:7], v1, {W}, s50 offen sc1
        s_add_u32 s50, s50, 4096""")
    set_srd(a, SRD_T, S_MEM0, 8192)
    a(f"""s_cmp_lg_u32 s48, 1
    s_cbranch_scc1 INIT_NM
    v_bfe_u32 v8, v0, 2, 2
    v_and_b32 v9, 1, v0
    v_lshl_add_u32 v8, v8, 1, v9
    v_lshlrev_b32 v8, 10, v8
    v_lshrrev_b32 v9, 7, v0
    v_lshl_add_u32 v8, v9, 8, v8
    v_bfe_u32 v9, v0, 6, 1
    v_lshl_add_u32 v8, v9, 4, v8
    v_bfe_u32 v9, v0, 5, 1
    v_lshl_add_u32 v8, v9, 6, v8
    v_bfe_u32 v9, v0, 4, 1
    v_lshl_add_u32 v8, v9, 3, v8
    v_bfe_u32 v9, v0, 1, 1
    v_lshl_add_u32 v8, v9, 5, v8
    buffer_load_dwordx2 v[12:13], v8, s[{SRD_T}:{SRD_T+3}], 0 offen
    buffer_load_dwordx2 v[14:15], v8, s[{SRD_T}:{SRD_T+3}], 0 offen offset:128
    buffer_load_dwordx2 v[16:17], v8, s[{SRD_T}:{SRD_T+3}], 0 offen offset:512
    buffer_load_dwordx2 v[18:19], v8, s[{SRD_T}:{SRD_T+3}], 0 offen offset:640
    s_mov_b32 s50, {WS_MH}
    s_mov_b32 s51, {WS_MH + 4096}
    s_mov_b32 s52, 0x05040100
    s_mov_b32 s53, 0x07060302
    s_waitcnt vmcnt(0)""")
    for k in range(2):
        for c in range(4): a(f"v_perm_b32 v{20+4*k+c}, v{14+4*k+(c>>1)}, v{12+4*k+(c>>1)}, s{52+(c&1)}")
    a(f"""buffer_store_dwordx4 v[20:23], v1, {W}, s50 offen sc1
    buffer_store_dwordx4 v[24:27], v1, {W}, s51 offen sc1""")
    a.label("INIT_NM")
    a(f"""v_mov_b32 v3, 0
    s_add_u32 s50, s49, {WS_FLAGS}
    buffer_store_dword v3, v2, {W}, s50 offen sc1
    s_waitcnt vmcnt(0)
    v_mov_b32 v4, 1
    v_mov_b32 v5, {D_INIT}
    s_mov_b64 exec, 1
    global_atomic_add v5, v4, s[{S_DBG}:{S_DBG+1}]
    s_mov_b64 exec, -1
    s_lshl_b32 s49, s48, 15
    v_lshlrev_b32 v1, 7, v0""")
    set_srd(a, SRD_T, S_BX, 512 * KB)
    a(f"buffer_load_dword v8, v1, s[{SRD_T}:{SRD_T+3}], s49 offen")
    set_srd(a, SRD_T, S_WO, 4 * MB)
    for i in range(4):
        a(f"""buffer_load_dword v{9 + i}, v1, s[{SRD_T}:{SRD_T+3}], s49 offen
        s_add_u32 s49, s49, {MB}""")
    a(f"""s_waitcnt vmcnt(0)
    s_cmp_eq_u32 s{sROLE}, 224
    s_cbranch_scc1 PA""")

def code_touch(a, va, vd, sp):
    if not CFG["ct"]: return
    a(f"""s_getpc_b64 s[{sp}:{sp+1}]
    global_load_dword v{vd}, v{va}, s[{sp}:{sp+1}]""")

def chain_startup(a):
    t0, t1, t2, t3, t4, t5, t6, t7 = 16, 17, 18, 19, 20, 21, 22, 23
    vLane, vDQ, vDO, vTR, vTA, vM0, vTO = 24, 25, 26, 27, 28, 30, 31
    a(f"v_lshlrev_b32 v15, 7, v0")
    code_touch(a, 15, vT, 72)
    a(f"""
    v_and_b32 v{vLane}, 63, v0
    v_lshlrev_b32 v{vLB}, 4, v{vLane}
    s_lshl_b32 s{sT0}, s{sW}, 11
    v_add_u32 v{vG}, s{sT0}, v{vLB}
    v_add_u32 v{vLB}, {L_MB}, v{vLB}
    v_add_u32 v{vWL1}, 0x10000, v{vG}
    v_add_u32 v{vG2}, {L_MB}, v{vG}
    """)
    a(f"""
    s_mul_i32 s{sINB_R}, s{sH}, {INB_STRIDE}
    s_add_u32 s{sINB_R}, s{sINB_R}, {WS_INBOX}
    s_lshl_b32 s{sT0}, s{sW}, 11
    s_sub_u32 s{sINB_R}, s{sINB_R}, s{sT0}
    s_add_u32 s{sINB_R2}, s{sINB_R}, 4096
    s_lshl_b32 s{sHW}, s{sH}, 2
    s_add_u32 s{sHW}, s{sHW}, {WS_HINT}
    s_and_b32 s{sHR}, s{sH}, 7
    s_lshl_b32 s{sHR}, s{sHR}, 7
    s_add_u32 s{sHR}, s{sHR}, {WS_HINT}
    s_lshl_b32 s{sFM}, s{sH}, 7
    s_add_u32 s{sKVA}, s{S_WS}, s{sFM}
    s_addc_u32 s{sKVA+1}, s{S_WS+1}, 0
    s_add_u32 s{sFM}, s{sFM}, {WS_FLAGS + F_M}
    s_mov_b32 s{sRDY}, 0""")
    a(f"""
    v_lshrrev_b32 v{t0}, 4, v{vLane}
    s_and_b32 s{sT0}, s{sW}, 1
    s_lshl_b32 s{sT1}, s{sT0}, 2
    v_add_u32 v{t1}, s{sT1}, v{t0}
    v_lshlrev_b32 v{t1}, 1, v{t1}
    v_and_b32 v{t2}, 15, v{vLane}
    v_xor_b32 v{t1}, v{t1}, v{t2}
    v_lshlrev_b32 v{t1}, 4, v{t1}
    v_lshrrev_b32 v{t2}, 1, v{t0}
    v_and_b32 v{t3}, 1, v{t0}
    v_lshlrev_b32 v{vDQ}, 6, v{t3}
    v_lshl_add_u32 v{vDQ}, v{t2}, 4, v{vDQ}
    s_lshl_b32 s{sT1}, s{sW}, 1
    v_add_u32 v{vDQ}, s{sT1}, v{vDQ}
    v_lshl_add_u32 v{vDQ}, v{vDQ}, 13, v{t1}
    s_lshl_b32 s{sT1}, s{sH}, 8
    v_add_u32 v{vDQ}, s{sT1}, v{vDQ}
    v_lshl_add_u32 v{t2}, v{t2}, 5, v{t3}
    s_lshl_b32 s{sT0}, s{sT0}, 4
    s_lshr_b32 s{sT1}, s{sW}, 1
    s_lshl_b32 s{sT1}, s{sT1}, 2
    s_add_u32 s{sT0}, s{sT0}, s{sT1}
    v_add_u32 v{t2}, s{sT0}, v{t2}
    v_and_b32 v{t3}, 128, v{t1}
    v_add_u32 v{t1}, v{t1}, v{t3}
    v_lshl_add_u32 v{vDO}, v{t2}, 10, v{t1}
    s_lshl_b32 s{sT1}, s{sH}, 17
    v_add_u32 v{vDO}, s{sT1}, v{vDO}
    """)
    a(f"""
    v_lshrrev_b32 v{t0}, 4, v{vLane}
    v_bfe_u32 v{t1}, v{vLane}, 2, 2
    v_and_b32 v{t2}, 3, v{vLane}
    v_and_b32 v{t3}, 1, v{t0}
    v_lshl_add_u32 v{t3}, v{t3}, 2, v{t1}
    v_lshlrev_b32 v{t3}, 5, v{t3}
    v_lshl_add_u32 v{t3}, v{t2}, 3, v{t3}
    v_lshl_add_u32 v{t3}, v{t1}, 8, v{t3}
    v_lshl_add_u32 v{vTR}, v{t0}, 10, v{t3}
    v_and_b32 v{t4}, 1, v{t1}
    v_lshrrev_b32 v{t5}, 1, v{t1}
    v_xor_b32 v{t5}, v{t5}, v{t4}
    v_and_b32 v{t3}, 1, v{t0}
    v_lshl_add_u32 v{t5}, v{t3}, 2, v{t5}
    v_lshlrev_b32 v{t5}, 5, v{t5}
    v_lshl_add_u32 v{t5}, v{t2}, 3, v{t5}
    v_lshl_add_u32 v{t5}, v{t4}, 8, v{t5}
    v_lshl_add_u32 v{vTO}, v{t0}, 10, v{t5}
    s_lshl_b32 s{sT2}, s{sW}, 10
    """)
    ptrs = [S_WQ, S_WK, S_WV, S_WO]
    MORD = (1, 2, 0, 3)
    def issue(u):
        c, mh = u >> 1, u & 1
        mat, half = MORD[c >> 1], c & 1
        if u & 3 == 0: set_srd(a, SRD_T, ptrs[mat], 4 * MB)
        for tl in range(4):
            for m in (2 * mh, 2 * mh + 1):
                if mat < 3:
                    so = (128 * tl + 8 * half + 32 * (m >> 1) + (m & 1)) * 8192
                    v = vDQ
                else:
                    so = (64 * (tl & 1) + 8 * (m >> 1) + 2 * (m & 1)) * 1024 + (tl >> 1) * 512 + half * 128
                    v = vDO
                a(f"""s_add_u32 m0, s{sT2}, {half * 65536 + (tl * 4 + m) * 4096}
                s_mov_b32 s{sT0}, {so}
                buffer_load_dwordx4 v{v}, s[{SRD_T}:{SRD_T+3}], s{sT0} offen lds""")
    def hold(f): return 32 + 8 * (f if f < 12 else f - 12)
    def dest(key):
        e = WF[key]
        return e[1] if e[0] == "reg" else hold(e[1])
    def addrs(omat):
        for n in range(8):
            va = 16 + n
            if not omat:
                T, lo = n >> 2, n & 3
                a(f"""s_lshl_b32 s{sT0}, s{sW}, 6
                s_add_u32 s{sT0}, s{sT0}, {32 * T}
                s_xor_b32 s{sT1}, s{sW}, {lo}
                s_lshl_b32 s{sT1}, s{sT1}, 14
                v_xor_b32 v{va}, s{sT0}, v{vTR}
                v_add_u32 v{va}, s{sT1}, v{va}""")
            else:
                pl, kk = n >> 2, n & 3
                a(f"""s_xor_b32 s{sT1}, s{sW}, {kk}
                s_and_b32 s{sT0}, s{sT1}, 1
                s_lshl_b32 s{sCNT}, s{sT0}, 9
                s_lshl_b32 s{sT0}, s{sT0}, 6
                s_xor_b32 s{sT0}, s{sT0}, {64 * pl}
                s_and_b32 s{sTAG}, s{sW}, 1
                s_lshl_b32 s{sTAG}, s{sTAG}, 7
                s_add_u32 s{sT0}, s{sT0}, s{sTAG}
                s_lshr_b32 s{sT1}, s{sT1}, 1
                s_and_b32 s{sTAG}, s{sW}, 2
                s_add_u32 s{sT1}, s{sT1}, s{sTAG}
                s_lshl_b32 s{sT1}, s{sT1}, 14
                s_add_u32 s{sT1}, s{sT1}, s{sCNT}
                v_xor_b32 v{va}, s{sT0}, v{vTO}
                v_add_u32 v{va}, s{sT1}, v{va}""")
    def consume(u):
        c, mh = u >> 1, u & 1
        mat, half = MORD[c >> 1], c & 1
        for n in range(8):
            d = dest((mat, n >> 2, 2 * (n & 3) + half)) if mat < 3 else dest((3, 2 * half + (n >> 2), n & 3))
            for m in (2 * mh, 2 * mh + 1):
                a(f"ds_read_b64_tr_b16 {wr(d + 2*m, 2)}, v{16+n} offset:{m*4096}")
        a("s_waitcnt lgkmcnt(0)")
    def spill(fs):
        for f in fs:
            base, off = (vG, f * 8192) if f < 8 else (vWL1, (f - 8) * 8192)
            for hh in range(2):
                a(f"ds_write_b128 v{base}, {vr(hold(f) + 4*hh, 4)} offset:{off + 1024*hh}")
        a("s_waitcnt lgkmcnt(0)")
    for u in range(4): issue(u)
    a(f"""
    v_and_b32 v{t0}, 15, v{vLane}
    v_lshrrev_b32 v{t1}, 4, v{vLane}
    v_and_b32 v{t2}, 3, v{vLane}
    v_bfe_u32 v{t3}, v{vLane}, 2, 2
    """)
    a(f"""
    s_lshl_b32 s{sT0}, s{sW}, 8
    s_add_u32 s{sT1}, s{sT0}, {L_X}
    v_mul_u32_u24 v{t5}, {XP}, v{t1}
    v_lshl_add_u32 v{t5}, v{t0}, 3, v{t5}
    v_add_u32 v{vXW}, s{sT1}, v{t5}
    """)
    a(f"""
    v_and_b32 v{t4}, 1, v{t1}
    v_lshl_add_u32 v{t4}, v{t4}, 2, v{t3}
    v_lshrrev_b32 v{t5}, 1, v{t1}
    v_lshl_add_u32 v{t4}, v{t5}, 4, v{t4}
    v_mul_u32_u24 v{t5}, {XP}, v{t2}
    v_lshl_add_u32 v{t4}, v{t4}, 3, v{t5}
    v_add_u32 v{vXR}, {L_X}, v{t4}
    v_and_b32 v{vHR}, 31, v{vLane}
    v_lshlrev_b32 v{vHR}, 2, v{vHR}
    v_cmp_lt_u32 vcc, 1, v{t2}
    v_mov_b32 v{t5}, 0x4444
    v_mov_b32 v{t6}, 0xeeee
    v_cndmask_b32 v{vIDX}, v{t5}, v{t6}, vcc
    """)
    a(f"""
    v_and_b32 v{t4}, 1, v{vLane}
    v_lshl_add_u32 v{t7}, v{t3}, 1, v{t4}
    v_lshlrev_b32 v{t4}, 4, v{t7}
    v_lshl_add_u32 v{t4}, v{t1}, 7, v{t4}
    s_lshl_b32 s{sT0}, s{sW}, 9
    s_add_u32 s{sT0}, s{sT0}, {L_OX}
    v_add_u32 v{vOW}, s{sT0}, v{t4}
    v_mov_b32 v{t6}, 0x80000000
    """)
    a(f"""
    v_bfe_u32 v{t4}, v{vLane}, 2, 1
    v_bfe_u32 v{t5}, v{vLane}, 3, 1
    v_lshl_add_u32 v{vMS}, v{t4}, 1, v{t5}
    v_lshl_add_u32 v{vMS}, v{vMS}, 2, v{t2}
    v_lshlrev_b32 v{vMS}, 2, v{vMS}
    v_lshl_add_u32 v{vMS}, v{t1}, 8, v{vMS}
    s_lshr_b32 s{sT0}, s{sH}, 3
    s_lshl_b32 s{sT0}, s{sT0}, 11
    s_and_b32 s{sT1}, s{sH}, 1
    s_lshl_b32 s{sT1}, s{sT1}, 10
    s_add_u32 s{sT0}, s{sT0}, s{sT1}
    s_and_b32 s{sT1}, s{sH}, 6
    s_lshl_b32 s{sT1}, s{sT1}, 5
    s_add_u32 s{sT0}, s{sT0}, s{sT1}
    s_cmp_eq_u32 s{sW}, 0
    s_cselect_b32 s{sT0}, s{sT0}, 0x80000000
    v_add_u32 v{vMS}, s{sT0}, v{vMS}
    v_lshl_add_u32 v{t5}, v{t1}, 1, v{t5}
    s_lshl_b32 s{sT1}, s{sW}, 3
    v_add_u32 v{t5}, s{sT1}, v{t5}
    v_mul_u32_u24 v{t5}, {INB_STRIDE}, v{t5}
    v_lshl_add_u32 v{t5}, v{t2}, 4, v{t5}
    v_lshl_add_u32 v{t5}, v{t4}, 3, v{t5}
    s_lshl_b32 s{sT0}, s{sH}, 6
    v_add_u32 v{vPS}, s{sT0}, v{t5}
    """)
    a(f"""
    v_and_b32 v{t5}, 1, v{vLane}
    v_lshlrev_b32 v{t5}, 4, v{t5}
    v_mov_b32 v{t6}, 0x3f80
    v_lshlrev_b32 v{t5}, v{t5}, v{t6}
    v_bfe_u32 v{t6}, v{vLane}, 1, 3
    """)
    for d in range(4):
        a(f"""v_cmp_eq_u32 vcc, {4 + d}, v{t6}
        v_cndmask_b32 v{PM+d}, 0, v{t5}, vcc""")
    a(f"""ds_write_b128 v{vLB}, v[{PM}:{PM+3}] offset:{L_SEL2-L_MB}
    s_waitcnt lgkmcnt(0)""")
    for d in range(4):
        a(f"""v_cmp_eq_u32 vcc, {d}, v{t6}
        v_cndmask_b32 v{PM+d}, 0, v{t5}, vcc""")
    a(f"""ds_write_b128 v{vLB}, v[{PM}:{PM+3}] offset:{L_SEL-L_MB}
    s_waitcnt lgkmcnt(0)
    v_mov_b64 v[{PM}:{PM+1}], 0
    v_mov_b64 v[{PM+2}:{PM+3}], 0
    """)
    a(f"""
    s_mov_b32 s{sS}, -1
    s_lshl_b32 s{sT0}, s{sH}, 13
    s_add_u32 s{sKX}, s{sT0}, {WS_KX}
    s_add_u32 s{sVX}, s{sT0}, {WS_VX - 256*KB}
    s_mov_b32 s{sKM}, {WS_MH + 64 * 8192}
    s_mov_b32 s{sC2}, 0x3e0293ee
    s_mov_b32 s{sC2+1}, 0x3e0293ee
    s_mov_b32 s{sONE2}, 0x3f803f80
    s_mov_b32 s{sONE2+1}, 0x3f803f80
    s_lshl_b32 s{sT0}, s{sW}, 11
    s_add_u32 s{sLKX}, s{sT0}, {L_MB}
    s_mov_b32 s{sKXO}, 16384
    s_add_u32 s{sPF}, s{sVX}, s{sT0}
    s_add_u32 s{sPF}, s{sPF}, {256*KB - 2*L_MB}
    s_lshl_b32 s{sFREE0}, s{sH}, 8
    s_add_u32 s{sFREE0}, s{sFREE0}, {WS_MBUF - (L_MB >> 2)}
    s_mov_b32 s{sMR}, {WS_MBUF}
    s_mov_b32 s{sPOM}, 0
    s_cmp_eq_u32 s{sW}, 0
    s_cselect_b32 s{sHM}, 0xff, 0
    s_mov_b32 s{sHM+1}, 0
    """)
    for p in range(4): a(f"s_mov_b32 s{sINW+p}, {WS_INBOX + 2048 * p}")
    addrs(False)
    for u in range(16):
        if u == 12: addrs(True)
        elif u and u & 1 == 0:
            for n in range(8): a(f"v_xor_b32 v{16+n}, 0x10000, v{16+n}")
        if u == 13: start_gates(a)
        if u == 13: first_kv(a, "A", vTA, blocking=False)
        a(f"s_waitcnt vmcnt({8 * min(3, 15 - u)})")
        a("s_barrier")
        consume(u)
        a("s_barrier")
        if u == 8:
            a(f"""v_mov_b32 v{PM}, 0
            global_load_dwordx2 v[28:29], v{PM}, s[{S_DBG}:{S_DBG+1}] sc1""")
        if u in (2, 5, 8, 11):
            a(f"""s_lshl_b32 s{sT0}, s{sW}, 13
            v_lshlrev_b32 v{vT}, 7, v{vLane}
            v_add_u32 v{vT}, s{sT0}, v{vT}""")
            code_touch(a, vT, vT, 72)
        if u + 4 < 16: issue(u + 4)
        if u == 13:
            spill(range(0, 8))
            a(f"""s_mov_b32 s{sT0}, {WS_MH}
            buffer_load_dwordx4 {vr(MA,4)}, v{vG}, {W}, s{sT0} offen sc1
            buffer_load_dwordx4 {vr(MA+4,4)}, v{vG}, {W}, s{sT0} offen offset:1024 sc1""")
    a(f"""ds_write_b128 v{vG2}, {vr(MA,4)}
    ds_write_b128 v{vG2}, {vr(MA+4,4)} offset:1024""")
    a(f"""v_mov_b32 v16, 0
    ds_write_b32 v{vLB}, v16 offset:{L_FL - L_MB}""")
    spill(range(8, 16))
    first_kv(a, "B", vTA, blocking=True)

def start_gates(a):
    a(f"""v_readfirstlane_b32 s{sT0}, v28
    v_readfirstlane_b32 s{sT1}, v29
    s_mov_b32 s{sMODE}, 1
    s_cmp_ge_u32 s{sT0}, 32
    s_cbranch_scc1 CH_MODE""")
    all_arrived(a, "CH_ROSTER", 28, 29, sCNT, sT0, "CH_DONE", early="CH_MODE")
    a(f"s_mov_b32 s{sMODE}, 0")
    a.label("CH_MODE")
    a(f"s_mov_b32 s{sCNT}, 0")
    a.label("CH_INIT")
    a(f"""s_cmp_ge_u32 s{sT1}, 128
    s_cbranch_scc1 CH_G2
    global_load_dword v29, v{PM}, s[{S_DBG}:{S_DBG+1}] offset:{D_INIT} sc1
    s_add_u32 s{sCNT}, s{sCNT}, 1
    s_cmp_gt_u32 s{sCNT}, {SPIN_MAX}
    s_cbranch_scc1 CH_DONE
    s_waitcnt vmcnt(0)
    v_readfirstlane_b32 s{sT1}, v29
    s_branch CH_INIT""")
    a.label("CH_G2")

def first_kv(a, tag, vt, blocking):
    a(f"""s_cmp_lg_u32 s{sPOM}, 0
    s_cbranch_scc1 CH_FK_{tag}
    s_mov_b32 s{sCNT}, 0""")
    if CFG["gate"]:
        if blocking: kv_gate(a, "CH_KV0", f"s_mov_b32 s{sT1}, 2")
        else:
            a(f"""s_load_dwordx4 s[{sKV}:{sKV+3}], s[{sKVA}:{sKVA+1}], {WS_FLAGS + F_KV} glc
            s_waitcnt lgkmcnt(0)""")
            kv_min(a)
            a(f"""s_mov_b32 s{sRDY}, s{sKV}
            s_cmp_lt_u32 s{sRDY}, 2
            s_cbranch_scc1 CH_FK_{tag}""")
    a(f"""s_add_u32 m0, s{sLKX}, 8192
    s_mov_b32 s{sPOM}, 1
    buffer_load_dwordx4 v{vG}, {W}, s{sKX} offen sc1 lds
    buffer_load_dwordx4 v{vG}, {W}, s{sKX} offen offset:1024 sc1 lds
    v_lshlrev_b32 v{vt}, 1, v{vLB}
    s_mov_b32 m0, {L_JUNK}
    buffer_load_dword v{vt}, {W}, s{sPF} offen sc1 lds""")
    a.label(f"CH_FK_{tag}")

def zlist(b, n):
    return [f"v_mov_b64 v[{b+i}:{b+i+1}], 0" for i in range(0, n, 2)]

def smf(acc, A, B):
    return f"v_smfmac_f32_16x16x64_bf16 {vr(acc,4)}, {vr(A,4)}, {B}, v{vIDX}"

NST = 10
def mark(a, prof, name):
    if (prof or MEAN) and os.environ.get("MARK") == name: a("s_memtime s[74:75]")
MEAN = bool(os.environ.get("MEAN"))
CNT = bool(os.environ.get("CNT"))
def stamp(a, prof, k):
    if MEAN and k in (6, 7):
        a(f"s_memtime s[{70+2*k}:{71+2*k}]")
        if k == 6:
            a(f"""s_waitcnt lgkmcnt(0)
            s_sub_u32 s76, s74, s84
            s_sub_u32 s77, s82, s84
            s_sub_u32 s78, s84, s79
            s_mov_b32 s79, s84
            s_cmp_ge_u32 s{sS}, 8
            s_cselect_b32 s76, s76, 0
            s_cselect_b32 s77, s77, 0
            s_cselect_b32 s78, s78, 0
            s_add_u32 s70, s70, s76
            s_add_u32 s71, s71, s77
            s_add_u32 s72, s72, s78
            s_cmp_lg_u32 s{sW}, 0""")
        return
    if prof:
        if CFG["light"] and k not in (7, 8, 9, CFG["only"]): return
        if k == 9: a(f"s_memrealtime s[{70+2*k}:{71+2*k}]")
        else: a(f"s_memtime s[{70+2*k}:{71+2*k}]")

PUBST = f"buffer_store_dword v{X}, v{vMS}, {W}, s{sKM} offen sc1"
MR = X + 4
def kv_min(a):
    for j in range(NG):
        a(f"s_lshl_b32 s{sKV+j}, s{sKV+j}, 2")
        if j: a(f"s_add_u32 s{sKV+j}, s{sKV+j}, {j}\ns_min_u32 s{sKV}, s{sKV}, s{sKV+j}")
def kv_gate(a, name, need_expr):
    a(need_expr)
    a(f"s_min_u32 s{sT1}, s{sT1}, 64")
    a.label(name)
    a(f"""s_cmp_ge_u32 s{sRDY}, s{sT1}
    s_cbranch_scc1 {name}_OK
    {"s_bitset1_b64 s[70:71], s%d" % sS if CNT else ""}
    s_load_dwordx4 s[{sKV}:{sKV+3}], s[{sKVA}:{sKVA+1}], {WS_FLAGS + F_KV} glc
    s_add_u32 s{sCNT}, s{sCNT}, 1
    s_cmp_gt_u32 s{sCNT}, {SPIN_MAX}
    s_cbranch_scc1 CH_DONE
    s_waitcnt lgkmcnt(0)""")
    kv_min(a)
    a(f"""s_mov_b32 s{sRDY}, s{sKV}
    s_branch {name}""")
    a.label(name + "_OK")
def hop_prep(a, part=7, wait=True):
    if part & 1:
        for l in ring_load(0): a(l)
    if part & 2:
        hop_prep2(a)
    if part & 4:
        for l in zlist(aQK + 4, 20): a(l)
        if wait: a("s_waitcnt lgkmcnt(0)")
def hop_prep2(a):
    for lo in range(1, 4): a(f"v_xor_b32 v{MR+lo}, {2048*lo}, v{vG2}")
    a(f"""s_add_u32 s{sPF}, s{sPF}, {256*KB*CFG["adv"]}
    s_sub_u32 s{sT0}, s{sFM}, {F_M - F_KV + 3}
    v_lshl_add_u32 v{MR}, v{vLB}, 1, s{sPF}
    s_mov_b64 exec, 0x8888
    v_lshrrev_b32 v{MR}, 2, v{vHR}
    v_add_u32 v{MR}, s{sT0}, v{MR}
    s_mov_b64 exec, -1
    s_add_u32 s{sKX}, s{sKX}, {256*KB*CFG["adv"]}
    s_add_u32 s{sVX}, s{sVX}, {256*KB*CFG["adv"]}
    s_mov_b32 m0, s{sLKX}""")

def chain_loop(a, tag, stf, prof=False):
    q = LdsQ(a)
    ck = vT
    a.label(f"CH_TOP_{tag}")
    Q0, K0, Q1, K1 = aQK, aQK + 4, aQK + 8, aQK + 12
    acc = lambda mat, T: (aQK + 8 * T + 4 * mat) if mat < 2 else aV + 4 * T
    N = len(QKSEQ)
    pre = {i: [] for i in range(N)}
    post = {i: [] for i in range(N)}
    W1 = CFG["w1"]
    JOIN, B2 = CFG["join"], CFG["bar"]
    x = lambda l: ("x", l, None)
    PB = CFG["pub"]
    post[1] = [f"v_max3_u32 v{ck}, v{MA}, v{MA+1}, v{MA+2}"]
    post[3] = [f"v_max_u32 v{ck}, v{ck}, v{MA+3}"]
    pre[2] = [x(f"buffer_load_dwordx4 {vr(VX,4)}, v{vG}, {W}, s{sVX} offen sc1")]
    pre[W1] = [x("s_waitcnt vmcnt(3)")]
    post[W1] = [f"v_max3_u32 v{ck}, v{ck}, v{MA+4}, v{MA+5}"]
    post[W1+1] = [f"v_max3_u32 v{ck}, v{ck}, v{MA+6}, v{MA+7}"]
    post[W1+2] = [f"v_cmp_eq_u32 vcc, -1, v{ck}"]
    pre[7] = [x(f"buffer_load_dwordx4 {vr(VX+4,4)}, v{vG}, {W}, s{sVX} offen offset:1024 sc1")]
    pre[JOIN] += [x(f"s_cbranch_vccnz CH_RETRY_{tag}"), ("lab", f"CH_JOIN_{tag}", None)]
    if PB:
        pre[CFG["pa"]] += [x(PUBST)]

    sc = step_scalars()
    mr = {kk: ("lds", f"ds_read_b128 {vr(MA+4*kk,4)}, v{MR+(kk>>1)} offset:{1024*(kk&1)}", f"m{kk}") for kk in range(2, 8)}
    pre[JOIN] += [x(f"s_waitcnt vmcnt(3)"), x("s_barrier"), mr[2]]
    pre[JOIN+1] += [mr[4], mr[6]]
    pre[B2] += [x(f"s_waitcnt vmcnt({2 + PB})"), x("s_barrier"), mr[3]]
    pre[B2+1] += [mr[5], mr[7]]
    if prof: pre[B2+1] += [x(f"s_mov_b64 exec, 0xffff\nbuffer_store_dword v{X+8}, v{X+9}, {W}, s34 offen\ns_mov_b64 exec, -1")]
    rB, rC = ring_load(1), ring_load(2)
    for i, sl in enumerate(RBS): pre[sl].append(("lds", rB[i], f"rB{i}"))
    for n, kk in enumerate(KORD[:4]): pre[11 + 3 * n].append(("w", f"m{kk}", None))
    pre[22].append(("w", "m7", None))
    for i in range(8): pre[RB0 + 1 + i].insert(0, ("lds", rC[i], f"rC{i}"))
    for i in range(4): pre[RB0 - 1 + i].append(("w", f"rB{2*i+1}", None))
    vm = [f"buffer_load_dwordx4 v{vG}, {W}, s{sKX} offen sc1 lds",
          f"buffer_load_dwordx4 v{vG}, {W}, s{sKX} offen offset:1024 sc1 lds",
          f"buffer_load_dword v{MR}, {W}, 0 offen sc1 lds"]
    for i, l in zip((17, 21, 28), vm): pre[i].insert(0 if i < 25 else 1, x(l))
    pre[13].append(x(f"s_add_u32 m0, s{sKXO}, s{sLKX}"))
    pre[22].append(x(f"s_xor_b32 s{sKXO}, s{sKXO}, {8192 ^ 16384}"))
    pre[27].append(x(f"s_mov_b32 m0, {L_JUNK}"))
    for i, l in zip((18, 20, 29, 30, 31, 32, 33, 33, 34, 35, 35), sc): pre[i].append(x(l))
    assert len(sc) <= 11
    NY = len(vm) + PB + (1 if prof else 0)
    post[23].append(f"v_add_u32 v{vT}, s{sKXO}, v{vLB}")
    def fin2(b, dst): return [f"v_add_f32 v{b}, v{b}, v{b+2}", f"v_add_f32 v{b+1}, v{b+1}, v{b+3}", f"v_cvt_pk_bf16_f32 v{dst}, v{b}, v{b+1}"]
    f = fin2(Q0, Q0) + fin2(K0, Q0 + 1) + fin2(Q1, Q1)
    for i, l in enumerate(f[:8]): post[28 + i].append(l)
    pre[34].insert(0, ("lds", f"ds_write_b64 v{vXW}, {vr(Q0,2)}", "xw0"))
    tok = {}
    a("s_waitcnt vmcnt(3)")
    mark(a, prof, 's0')
    for i, key in enumerate(QKSEQ):
        a(smf(acc(key[0], key[1]), MA + 4 * key[2], wop(key)))
        for kind, l, name in pre[i]:
            if kind == "lds": tok[name] = q.op(l)
            elif kind == "w": q.wait(tok[l])
            elif kind == "lab": a.label(l)
            else: a(l)
        for l in post[i]: a(l)
        mark(a, prof, f"q{i}")
    vi = 0
    def vnext(n=1):
        nonlocal vi
        for _ in range(n):
            key = VSEQ[vi]; vi += 1
            a(smf(aV + 4*key[1], MA + 4*key[2], wop(key)))
    VL = CFG["vl"]
    vnext()
    q.wait(tok["rC7"])
    a(f[8])
    if CFG["v2"]: vnext()
    for l in fin2(K1, Q1 + 1): a(l)
    xw = q.op(f"ds_write_b64 v{vXW}, {vr(Q1,2)} offset:128")
    vnext(CFG["vw"])
    q.wait(xw)
    mark(a, prof, "xw")
    a("s_barrier")
    mark(a, prof, "b2")
    kxl = [f"ds_read_b128 {vr(RING+4*i,4)}, v{vT} offset:{1024*i}" for i in range(8)]
    todo = [("x", f"ds_read_b64_tr_b16 {vr(X+2*k,2)}, v{vXR} offset:{(k>>1)*256 + (k&1)*64}") for k in range(8)] + [("k", l) for l in kxl]
    xr, kx = [], []
    def dsn(n):
        for _ in range(n):
            if todo:
                kind, l = todo.pop(0)
                (xr if kind == "x" else kx).append(q.op(l))
    dsn(CFG["n0"])
    while vi < 12 - VL:
        vnext()
        dsn(2 if len(xr) < 8 else 1)
    mark(a, prof, 's2')
    SX, SM, m_, t_ = aQK, aQK + 8, aQK + 12, aQK + 14
    OACC, OA, ONES, LA = MA, MA + 16, MA + 16, X + 4
    sfill = [f"v_mov_b64 {vr(ONES,2)}, s[{sONE2}:{sONE2+1}]", f"v_mov_b64 {vr(ONES+2,2)}, s[{sONE2}:{sONE2+1}]"] + zlist(OACC, 16)
    vfin = fin2(aV, aV) + fin2(aV + 4, aV + 1)
    def sm(acc_, A, ks):
        c = "0" if ks == 0 else vr(acc_, 4)
        a(f"v_mfma_f32_16x16x32_bf16 {vr(acc_,4)}, {vr(A,4)}, {vr(X+4*ks,4)}, {c}")
    assert vi >= 6
    q.wait(xr[1])
    for ks in range(4):
        sm(SM, X + 4*ks, ks)
        dsn(2 if len(xr) < 8 else 1)
        q.wait(xr[2*ks+3] if ks < 3 else kx[0])
    fl = sfill + ([] if VL else vfin)
    mx = [f"v_max3_f32 v{m_}, v{SM+2}, v{SM+3}, v{SX}", f"v_max3_f32 v{m_}, v{m_}, v{SX+1}, v{SX+2}", f"v_max_f32 v{m_}, v{m_}, v{SX+3}"]
    for j in range(8):
        kt, ks = j >> 2, j & 3
        sm(SX + 4*kt, RING + 4*j, ks)
        n = 2
        if todo: dsn(1); n = 1
        if j < 7: q.wait(kx[j + 1])
        if j == 6: fl = mx + fl
        for _ in range(n):
            if fl: a(fl.pop(0))
    rD = ring_load(3)
    for _ in range(VL):
        vnext()
        if fl: a(fl.pop(0))
    for l in fl: a(l)
    mark(a, prof, 's3')
    a(f"v_max3_f32 v{m_}, v{m_}, v{SX+4}, v{SX+5}")
    a(f"v_max3_f32 v{t_}, v{m_}, v{SX+6}, v{SX+7}")
    a(f"v_max3_f32 v{m_}, v{m_}, v{SX+6}, v{SX+7}")
    a(f"v_permlane16_swap_b32 v{m_}, v{t_}")
    a(f"v_max_f32 v{t_+1}, v{m_}, v{t_}")
    a(f"v_max_f32 v{m_}, v{m_}, v{t_}")
    a(f"v_permlane32_swap_b32 v{m_}, v{t_+1}")
    a(f"v_max_f32 v{m_}, v{m_}, v{t_+1}")
    a(f"v_mul_f32 v{m_}, s{sC2}, v{m_}")
    def pf(r): a(f"v_pk_fma_f32 {vr(r,2)}, {vr(r,2)}, s[{sC2}:{sC2+1}], {vr(m_,2)} op_sel_hi:[1,1,0] neg_lo:[0,0,1] neg_hi:[0,0,1]")
    P, OAc = X, X + 8
    mark(a, prof, "mx")
    pf(SM + 2)
    for i in range(4): pf(SX + 2*i)
    if VL:
        a(f"""v_pk_add_f32 {vr(aV,2)}, {vr(aV,2)}, {vr(aV+2,2)}
        v_pk_add_f32 {vr(aV+4,2)}, {vr(aV+4,2)}, {vr(aV+6,2)}
        v_cvt_pk_bf16_f32 v{aV}, v{aV}, v{aV+1}
        v_cvt_pk_bf16_f32 v{aV+1}, v{aV+4}, v{aV+5}""")
    a(f"v_exp_f32 v{SM+2}, v{SM+2}")
    a(f"v_exp_f32 v{SM+3}, v{SM+3}")
    a(f"v_exp_f32 v{SX}, v{SX}")
    a(f"v_cvt_pk_bf16_f32 v{PM}, v{SM+2}, v{SM+3}")
    a(f"v_cvt_pk_bf16_f32 v{PM+3}, v{SM+2}, v{SM+3}")
    a(f"v_exp_f32 v{SX+1}, v{SX+1}")
    a(f"v_mfma_f32_16x16x16_bf16 {vr(LA,4)}, {vr(ONES,2)}, {vr(PM,2)}, 0")
    a(f"v_exp_f32 v{SX+2}, v{SX+2}")
    a(f"v_mfma_f32_16x16x16_bf16 {vr(OAc,4)}, {vr(aV,2)}, {vr(PM,2)}, 0")
    a(f"v_exp_f32 v{SX+3}, v{SX+3}")
    a(f"v_mfma_f32_16x16x16_bf16 {vr(OAc+4,4)}, {vr(aV,2)}, {vr(PM+2,2)}, 0")
    for i in range(4, 8): a(f"v_exp_f32 v{SX+i}, v{SX+i}")
    for i in range(4): a(f"v_cvt_pk_bf16_f32 v{P+i}, v{SX+2*i}, v{SX+2*i+1}")
    OAD = aQK + 4
    a(f"v_mfma_f32_16x16x32_bf16 {vr(LA,4)}, {vr(ONES,4)}, {vr(P,4)}, {vr(LA,4)}")
    a(f"s_waitcnt vmcnt({NY})")
    a(f"v_xor_b32 v{OAD+1}, 512, v{vOW}")
    a(f"v_xor_b32 v{OAD+2}, 1024, v{vOW}")
    a(f"v_mfma_f32_16x16x32_bf16 {vr(OAc,4)}, {vr(VX,4)}, {vr(P,4)}, {vr(OAc,4)}")
    a(f"v_xor_b32 v{OAD+3}, 1536, v{vOW}")
    HV = aQK + 8
    a(f"v_lshlrev_b32 v{HV+1}, 5, v{vHR}")
    a(f"v_mfma_f32_16x16x32_bf16 {vr(OAc+4,4)}, {vr(VX+4,4)}, {vr(P,4)}, {vr(OAc+4,4)}")
    mark(a, prof, "pv")
    DP = "quad_perm:[0,1,0,1] row_mask:0xf bank_mask:0xf"
    a(f"v_rcp_f32_dpp v{t_}, v{LA} {DP}")
    a(f"v_mov_b32 v{HV}, s{sS}")
    for i in range(8):
        a(f"v_mul_f32_dpp v{OAc+i}, v{OAc+i}, v{t_} {DP}")
        if i == 3:
            a(f"v_cvt_pk_bf16_f32 v{OA}, v{OAc}, v{OAc+1}")
            a(f"v_cvt_pk_bf16_f32 v{OA+1}, v{OAc+2}, v{OAc+3}")
    a(f"v_cvt_pk_bf16_f32 v{OA+2}, v{OAc+4}, v{OAc+5}")
    a(f"v_cvt_pk_bf16_f32 v{OA+3}, v{OAc+6}, v{OAc+7}")
    mark(a, prof, 's4')
    if CFG["e1"]: a(f"s_mov_b64 exec, s[{sXM}:{sXM+1}]")
    ow = q.op(f"ds_write_b128 v{vOW}, {vr(OA,4)}")
    if CFG["e1"]: a(f"s_mov_b64 exec, -1")
    PK = X + 4
    SEL = aQK
    def fin(p):
        b = OACC + 4 * p
        return [f"v_cvt_pk_bf16_f32 v{PK+2*p}, v{b}, v{b+1}", f"v_cvt_pk_bf16_f32 v{PK+2*p+1}, v{b+2}, v{b+3}",
                f"v_bfi_b32 v{PK+2*p}, 1, s{sTAG}, v{PK+2*p}"]
    def pst(p): return f"buffer_store_dwordx2 {vr(PK+2*p,2)}, v{vPS}, {W}, s{sINW+p} offen {stf}"
    def osm(i): a(smf(OACC + 4*OSEQ[i][1], OA + 4*OSEQ[i][2], wop(OSEQ[i])))
    late = rD + [f"ds_read_b128 {vr(SEL,4)}, v{vLB} offset:{L_SEL-L_MB}", f"ds_read_b128 {vr(SEL+4,4)}, v{vLB} offset:{L_SEL2-L_MB}",
                 f"ds_read_b32 v{HV+2}, v{vLB} offset:{L_FL-L_MB}"]
    rd = []
    for i in range(3):
        osm(i)
        if i >= 3 - CFG["re"]: rd.append(q.op(late.pop(0)))
    q.wait(ow)
    mark(a, prof, "ow")
    a("s_barrier")
    mark(a, prof, "b4")
    oa = [q.op(f"ds_read_b128 {vr(OA+4*k,4)}, v{OAD+k}") for k in range(1, 4)]
    osm(3)
    q.wait(oa[0])
    mark(a, prof, 's5')
    post = {8: fin(0)[0:2], 9: fin(0)[2:], 11: fin(1)[0:2], 12: fin(1)[2:], 14: fin(2)[0:2], 15: fin(2)[2:]}
    for i in range(4, 16):
        osm(i)
        n = 0
        while late and n < (1 if (i in post or i < 6 or i == 10) else 2):
            rd.append(q.op(late.pop(0))); n += 1
        if i < 6: q.wait(oa[i - 3])
        if i in (11, 12, 13, 14): q.wait(rd[2 * (i - 11) + 1])
        if i in (10, 13): a(pst((i - 10) // 3))
        if i == 15: a(f"s_cmp_lg_u32 s{sW}, 0")
        for l in post.get(i, []): a(l)
    assert not late
    a(pst(2))
    if CFG["gu"]:
        a(f"""s_mov_b64 exec, s[{sHM}:{sHM+1}]
        buffer_store_dword v{HV}, v{HV+1}, {W}, s{sHW} offen offset:1024 {stf}
        s_mov_b64 exec, -1""")
    for l in fin(3): a(l)
    a(pst(3))
    stamp(a, prof, 6)
    a(f"s_cbranch_scc1 CH_HK_{tag}")
    RA = X
    hint = lambda r, off=0: f"""s_mov_b64 exec, 0xff
    buffer_store_dword v{r}, v{HV+1}, {W}, s{sHW} offen offset:{off} {stf}
    s_mov_b64 exec, -1"""
    GU = CFG["gu"]
    def longwait(name):
        a(f"""s_waitcnt lgkmcnt(0)
        v_readfirstlane_b32 s{sT0}, v{HV+2}
        s_cmp_eq_u32 s{sT0}, s{sS}
        s_cbranch_scc1 {name}_L""")
        a.label(name)
        rare.append((name + "_L", name))
    rare = []
    setfl = f"""s_add_u32 s{sT0}, s{sS}, 1
    v_mov_b32 v{ck}, s{sT0}
    ds_write_b32 v{vLB}, v{ck} offset:{L_FL-L_MB}"""
    longwait(f"CH_LW0_{tag}")
    delay(a, CFG["d1"] - 28)
    def sweep(base, pace=0, hm=None):
        for m in range(8):
            a(f"buffer_load_dwordx4 {vr(base+4*m,4)}, v{vG}, {W}, s{sINB_R if m < 4 else sINB_R2} offen offset:{1024*(m&3)} sc1")
            if m == hm: a(hint(HV))
            if m in (1, 3, 5): delay(a, pace - (20 if m == hm else 0))
    def reduce_(base, younger, fail, par):
        RB = X + 12
        def fold(r):
            dp = lambda d, s_, ctl, bm: f"v_add_f32_dpp v{d}, v{s_}, v{s_} {ctl} row_mask:0xf bank_mask:{bm}"
            return [dp(r, r, "row_ror:8", "0x3"), dp(r, r + 1, "row_ror:8", "0xc"), dp(r + 2, r + 2, "row_ror:8", "0x3"), dp(r + 2, r + 3, "row_ror:8", "0xc"),
                    dp(r + 1, r, "row_ror:12", "0x5"), dp(r + 1, r + 2, "row_ror:4", "0xa")]
        f0, f1 = fold(RA), fold(RB)
        op3 = "0x80" if par else "0xfe"
        mark(a, prof, "h2")
        yo = lambda m: younger if m <= CFG["hm"] else 0
        a(f"s_waitcnt vmcnt({7 + yo(0)})")
        for m in range(8):
            mark(a, prof, f"d{m}")
            b = base + 4 * m
            acc_ = RA if m < 4 else RB
            a(f"v_mfma_f32_16x16x32_bf16 {vr(acc_,4)}, {vr(SEL + 4*((m >> 1) & 1),4)}, {vr(b,4)}, {'0' if m & 3 == 0 else vr(acc_,4)}")
            a(f"v_bitop3_b32 v{ck}, v{ck if m else b}, v{b}, v{b+2} bitop3:{op3}")
            if m == 5:
                for l in f0[:CFG["fe"]]: a(l)
            if m < 7: a(f"s_waitcnt vmcnt({6 - m + yo(m + 1)})")
        a(f"v_and_b32 v{ck}, 1, v{ck}")
        a(f"v_cmp_ne_u32 vcc, {par}, v{ck}")
        for l in f0[CFG["fe"]:] + f1[:5]: a(l)
        a(f"""s_cbranch_vccnz {fail}
        {f1[5]}
        v_cvt_pk_bf16_f32 v{RA}, v{RA+1}, v{RB+1}
        buffer_store_dword v{RA}, v{vMS}, {W}, s{sMR} offen {stf}""")
    DS = CFG["ds"]
    mark(a, prof, "h0")
    sweep(MA, CFG["pace"], CFG["hm"])
    mark(a, prof, "h1")
    a("s_barrier")
    hop_prep(a, CFG["w0p"])
    a(f"""s_cmp_lg_u32 s{sTAG}, 0
    s_cbranch_scc1 CH_ODD_{tag}""")
    reduce_(MA, 1, f"CH_RED2_{tag}", 0)
    if prof and CFG["light"]: a("s_memtime s[72:73]")
    a.label(f"CH_MST_{tag}")
    mark(a, prof, "ms")
    a(f"""s_cmp_eq_u32 s{sS}, 62
    s_cbranch_scc1 CH_LAST""")
    hop_prep(a, 7 - CFG["w0p"], wait=False)
    ld = f"""buffer_load_dwordx4 {vr(MA,4)}, v{vG}, {W}, s{sMR} offen sc1
    buffer_load_dwordx4 {vr(MA+4,4)}, v{vG}, {W}, s{sMR} offen offset:1024 sc1"""
    ld0, ld1 = ld.split("\n")
    assert not DS
    a.label(f"CH_POLL_{tag}")
    a("s_barrier")
    stamp(a, prof, 7)
    a(ld0); delay(a, CFG["ga"]); a(ld1)
    delay(a, CFG["g2"])
    a(f"buffer_load_dwordx4 v{vG}, {W}, s{sMR} offen sc1 lds")
    delay(a, CFG["g3"])
    a(f"buffer_load_dwordx4 v{vG}, {W}, s{sMR} offen offset:1024 sc1 lds")
    for l in zlist(aQK, 4): a(l)
    a("s_waitcnt lgkmcnt(0)")
    if not prof: delay(a, CFG["g4"])
    if prof:
        stamp(a, prof, 8)
        stamp(a, prof, 9)
        a(f"""s_waitcnt lgkmcnt(0)
        s_lshl_b32 s{sT0}, s{sS}, 6
        s_lshl_b32 s{sT1}, s{sW}, 12
        s_add_u32 s{sT0}, s{sT0}, s{sT1}
        v_mov_b32 v{X+8}, 0""")
        for k in range(NST):
            if not CFG["light"] or k in (1, 2, 6, 7, 8, 9): a(f"v_writelane_b32 v{X+8}, s{70+2*k}, {k}")
        a(f"v_writelane_b32 v{X+8}, s{sPROF}, {NST}")
        a(f"v_writelane_b32 v{X+8}, s{sCNT}, {NST+1}")
        a(f"""s_mov_b32 s{sPROF}, 0
        s_lshl_b32 s{sT1}, s{sH}, 14
        s_add_u32 s{sT0}, s{sT0}, s{sT1}
        s_add_u32 s34, s{sT0}, {WS_PROF - (L_MB >> 2)}
        v_lshrrev_b32 v{X+9}, 2, v{vLB}""")
    a(f"s_branch CH_TOP_{tag}")
    a.label(f"CH_ODD_{tag}")
    reduce_(MA, 1, f"CH_RED2_{tag}", 1)
    if prof and CFG["light"]: a("s_memtime s[72:73]")
    a(f"s_branch CH_MST_{tag}")
    a.label(f"CH_RED2_{tag}")
    sweep(MA)
    a(setfl)
    if CNT: a(f"s_bitset1_b64 s[70:71], s{sS}")
    a(f"""s_add_u32 s{sCNT}, s{sCNT}, 1
    s_cmp_gt_u32 s{sCNT}, {SPIN_MAX}
    s_cbranch_scc1 CH_DONE
    s_cmp_lg_u32 s{sTAG}, 0
    s_cbranch_scc1 CH_ODD2_{tag}""")
    for par in range(2):
        if par: a.label(f"CH_ODD2_{tag}")
        reduce_(MA, 0, f"CH_RED2_{tag}", par)
        if prof and CFG["light"]: a("s_memtime s[72:73]")
        delay(a, CFG["dr"])
        a(f"s_branch CH_MST_{tag}")
    a.label(f"CH_RETRY_{tag}")
    chk = f"""v_max3_u32 v{ck}, v{MA}, v{MA+1}, v{MA+2}
    v_max3_u32 v{ck}, v{ck}, v{MA+3}, v{MA+4}
    v_max3_u32 v{ck}, v{ck}, v{MA+5}, v{MA+6}
    v_max_u32 v{ck}, v{ck}, v{MA+7}
    v_cmp_eq_u32 vcc, -1, v{ck}"""
    a(f"""s_mov_b64 exec, vcc
    {ld}
    s_mov_b64 exec, -1""")
    if prof: a(f"s_add_u32 s{sPROF}, s{sPROF}, 1")
    a(f"""s_waitcnt vmcnt(4)
    ds_read_b128 {vr(MA+8,4)}, v{vG2}
    ds_read_b128 {vr(MA+12,4)}, v{vG2} offset:1024""")
    for l in zlist(aQK, 24): a(l)
    a(f"""s_mov_b64 exec, vcc
    s_waitcnt lgkmcnt(0)""")
    for i in range(0, 8, 2): a(f"v_mov_b64 {vr(MA+i,2)}, {vr(MA+8+i,2)}")
    a(f"""{chk}
    {ld}
    s_mov_b64 exec, -1
    s_cbranch_vccnz CH_RETRY2_{tag}""")
    a.label(f"CH_FIN_{tag}")
    a(setfl)
    if CNT: a(f"s_bitset1_b64 s[72:73], s{sS}")
    a(f"""ds_write_b128 v{vG2}, {vr(MA,4)}
    ds_write_b128 v{vG2}, {vr(MA+4,4)} offset:1024""")
    for key in QKSEQ[:JOIN + 1]: a(smf(acc(key[0], key[1]), MA + 4 * key[2], wop(key)))
    a(f"""s_waitcnt vmcnt(0) lgkmcnt(0)
    s_branch CH_JOIN_{tag}""")
    a.label(f"CH_RETRY2_{tag}")
    a(f"""s_mov_b64 exec, vcc
    {ld}
    s_add_u32 s{sCNT}, s{sCNT}, 1""")
    if prof: a(f"s_add_u32 s{sPROF}, s{sPROF}, 1")
    a(f"""s_waitcnt vmcnt(4)
    {chk}
    s_cmp_gt_u32 s{sCNT}, {SPIN_MAX}
    s_cbranch_scc1 CH_DONE
    s_mov_b64 exec, -1
    s_cbranch_vccz CH_FIN_{tag}
    s_branch CH_RETRY2_{tag}""")
    a.label(f"CH_HK_{tag}")
    a(f"""s_cmp_eq_u32 s{sS}, 62
    s_cbranch_scc1 CH_DONE""")
    hop_prep(a)
    a(f"""s_cmp_eq_u32 s{sW}, 1
    s_barrier
    s_cbranch_scc0 CH_HK23_{tag}""")
    NPR = CFG["pd"] + 1
    PRB = MA + 10
    delay(a, CFG["p0"])
    a("s_mov_b64 vcc, -1")
    for i in range(NPR - 1):
        a(f"buffer_load_dword v{PRB+i}, v{vHR}, {W}, s{sHR} offen sc1")
        delay(a, CFG["pg"] + CFG["pq"])
    a.label(f"CH_PROBE_{tag}")
    for i in range(NPR):
        a(f"""buffer_load_dword v{PRB+(i+NPR-1)%NPR}, v{vHR}, {W}, s{sHR} offen sc1
        s_waitcnt vmcnt({NPR-1})
        s_cbranch_vccz CH_POLL_{tag}
        v_cmp_ne_u32 vcc, s{sS}, v{PRB+i}""")
        if prof: a(f"s_add_u32 s{sPROF}, s{sPROF}, 0x100")
        delay(a, CFG["pg"] - (4 if prof else 0))
    a(f"""s_add_u32 s{sCNT}, s{sCNT}, 1
    s_cmp_gt_u32 s{sCNT}, {SPIN_MAX}
    s_cbranch_scc0 CH_PROBE_{tag}
    s_branch CH_DONE""")
    a.label(f"CH_HK23_{tag}")
    a(f"""s_waitcnt vmcnt(0)
    s_cmp_eq_u32 s{sW}, 2
    s_cbranch_scc1 CH_POLL_{tag}""")
    a(f"""v_mov_b32 v{X}, -1
    v_lshrrev_b32 v{X+1}, 2, v{vLB}
    s_waitcnt vmcnt(0)
    buffer_store_dword v{X}, v{X+1}, {W}, s{sPOM} offen {stf}""")
    if CFG["gate"]:
        a(f"""v_add_u32 v{ck}, {L_JUNK}, v{vHR}
        ds_read_b32 v{ck}, v{ck}
        s_waitcnt lgkmcnt(0)""")
        for j in range(NG): a(f"v_readlane_b32 s{sKV+j}, v{ck}, {4*j+3}")
        kv_min(a)
        a(f"s_max_u32 s{sRDY}, s{sRDY}, s{sKV}")
        kv_gate(a, f"CH_KV_{tag}", f"s_add_u32 s{sT1}, s{sS}, 3")
    a(f"s_branch CH_POLL_{tag}")
    for lab, back in rare:
        a.label(lab)
        delay(a, CFG["dl"])
        a(f"s_branch {back}")

def step_scalars():
    return f"""s_add_u32 s{sS}, s{sS}, 1
    s_and_b32 s{sTAG}, s{sS}, 1
    s_mov_b32 s{sCNT}, 0
    s_add_u32 s{sT2}, s{sS}, 3
    s_and_b32 s{sT2}, s{sT2}, 3
    s_lshl_b32 s{sT0}, s{sT2}, 13
    s_add_u32 s{sPOM}, s{sT0}, s{sFREE0}
    s_xor_b32 s{sT0}, s{sT0}, 16384
    s_add_u32 s{sMR}, s{sT0}, {WS_MBUF}
    s_lshl_b32 s{sKM}, s{sS}, 13
    s_add_u32 s{sKM}, s{sKM}, {WS_MH + 8192}""".split("\n")

def chain_role(a, prof=False):
    a.label("CHAIN")
    if prof: a("s_memrealtime s[92:93]")
    chain_startup(a)
    rt(a, 2, X + 2)
    a(f"""s_mov_b32 s34, {WS_PROF + 600*KB}
    v_mov_b32 v{X+9}, 0
    s_mov_b32 s70, 0
    s_mov_b32 s71, 0
    s_mov_b32 s72, 0
    s_mov_b32 s73, 0
    s_mov_b32 s{sCNT}, 0
    s_mov_b32 s{sPROF}, 0""")
    for l in ring_load(0): a(l)
    for l in zlist(aQK, 24): a(l)
    hop_prep2(a)
    rt(a, 4, X + 2)
    if prof: a("s_memrealtime s[94:95]")
    a(f"""s_waitcnt vmcnt(0) lgkmcnt(0)
    s_cmp_eq_u32 s{sMODE}, {CFG['fast']}
    s_cbranch_scc0 CH_TOP_slow""")
    chain_loop(a, "fast", "", prof is True)
    chain_loop(a, "slow", "sc1", prof is True)
    a.label("CH_LAST")
    a(PUBST)
    if prof:
        a(f"""s_memrealtime s[96:97]
        s_waitcnt lgkmcnt(0)
        v_mov_b32 v{MA}, s92
        v_mov_b32 v{MA+1}, s94
        v_mov_b32 v{MA+2}, s96
        v_mov_b32 v{MA+3}, 0
        s_lshl_b32 s{sT0}, s{sH}, 4
        s_add_u32 s{sT0}, s{sT0}, {WS_PROF + 512*KB}
        buffer_store_dwordx4 {vr(MA,4)}, v{MA+3}, {W}, s{sT0} offen""")
    rt(a, 7)
    a.label("CH_DONE")
    if MEAN or CNT:
        a(f"""v_mov_b32 v{MA+8}, s70
        v_mov_b32 v{MA+9}, s71
        v_mov_b32 v{MA+10}, s72
        v_mov_b32 v{MA+11}, s73
        v_mov_b32 v{MA+12}, 0
        s_lshl_b32 s{sT0}, s{sH}, 2
        s_add_u32 s{sT0}, s{sT0}, s{sW}
        s_lshl_b32 s{sT0}, s{sT0}, 4
        s_add_u32 s{sT0}, s{sT0}, {WS_PROF}
        buffer_store_dwordx4 {vr(MA+8,4)}, v{MA+12}, {W}, s{sT0} offen""")
    a("""s_waitcnt vmcnt(0)
    s_endpgm""")
```

```python
from asmlib import *
from layout import *
from chain import (S_BX, S_WQ, S_WK, S_WV, S_DBG, SRD_WS, SRD_T, sW, sROLE, W, set_srd, LdsQ, SPIN_MAX, rt, RT)

sH, sJ, sN, sT0, sT1, sT2, sCNT, sXO, sPA, sPB, sC, sFKV, sFO, sFM, sKXo, sMo, sOo, sL = range(48, 66)
sMASK = 66
T = f"s[{SRD_T}:{SRD_T+3}]"

vL16, vXS, vKS, vVS, vKM, vVM, vOS, vZ = range(8)
vA = 8
ACC, XR, TMP = 16, 64, 96
L_PEND = 65536
L_MT = L_PEND + 3 * 24576
MP = 1024 + 32
L_KMF = L_MT + 8 * MP
vMW = TMP + 24

def join_init(a, t0, t1, val="1"):
    a(f"""v_mov_b32 v{t0}, {val}
    v_mov_b32 v{t1}, 8
    s_mov_b64 exec, 1
    global_atomic_add v{t1}, v{t0}, s[{S_DBG}:{S_DBG+1}]
    s_mov_b64 exec, -1""")

INIT_TARGET = 128

def wait_dbg(a, name, off, target, t0, t1, sC_, sT_, fail, mask=False):
    a(f"""s_mov_b32 s{sC_}, 0
    v_mov_b32 v{t0}, {off}""")
    a.label(name)
    a(f"""global_load_dword v{t1}, v{t0}, s[{S_DBG}:{S_DBG+1}] sc1
    s_add_u32 s{sC_}, s{sC_}, 1
    s_cmp_gt_u32 s{sC_}, {SPIN_MAX}
    s_cbranch_scc1 {fail}
    s_waitcnt vmcnt(0)
    v_readfirstlane_b32 s{sT_}, v{t1}""")
    if mask: a(f"s_and_b32 s{sT_}, s{sT_}, 0xffff")
    a(f"""s_cmp_ge_u32 s{sT_}, {target}
    s_cbranch_scc1 {name}_OK
    s_sleep 4
    s_branch {name}""")
    a.label(name + "_OK")

def stage_consts(a, vD, vTR, lane, t0, t1, t2, rowshift):
    a(f"""v_lshrrev_b32 v{t0}, 4, v{lane}
    v_lshlrev_b32 v{t1}, 2, v{t0}
    v_and_b32 v{t2}, 15, v{lane}
    v_xor_b32 v{t1}, v{t1}, v{t2}
    v_lshlrev_b32 v{t1}, 4, v{t1}
    s_lshl_b32 s{sT0}, s{sW}, 2
    v_add_u32 v{t2}, s{sT0}, v{t0}
    v_lshl_add_u32 v{vD}, v{t2}, {rowshift}, v{t1}
    v_bfe_u32 v{t1}, v{lane}, 2, 2
    v_and_b32 v{t2}, 1, v{t0}
    v_lshl_add_u32 v{t2}, v{t1}, 1, v{t2}
    v_lshlrev_b32 v{t2}, 5, v{t2}
    v_lshl_add_u32 v{t2}, v{t1}, 8, v{t2}
    v_and_b32 v{t1}, 3, v{lane}
    v_lshl_add_u32 v{t2}, v{t1}, 3, v{t2}
    v_lshrrev_b32 v{t0}, 1, v{t0}
    v_lshl_add_u32 v{vTR}, v{t0}, 11, v{t2}""")

def x_consts(a, lane, t0, t1):
    a(f"""s_and_b32 s{sT0}, s{sW}, 1
    s_lshl_b32 s{sT0}, s{sT0}, 3
    v_xor_b32 v{vXS}, s{sT0}, v{lane}
    v_lshlrev_b32 v{vXS}, 4, v{vXS}
    v_and_b32 v{t0}, 15, v{lane}
    v_lshrrev_b32 v{t1}, 5, v{lane}
    v_xor_b32 v{t0}, v{t0}, v{t1}
    v_lshlrev_b32 v{t0}, 4, v{t0}
    v_and_b32 v{t1}, 31, v{lane}
    v_lshl_add_u32 v{vA}, v{t1}, 10, v{t0}""")
    for v in range(1, 8): a(f"v_xor_b32 v{vA+v}, {32*v}, v{vA}")

def x_issue(a, sRow0, rowstride, sLds, tmp):
    for r in range(8):
        a(f"""v_xor_b32 v{tmp+(r&1)}, {16*r}, v{vXS}
        s_add_u32 m0, s{sLds}, {1024*r}
        s_add_u32 s{sT1}, s{sRow0}, {rowstride*r}
        buffer_load_dwordx4 v{tmp+(r&1)}, {T}, s{sT1} offen lds""")

def wf(mat, ks): return wr(128 + (mat * 32 + ks) * 4, 4)

def flag_store(a, name, sOff, sVal, t0):
    a(f"""s_cmp_lg_u32 s{sW}, 0
    s_cbranch_scc1 {name}
    v_mov_b32 v{t0}, s{sVal}
    s_mov_b64 exec, 1
    buffer_store_dword v{t0}, v{vZ}, {W}, s{sOff} offen sc1
    s_mov_b64 exec, -1""")
    a.label(name)

def phase_a(a, tag):
    q = LdsQ(a)
    a(f"""s_waitcnt vmcnt(0)
    s_barrier
    s_cmp_ge_u32 s{sN}, {64 // NG - 1}
    s_cbranch_scc1 QA_NOX_{tag}
    s_add_u32 s{sXO}, s{sXO}, {NG * 32 * 1024}
    s_xor_b32 s{sL}, s{sL}, 32768""")
    x_issue(a, sXO, 1024, sL, TMP)
    a.label(f"QA_NOX_{tag}")
    rd = lambda ks: f"ds_read_b128 {vr(XR + 4*(ks & 7), 4)}, v{vA + (ks & 7)} offset:{256 * (ks >> 3)}"
    tk = {}
    for ks in range(6): tk[ks] = q.op(rd(ks))
    for ks in range(32):
        q.wait(tk[ks])
        x = vr(XR + 4*(ks & 7), 4)
        for mat in range(3):
            acc = vr(ACC + 16*mat, 16)
            c = "0" if ks == 0 else acc
            if mat < 2: a(f"v_mfma_f32_32x32x16_bf16 {acc}, {wf(mat, ks)}, {x}, {c}")
            else: a(f"v_mfma_f32_32x32x16_bf16 {acc}, {x}, {wf(mat, ks)}, {c}")
            if mat == 0 and ks + 6 < 32: tk[ks + 6] = q.op(rd(ks + 6))
    for v in range(8): a(f"v_xor_b32 v{vA+v}, 0x8000, v{vA+v}")
    a(f"v_add_u32 v{XR}, s{sPA}, v{vL16}")
    ORD = (0, 1, 4, 5, 2, 3, 6, 7)
    for mat in range(3):
        for i in range(8):
            d = ORD[i] if mat == 2 else i
            a(f"v_cvt_pk_bf16_f32 v{TMP + 8*mat + i}, v{ACC + 16*mat + 2*d}, v{ACC + 16*mat + 2*d + 1}")
        for h in range(2):
            if mat == 1: a(f"buffer_store_dwordx4 {vr(TMP+8+4*h,4)}, v{vKS}, {W}, s{sKXo} offen offset:{512*h} sc1")
            if mat == 2: a(f"buffer_store_dwordx4 {vr(TMP+16+4*h,4)}, v{vVS}, {W}, s{sKXo} offen offset:{512*h} sc1")
            a(f"ds_write_b128 v{XR}, {vr(TMP+8*mat+4*h,4)} offset:{8192*mat + 1024*h}")
    a(f"""s_add_u32 s{sKXo}, s{sKXo}, {NG * 256 * KB}
    s_add_u32 s{sPA}, s{sPA}, 24576
    s_cmp_ge_u32 s{sPA}, {L_PEND + 3 * 24576}
    s_cbranch_scc0 QA_PA_{tag}
    s_sub_u32 s{sPA}, s{sPA}, {3 * 24576}""")
    a.label(f"QA_PA_{tag}")
    a(f"""s_add_u32 s{sN}, s{sN}, 1
    s_waitcnt vmcnt(0) lgkmcnt(0)
    s_barrier""")
    flag_store(a, f"QA_FA_{tag}", sFKV, sN, TMP)

def phase_b(a, tag):
    SX, SM, O = ACC, ACC + 16, ACC + 32
    q = LdsQ(a)
    a(f"""s_lshl_b32 s{sT0}, s{sW}, 11
    s_sub_u32 s{sT0}, s{sPB}, s{sT0}
    v_add_u32 v{O}, s{sT0}, v{vL16}
    v_add_u32 v{O+1}, s{sPB}, v{vL16}""")
    QF, KF = XR, TMP
    tk = []
    for k in range(8):
        q.op(f"ds_read_b128 {vr(QF+4*k,4)}, v{O} offset:{1024*k}")
        tk.append(q.op(f"ds_read_b128 {vr(KF+4*k,4)}, v{O} offset:{8192 + 1024*k}"))
        if k == 5:
            for kk in range(3):
                q.wait(tk[kk])
                a(f"v_mfma_f32_32x32x16_bf16 {vr(SX,16)}, {vr(KF+4*kk,4)}, {vr(QF+4*kk,4)}, {'0' if kk == 0 else vr(SX,16)}")
    for kk in range(3, 8):
        q.wait(tk[kk])
        a(f"v_mfma_f32_32x32x16_bf16 {vr(SX,16)}, {vr(KF+4*kk,4)}, {vr(QF+4*kk,4)}, {vr(SX,16)}")
    KA, VA = SM, O
    VAD = TMP + 28
    a(f"v_mov_b32 v{VAD}, v{O+1}")
    a(f"v_mov_b32 v{VAD+1}, 0xff800000")
    for r in range(16): a(f"v_cndmask_b32 v{SX+r}, v{VAD+1}, v{SX+r}, s[{sMASK+2*r}:{sMASK+2*r+1}]")
    m_, t_ = VAD + 2, VAD + 3
    a(f"v_max3_f32 v{m_}, v{SX}, v{SX+1}, v{SX+2}")
    for i in range(3, 15, 2): a(f"v_max3_f32 v{m_}, v{m_}, v{SX+i}, v{SX+i+1}")
    a(f"v_max_f32 v{m_}, v{m_}, v{SX+15}")
    a(f"""v_bfe_u32 v{vMW}, v{vL16}, 6, 2
    v_bfe_u32 v{t_}, v{vL16}, 4, 1
    v_lshl_add_u32 v{vMW}, v{vMW}, 1, v{t_}
    v_mul_u32_u24 v{vMW}, {MP}, v{vMW}
    v_bfe_u32 v{t_}, v{vL16}, 9, 1
    v_lshl_add_u32 v{vMW}, v{t_}, 6, v{vMW}
    v_bfe_u32 v{t_}, v{vL16}, 8, 1
    v_lshl_add_u32 v{vMW}, v{t_}, 3, v{vMW}
    v_and_b32 v{t_}, 32, v{vL16}
    s_lshl_b32 s{sT0}, s{sW}, 8
    s_add_u32 s{sT0}, s{sT0}, {L_MT}
    v_add3_u32 v{vMW}, v{vMW}, v{t_}, s{sT0}""")
    a(f"s_mov_b32 s{sCNT}, 0")
    a.label(f"QA_W1_{tag}")
    a(f"""buffer_load_dwordx4 {vr(KF,4)}, v{vL16}, {W}, s{sMo} offen sc1
    buffer_load_dwordx4 {vr(KF+4,4)}, v{vL16}, {W}, s{sMo} offen offset:1024 sc1
    s_add_u32 s{sCNT}, s{sCNT}, 1
    s_cmp_gt_u32 s{sCNT}, {SPIN_MAX}
    s_cbranch_scc1 EXIT
    s_waitcnt vmcnt(0)
    v_max3_u32 v{t_}, v{KF}, v{KF+1}, v{KF+2}
    v_max3_u32 v{t_}, v{t_}, v{KF+3}, v{KF+4}
    v_max3_u32 v{t_}, v{t_}, v{KF+5}, v{KF+6}
    v_max_u32 v{t_}, v{t_}, v{KF+7}
    v_cmp_eq_u32 vcc, -1, v{t_}
    s_cbranch_vccz QA_W2_{tag}
    s_sleep 2
    s_branch QA_W1_{tag}""")
    a.label(f"QA_W2_{tag}")
    a(f"""s_mov_b32 s{sT0}, 0x05040100
    s_mov_b32 s{sT1}, 0x07060302""")
    for k in range(2):
        for hh in range(2):
            for c in range(2): a(f"v_perm_b32 v{KF+8+4*k+2*hh+c}, v{KF+4*k+2*c+1}, v{KF+4*k+2*c}, s{sT0+hh}")
            a(f"ds_write_b64 v{vMW}, {vr(KF+8+4*k+2*hh,2)} offset:{16*k + 128*hh}")
    a(f"""s_waitcnt lgkmcnt(0)
    s_barrier""")
    q = LdsQ(a)
    rd = lambda ks: f"ds_read_b128 {vr(KF + 4*(ks % 6), 4)}, v{vKM} offset:{32*ks}"
    tk = {}
    for ks in range(4): tk[ks] = q.op(rd(ks))
    for ks in range(32):
        q.wait(tk[ks])
        x = vr(KF + 4*(ks % 6), 4)
        a(f"v_mfma_f32_32x32x16_bf16 {vr(KA,16)}, {wf(1, ks)}, {x}, {'0' if ks == 0 else vr(KA,16)}")
        if ks + 4 < 32: tk[ks + 4] = q.op(rd(ks + 4))
        a(f"v_mfma_f32_32x32x16_bf16 {vr(VA,16)}, {x}, {wf(2, ks)}, {'0' if ks == 0 else vr(VA,16)}")
    for i in range(8): a(f"v_cvt_pk_bf16_f32 v{KF+i}, v{KA+2*i}, v{KA+2*i+1}")
    VM = TMP + 26
    a(f"""ds_write_b128 v{vVM}, {vr(KF,4)} 
    ds_write_b128 v{vVM}, {vr(KF+4,4)} offset:1024
    v_cvt_pk_bf16_f32 v{VM}, v{VA}, v{VA+1}
    v_cvt_pk_bf16_f32 v{VM+1}, v{VA+2}, v{VA+3}
    v_add_u32 v{t_}, {L_KMF}, v{vL16}
    s_waitcnt lgkmcnt(0)
    s_barrier""")
    q = LdsQ(a)
    tk = [q.op(f"ds_read_b128 {vr(KF+4*k,4)}, v{t_} offset:{1024*k}") for k in range(6)]
    tk += [q.op(f"ds_read_b128 {vr(O+4*k,4)}, v{t_} offset:{1024*(6+k)}") for k in range(2)]
    for k in range(8):
        q.wait(tk[k])
        a(f"v_mfma_f32_32x32x16_bf16 {vr(SM,16)}, {vr(KF+4*k if k < 6 else O+4*(k-6),4)}, {vr(QF+4*k,4)}, {'0' if k == 0 else vr(SM,16)}")
    VF = XR
    q.op(f"ds_read_b128 {vr(VF,4)}, v{VAD} offset:16384")
    tv = q.op(f"ds_read_b128 {vr(VF+4,4)}, v{VAD} offset:17408")
    a(f"""v_max3_f32 v{m_}, v{m_}, v{SM}, v{SM+1}
    v_max3_f32 v{m_}, v{m_}, v{SM+2}, v{SM+3}
    v_mov_b32 v{t_}, v{m_}
    v_permlane32_swap_b32 v{m_}, v{t_}
    v_max_f32 v{m_}, v{m_}, v{t_}
    v_mul_f32 v{m_}, s{sC}, v{m_}""")
    for r in range(20): a(f"v_fma_f32 v{SX+r}, v{SX+r}, s{sC}, -v{m_}")
    for r in range(20): a(f"v_exp_f32 v{SX+r}, v{SX+r}")
    P = TMP
    ORD = (0, 1, 4, 5, 2, 3, 6, 7)
    for i in range(8): a(f"v_cvt_pk_bf16_f32 v{P+i}, v{SX+2*ORD[i]}, v{SX+2*ORD[i]+1}")
    a(f"""v_cvt_pk_bf16_f32 v{P+8}, v{SM}, v{SM+1}
    v_cvt_pk_bf16_f32 v{P+9}, v{SM+2}, v{SM+3}
    v_mov_b64 {vr(P+10,2)}, 0
    v_mov_b64 {vr(VF+8,2)}, {vr(VM,2)}
    v_mov_b64 {vr(VF+10,2)}, 0""")
    L = SM + 4
    a(f"v_add_f32 v{L}, v{SX}, v{SX+1}")
    for r in range(2, 20): a(f"v_add_f32 v{L}, v{L}, v{SX+r}")
    q.wait(tv)
    for k in range(3):
        a(f"v_mfma_f32_32x32x16_bf16 {vr(O,16)}, {vr(VF+4*k,4)}, {vr(P+4*k,4)}, {'0' if k == 0 else vr(O,16)}")
    a(f"""v_mov_b32 v{L+1}, v{L}
    v_permlane32_swap_b32 v{L}, v{L+1}
    v_add_f32 v{L}, v{L}, v{L+1}
    v_rcp_f32 v{L}, v{L}""")
    for r in range(16): a(f"v_mul_f32 v{O+r}, v{O+r}, v{L}")
    for i in range(8): a(f"v_cvt_pk_bf16_f32 v{SX+i}, v{O+2*i}, v{O+2*i+1}")
    a(f"""buffer_store_dwordx4 {vr(SX,4)}, v{vOS}, {W}, s{sOo} offen sc1
    buffer_store_dwordx4 {vr(SX+4,4)}, v{vOS}, {W}, s{sOo} offen offset:512 sc1
    s_add_u32 s{sOo}, s{sOo}, {NG * 256 * KB}
    s_add_u32 s{sMo}, s{sMo}, {NG * 8192}
    s_add_u32 s{sPB}, s{sPB}, 24576
    s_cmp_ge_u32 s{sPB}, {L_PEND + 3 * 24576}
    s_cbranch_scc0 QA_PB_{tag}
    s_sub_u32 s{sPB}, s{sPB}, {3 * 24576}""")
    a.label(f"QA_PB_{tag}")
    a(f"""s_add_u32 s{sT2}, s{sT2}, 1
    s_waitcnt vmcnt(0)
    s_barrier""")
    flag_store(a, f"QA_FB_{tag}", sFO, sT2, TMP)

def qa_role(a):
    a.label("QA")
    lane, vD, vTR, t0, t1, t2, vTA = 16, 17, 18, 19, 20, 21, 22
    a(f"""s_sub_u32 s{sT0}, s{sROLE}, 32
    s_lshr_b32 s{sH}, s{sT0}, 2
    s_and_b32 s{sJ}, s{sT0}, 3
    v_and_b32 v{lane}, 63, v0
    v_mov_b32 v{vZ}, 0
    s_lshl_b32 s{sFM}, s{sH}, 7
    s_lshl_b32 s{sT0}, s{sJ}, 2
    s_add_u32 s{sFKV}, s{sFM}, s{sT0}
    s_add_u32 s{sFKV}, s{sFKV}, {WS_FLAGS + F_KV}
    s_add_u32 s{sFM}, s{sFM}, {WS_FLAGS + F_M}
    s_lshl_b32 s{sFO}, s{sJ}, 7
    s_lshl_b32 s{sT0}, s{sH}, 2
    s_add_u32 s{sFO}, s{sFO}, s{sT0}
    s_add_u32 s{sFO}, s{sFO}, {WS_FLAGS + F_O}
    """)
    stage_consts(a, vD, vTR, lane, t0, t1, t2, 13)
    a(f"""s_lshl_b32 s{sT0}, s{sH}, 8
    v_add_u32 v{vD}, s{sT0}, v{vD}
    s_lshl_b32 s{sT0}, s{sW}, 6
    v_xor_b32 v{vTR}, s{sT0}, v{vTR}
    v_add_u32 v{vTA}, 0x10000, v{vTR}
    s_lshl_b32 s{sT2}, s{sW}, 10""")
    order = [1, 2, 0]
    ptrs = [S_WQ, S_WK, S_WV]
    def issue(u):
        if u & 3 == 0: set_srd(a, SRD_T, ptrs[order[u >> 2]], 4 * MB)
        for i in range(8):
            a(f"""s_add_u32 m0, s{sT2}, {(u & 3) * 32768 + i * 4096}
            s_mov_b32 s{sT0}, {(128 * (u & 3) + 16 * i) * 8192}
            buffer_load_dwordx4 v{vD}, {T}, s{sT0} offen lds""")
    for u in range(4): issue(u)
    x_consts(a, lane, t0, t1)
    a(f"""v_lshlrev_b32 v{vL16}, 4, v{lane}
    v_and_b32 v{t0}, 15, v{lane}
    v_lshrrev_b32 v{t1}, 5, v{lane}
    v_lshlrev_b32 v{t0}, 4, v{t0}
    v_lshl_add_u32 v{t0}, v{t1}, 8, v{t0}
    v_bfe_u32 v{t2}, v{lane}, 4, 1
    v_lshl_add_u32 v{vKS}, v{t2}, 12, v{t0}
    v_add_u32 v{vKS}, s{sT2}, v{vKS}
    v_lshl_add_u32 v{vVS}, v{t2}, 10, v{t0}
    s_lshl_b32 s{sT0}, s{sW}, 11
    s_add_u32 s{sPA}, s{sT0}, {L_PEND}
    s_mov_b32 s{sPB}, s{sPA}
    s_add_u32 s{sT0}, s{sT0}, {WS_VX - WS_KX}
    v_add_u32 v{vVS}, s{sT0}, v{vVS}
    """)
    a(f"""v_and_b32 v{t0}, 7, v{lane}
    v_mul_u32_u24 v{t0}, {MP}, v{t0}
    v_lshl_add_u32 v{vKM}, v{t1}, 4, v{t0}
    v_add_u32 v{vKM}, {L_MT}, v{vKM}
    s_lshl_b32 s{sT0}, s{sW}, 11
    s_add_u32 s{sT0}, s{sT0}, {L_KMF}
    v_add_u32 v{vVM}, s{sT0}, v{vL16}
    v_and_b32 v{t0}, 7, v{lane}
    v_lshlrev_b32 v{t0}, 4, v{t0}
    v_lshl_add_u32 v{t0}, v{t1}, 8, v{t0}
    v_bfe_u32 v{vOS}, v{lane}, 3, 2
    v_lshl_add_u32 v{vOS}, v{vOS}, 16, v{t0}
    s_lshr_b32 s{sT0}, s{sW}, 1
    s_lshl_b32 s{sT0}, s{sT0}, 10
    s_and_b32 s{sT1}, s{sW}, 1
    s_lshl_b32 s{sT1}, s{sT1}, 7
    s_add_u32 s{sT0}, s{sT0}, s{sT1}
    v_add_u32 v{vOS}, s{sT0}, v{vOS}
    v_and_b32 v{t0}, 31, v{lane}
    v_lshlrev_b32 v{t1}, 2, v{t1}
    v_sub_u32 v{t0}, v{t0}, v{t1}""")
    for r in range(16): a(f"v_cmp_le_i32 s[{sMASK+2*r}:{sMASK+2*r+1}], {8*(r>>2) + (r&3)}, v{t0}")
    a(f"""s_lshl_b32 s{sT0}, s{sJ}, 5
    s_add_u32 s{sT0}, s{sT0}, s{sH}
    s_lshl_b32 s{sKXo}, s{sT0}, 13
    s_add_u32 s{sKXo}, s{sKXo}, {WS_KX}
    s_lshl_b32 s{sMo}, s{sJ}, 2
    s_add_u32 s{sMo}, s{sMo}, s{sW}
    s_lshl_b32 s{sMo}, s{sMo}, 11
    s_add_u32 s{sMo}, s{sMo}, {WS_MH}
    s_lshl_b32 s{sOo}, s{sJ}, 18
    s_lshl_b32 s{sT0}, s{sH}, 11
    s_add_u32 s{sOo}, s{sOo}, s{sT0}
    s_add_u32 s{sOo}, s{sOo}, {WS_O}
    s_mov_b32 s{sC}, 0x3e0293ee
    s_lshl_b32 s{sL}, s{sW}, 13
    s_lshl_b32 s{sXO}, s{sJ}, 15
    s_add_u32 s{sXO}, s{sXO}, s{sL}
    s_mov_b32 s{sN}, 0""")
    for u in range(12):
        a(f"s_waitcnt vmcnt({8 * min(3, 12 - u)})")
        a("s_barrier")
        for i in range(8):
            d = 128 + (order[u >> 2] * 32 + 8 * (u & 3) + i) * 4
            for m in range(2):
                a(f"ds_read_b64_tr_b16 {wr(d + 2*m, 2)}, v{vTA if u & 2 else vTR} offset:{(u & 1)*32768 + i*4096 + m*1024}")
        a("s_waitcnt lgkmcnt(0)")
        a("s_barrier")
        if u == 7: a(f"global_load_dword v{t2}, v{vZ}, s[{S_DBG}:{S_DBG+1}] offset:{D_INIT} sc1")
        if u + 4 < 12: issue(u + 4)
        if u == 8:
            set_srd(a, SRD_T, S_BX, 2 * MB)
            x_issue(a, sXO, 1024, sL, t0)
    a(f"""v_readfirstlane_b32 s{sT0}, v{t2}
    s_cmp_ge_u32 s{sT0}, {INIT_TARGET}
    s_cbranch_scc1 QA_INIT_OK""")
    wait_dbg(a, "QA_INIT", D_INIT, INIT_TARGET, t0, t1, sCNT, sT0, "EXIT")
    rt(a, 3)
    a(f"s_mov_b32 s{sT2}, 0")
    a.label("QA_LOOP")
    a(f"""s_cmp_ge_u32 s{sN}, {64 // NG}
    s_cbranch_scc1 QA_B""")
    phase_a(a, "l")
    if RT["on"]:
        a(f"s_cmp_lg_u32 s{sN}, 1\ns_cbranch_scc1 QA_RT")
        rt(a, 4)
        a.label("QA_RT")
    a(f"""s_cmp_lt_u32 s{sN}, 3
    s_cbranch_scc1 QA_LOOP""")
    a.label("QA_B")
    phase_b(a, "l")
    a(f"""s_cmp_lt_u32 s{sT2}, {64 // NG}
    s_cbranch_scc1 QA_LOOP""")
    rt(a, 7)
    a("""s_waitcnt vmcnt(0)
    s_endpgm""")
```

```python
import sys
from asmlib import *
from layout import *
import chain
from chain import *
import qa, op, pa

KNAME = "concat_heads__spectral_gfnet__memory_aug_recurrent_mem_tr__prompt_kernel"

def prologue(a):
    a(f"""
    s_cmp_ge_u32 s2, 256
    s_cbranch_scc1 EXIT
    s_load_dwordx16 s[8:23], s[0:1], 0
    s_load_dwordx8 s[24:31], s[0:1], 64
    s_load_dwordx2 s[32:33], s[0:1], 96
    v_lshrrev_b32 v1, 6, v0
    s_getreg_b32 s{sXCC}, hwreg(HW_REG_XCC_ID, 0, 4)
    v_readfirstlane_b32 s{sW}, v1
    s_waitcnt lgkmcnt(0)
    """)
    set_srd(a, SRD_WS, S_WS, WS_END)
    if os.environ.get("FAKEX"):
        a(f"""s_mul_hi_u32 s48, s2, {(1 << 32) // 11 + 1}
        s_mul_i32 s48, s48, 11
        s_sub_u32 s{sXCC}, s2, s48""")
    a(f"""s_sub_u32 s48, s{sXCC}, 5
    s_cmp_ge_u32 s48, 2
    s_cbranch_scc1 NOWARM
    s_bfe_u32 s49, s2, 0x50003
    s_lshl_b32 s49, s49, 1
    s_add_u32 s48, s48, s49
    s_lshl_b32 s48, s48, 15
    v_lshlrev_b32 v8, 7, v0
    v_add_u32 v8, s48, v8
    v_add_u32 v9, {2 * MB}, v8""")
    n = 0
    for ptr in (S_WK, S_WV, S_WQ):
        set_srd(a, SRD_T, ptr, 4 * MB)
        for v in (8, 9):
            a(f"buffer_load_dword v{20 + n}, v{v}, s[{SRD_T}:{SRD_T+3}], 0 offen"); n += 1
    a.label("NOWARM")
    a(f"""
    v_mov_b32 v2, 163836
    s_cmp_lg_u32 s{sW}, 0
    s_cbranch_scc1 ROLE_WAIT
    s_mov_b64 exec, 1
    v_mov_b32 v3, 1
    s_min_u32 s48, s{sXCC}, 8
    s_lshl_b32 s49, s48, 2
    s_add_u32 s49, s49, {D_TICK - 4}
    s_cmp_eq_u32 s48, 0
    s_cselect_b32 s49, 0, s49
    v_mov_b32 v4, s49
    global_atomic_add v6, v4, v3, s[{S_DBG}:{S_DBG+1}] sc0
    s_lshl_b32 s{sROLE}, s48, 5
    s_waitcnt vmcnt(0)
    v_readfirstlane_b32 s49, v6
    s_add_u32 s{sROLE}, s{sROLE}, s49
    s_cmp_lt_u32 s49, 32
    s_cselect_b32 s49, s48, 8
    s_cmp_lt_u32 s49, 8
    s_cbranch_scc1 ROLE_SET
    v_mov_b32 v4, {D_OVF}
    global_atomic_add v6, v4, v3, s[{S_DBG}:{S_DBG+1}] sc0
    s_waitcnt vmcnt(0)
    v_readfirstlane_b32 s50, v6
    s_mov_b64 exec, -1
    """)
    all_arrived(a, "ROLE_ALL", 4, 6, 51, 52, "ROLE_NONE")
    a("s_mov_b32 s53, 0")
    a.label("ROLE_SCAN")
    a(f"""v_readlane_b32 s48, v6, s53
    s_min_u32 s48, s48, 32
    s_sub_u32 s49, 32, s48
    s_lshl_b32 s{sROLE}, s53, 5
    s_add_u32 s{sROLE}, s{sROLE}, s48
    s_add_u32 s{sROLE}, s{sROLE}, s50
    s_cmp_lt_u32 s50, s49
    s_cbranch_scc1 ROLE_SET
    s_sub_u32 s50, s50, s49
    s_add_u32 s53, s53, 1
    s_cmp_lt_u32 s53, 8
    s_cbranch_scc1 ROLE_SCAN
    """)
    a.label("ROLE_NONE")
    a(f"s_mov_b32 s{sROLE}, 256")
    a.label("ROLE_SET")
    a(f"""
    v_mov_b32 v3, s{sROLE}
    ds_write_b32 v2, v3
    s_waitcnt lgkmcnt(0)
    s_mov_b64 exec, -1
    """)
    a.label("ROLE_WAIT")
    a(f"""
    s_waitcnt vmcnt(0)
    s_barrier
    ds_read_b32 v3, v2
    s_waitcnt lgkmcnt(0)
    v_readfirstlane_b32 s{sROLE}, v3
    s_barrier
    """)

def build(prof=False, roles=("chain",)):
    a = Asm()
    RT["on"] = bool(prof)
    if prof: a("s_memrealtime s[4:5]")
    prologue(a)
    if prof:
        a(f"""v_mov_b32 v10, s4
        s_lshl_b32 s2, s{sROLE}, 6
        s_add_u32 s2, s2, {WS_PROF + 640*KB}
        v_mov_b32 v11, 0
        buffer_store_dword v10, v11, {W}, s2 offen""")
        if os.environ.get("RTDBG"):
            a(f"""s_cmp_lg_u32 s{sROLE}, 0
            s_cbranch_scc1 RTD0
            v_and_b32 v10, 0xffffff, v10
            global_store_dword v11, v10, s[{S_DBG}:{S_DBG+1}]""")
            a.label("RTD0")
        rt(a, 1)
    a(f"""s_cmp_ge_u32 s{sROLE}, 160
    s_cbranch_scc1 REST
    s_cmp_ge_u32 s{sROLE}, 32
    s_cbranch_scc1 QA
    s_mov_b32 s{sH}, s{sROLE}
    """)
    chain_role(a, prof)
    qa.qa_role(a)
    a.label("REST")
    a(f"""s_cmp_ge_u32 s{sROLE}, 224
    s_cbranch_scc1 INIT""")
    pa.pa_role(a, 160)
    op.op_role(a, 160)
    init_role(a)
    a.label("EXIT")
    a("s_endpgm")
    L = fix_hazards(a.lines, verbose=True)
    if int(os.environ.get("ALN", "1")):
        L, left = fix_straddles(L, "CH_TOP_fast", "CH_TOP_slow")
        print("straddles left:", left)
    body = render(L)
    hdr = open("concat_heads__spectral_gfnet__memory_aug_recurrent_mem_tr__prompt.s.ref").read().split("\n")
    head = [l for l in hdr if l.startswith(";") and "@launch" not in l][:15]
    txt = "\n".join(head) + "\n; @launch grid=(256,1,1) block=(256,1,1) lds=163840\n"
    txt += f""".amdgcn_target "amdgcn-amd-amdhsa--gfx950"
.text
.globl {KNAME}
.p2align 8
.type {KNAME},@function
{KNAME}:
""" + body + f""".section .rodata,"a"
.p2align 6
.amdhsa_kernel {KNAME}
  .amdhsa_next_free_vgpr 512
  .amdhsa_next_free_sgpr 102
  .amdhsa_accum_offset 256
  .amdhsa_group_segment_fixed_size 0
  .amdhsa_kernarg_size 104
  .amdhsa_user_sgpr_count 2
  .amdhsa_user_sgpr_kernarg_segment_ptr 1
  .amdhsa_system_sgpr_workgroup_id_x 1
.end_amdhsa_kernel
"""
    return txt

if __name__ == "__main__":
    out = sys.argv[1]
    prof = True if "prof" in sys.argv[2:] else ("rt" if "rt" in sys.argv[2:] else False)
    open(out, "w").write(build(prof=prof))
```

```python
from asmlib import *
from layout import *
from chain import (S_BX, S_WQ, S_WK, S_WV, S_DBG, SRD_WS, SRD_T, sW, sROLE, W, set_srd, LdsQ, SPIN_MAX, rt, RT)

sH, sJ, sN, sT0, sT1, sT2, sCNT, sXO, sPA, sPB, sC, sFKV, sFO, sFM, sKXo, sMo, sOo, sL = range(48, 66)
sMASK = 66
T = f"s[{SRD_T}:{SRD_T+3}]"

vL16, vXS, vKS, vVS, vKM, vVM, vOS, vZ = range(8)
vA = 8
ACC, XR, TMP = 16, 64, 96
L_PEND = 65536
L_MT = L_PEND + 3 * 24576
MP = 1024 + 32
L_KMF = L_MT + 8 * MP
vMW = TMP + 24

def join_init(a, t0, t1, val="1"):
    a(f"""v_mov_b32 v{t0}, {val}
    v_mov_b32 v{t1}, 8
    s_mov_b64 exec, 1
    global_atomic_add v{t1}, v{t0}, s[{S_DBG}:{S_DBG+1}]
    s_mov_b64 exec, -1""")

INIT_TARGET = 128

def wait_dbg(a, name, off, target, t0, t1, sC_, sT_, fail, mask=False):
    a(f"""s_mov_b32 s{sC_}, 0
    v_mov_b32 v{t0}, {off}""")
    a.label(name)
    a(f"""global_load_dword v{t1}, v{t0}, s[{S_DBG}:{S_DBG+1}] sc1
    s_add_u32 s{sC_}, s{sC_}, 1
    s_cmp_gt_u32 s{sC_}, {SPIN_MAX}
    s_cbranch_scc1 {fail}
    s_waitcnt vmcnt(0)
    v_readfirstlane_b32 s{sT_}, v{t1}""")
    if mask: a(f"s_and_b32 s{sT_}, s{sT_}, 0xffff")
    a(f"""s_cmp_ge_u32 s{sT_}, {target}
    s_cbranch_scc1 {name}_OK
    s_sleep 4
    s_branch {name}""")
    a.label(name + "_OK")

def stage_consts(a, vD, vTR, lane, t0, t1, t2, rowshift):
    a(f"""v_lshrrev_b32 v{t0}, 4, v{lane}
    v_lshlrev_b32 v{t1}, 2, v{t0}
    v_and_b32 v{t2}, 15, v{lane}
    v_xor_b32 v{t1}, v{t1}, v{t2}
    v_lshlrev_b32 v{t1}, 4, v{t1}
    s_lshl_b32 s{sT0}, s{sW}, 2
    v_add_u32 v{t2}, s{sT0}, v{t0}
    v_lshl_add_u32 v{vD}, v{t2}, {rowshift}, v{t1}
    v_bfe_u32 v{t1}, v{lane}, 2, 2
    v_and_b32 v{t2}, 1, v{t0}
    v_lshl_add_u32 v{t2}, v{t1}, 1, v{t2}
    v_lshlrev_b32 v{t2}, 5, v{t2}
    v_lshl_add_u32 v{t2}, v{t1}, 8, v{t2}
    v_and_b32 v{t1}, 3, v{lane}
    v_lshl_add_u32 v{t2}, v{t1}, 3, v{t2}
    v_lshrrev_b32 v{t0}, 1, v{t0}
    v_lshl_add_u32 v{vTR}, v{t0}, 11, v{t2}""")

def x_consts(a, lane, t0, t1):
    a(f"""s_and_b32 s{sT0}, s{sW}, 1
    s_lshl_b32 s{sT0}, s{sT0}, 3
    v_xor_b32 v{vXS}, s{sT0}, v{lane}
    v_lshlrev_b32 v{vXS}, 4, v{vXS}
    v_and_b32 v{t0}, 15, v{lane}
    v_lshrrev_b32 v{t1}, 5, v{lane}
    v_xor_b32 v{t0}, v{t0}, v{t1}
    v_lshlrev_b32 v{t0}, 4, v{t0}
    v_and_b32 v{t1}, 31, v{lane}
    v_lshl_add_u32 v{vA}, v{t1}, 10, v{t0}""")
    for v in range(1, 8): a(f"v_xor_b32 v{vA+v}, {32*v}, v{vA}")

def x_issue(a, sRow0, rowstride, sLds, tmp):
    for r in range(8):
        a(f"""v_xor_b32 v{tmp+(r&1)}, {16*r}, v{vXS}
        s_add_u32 m0, s{sLds}, {1024*r}
        s_add_u32 s{sT1}, s{sRow0}, {rowstride*r}
        buffer_load_dwordx4 v{tmp+(r&1)}, {T}, s{sT1} offen lds""")

def wf(mat, ks): return wr(128 + (mat * 32 + ks) * 4, 4)

def flag_store(a, name, sOff, sVal, t0):
    a(f"""s_cmp_lg_u32 s{sW}, 0
    s_cbranch_scc1 {name}
    v_mov_b32 v{t0}, s{sVal}
    s_mov_b64 exec, 1
    buffer_store_dword v{t0}, v{vZ}, {W}, s{sOff} offen sc1
    s_mov_b64 exec, -1""")
    a.label(name)

def phase_a(a, tag):
    q = LdsQ(a)
    a(f"""s_waitcnt vmcnt(0)
    s_barrier
    s_cmp_ge_u32 s{sN}, {64 // NG - 1}
    s_cbranch_scc1 QA_NOX_{tag}
    s_add_u32 s{sXO}, s{sXO}, {NG * 32 * 1024}
    s_xor_b32 s{sL}, s{sL}, 32768""")
    x_issue(a, sXO, 1024, sL, TMP)
    a.label(f"QA_NOX_{tag}")
    rd = lambda ks: f"ds_read_b128 {vr(XR + 4*(ks & 7), 4)}, v{vA + (ks & 7)} offset:{256 * (ks >> 3)}"
    tk = {}
    for ks in range(6): tk[ks] = q.op(rd(ks))
    for ks in range(32):
        q.wait(tk[ks])
        x = vr(XR + 4*(ks & 7), 4)
        for mat in range(3):
            acc = vr(ACC + 16*mat, 16)
            c = "0" if ks == 0 else acc
            if mat < 2: a(f"v_mfma_f32_32x32x16_bf16 {acc}, {wf(mat, ks)}, {x}, {c}")
            else: a(f"v_mfma_f32_32x32x16_bf16 {acc}, {x}, {wf(mat, ks)}, {c}")
            if mat == 0 and ks + 6 < 32: tk[ks + 6] = q.op(rd(ks + 6))
    for v in range(8): a(f"v_xor_b32 v{vA+v}, 0x8000, v{vA+v}")
    a(f"v_add_u32 v{XR}, s{sPA}, v{vL16}")
    ORD = (0, 1, 4, 5, 2, 3, 6, 7)
    for mat in range(3):
        for i in range(8):
            d = ORD[i] if mat == 2 else i
            a(f"v_cvt_pk_bf16_f32 v{TMP + 8*mat + i}, v{ACC + 16*mat + 2*d}, v{ACC + 16*mat + 2*d + 1}")
        for h in range(2):
            if mat == 1: a(f"buffer_store_dwordx4 {vr(TMP+8+4*h,4)}, v{vKS}, {W}, s{sKXo} offen offset:{512*h} sc1")
            if mat == 2: a(f"buffer_store_dwordx4 {vr(TMP+16+4*h,4)}, v{vVS}, {W}, s{sKXo} offen offset:{512*h} sc1")
            a(f"ds_write_b128 v{XR}, {vr(TMP+8*mat+4*h,4)} offset:{8192*mat + 1024*h}")
    a(f"""s_add_u32 s{sKXo}, s{sKXo}, {NG * 256 * KB}
    s_add_u32 s{sPA}, s{sPA}, 24576
    s_cmp_ge_u32 s{sPA}, {L_PEND + 3 * 24576}
    s_cbranch_scc0 QA_PA_{tag}
    s_sub_u32 s{sPA}, s{sPA}, {3 * 24576}""")
    a.label(f"QA_PA_{tag}")
    a(f"""s_add_u32 s{sN}, s{sN}, 1
    s_waitcnt vmcnt(0) lgkmcnt(0)
    s_barrier""")
    flag_store(a, f"QA_FA_{tag}", sFKV, sN, TMP)

def phase_b(a, tag):
    SX, SM, O = ACC, ACC + 16, ACC + 32
    q = LdsQ(a)
    a(f"""s_lshl_b32 s{sT0}, s{sW}, 11
    s_sub_u32 s{sT0}, s{sPB}, s{sT0}
    v_add_u32 v{O}, s{sT0}, v{vL16}
    v_add_u32 v{O+1}, s{sPB}, v{vL16}""")
    QF, KF = XR, TMP
    tk = []
    for k in range(8):
        q.op(f"ds_read_b128 {vr(QF+4*k,4)}, v{O} offset:{1024*k}")
        tk.append(q.op(f"ds_read_b128 {vr(KF+4*k,4)}, v{O} offset:{8192 + 1024*k}"))
        if k == 5:
            for kk in range(3):
                q.wait(tk[kk])
                a(f"v_mfma_f32_32x32x16_bf16 {vr(SX,16)}, {vr(KF+4*kk,4)}, {vr(QF+4*kk,4)}, {'0' if kk == 0 else vr(SX,16)}")
    for kk in range(3, 8):
        q.wait(tk[kk])
        a(f"v_mfma_f32_32x32x16_bf16 {vr(SX,16)}, {vr(KF+4*kk,4)}, {vr(QF+4*kk,4)}, {vr(SX,16)}")
    KA, VA = SM, O
    VAD = TMP + 28
    a(f"v_mov_b32 v{VAD}, v{O+1}")
    a(f"v_mov_b32 v{VAD+1}, 0xff800000")
    for r in range(16): a(f"v_cndmask_b32 v{SX+r}, v{VAD+1}, v{SX+r}, s[{sMASK+2*r}:{sMASK+2*r+1}]")
    m_, t_ = VAD + 2, VAD + 3
    a(f"v_max3_f32 v{m_}, v{SX}, v{SX+1}, v{SX+2}")
    for i in range(3, 15, 2): a(f"v_max3_f32 v{m_}, v{m_}, v{SX+i}, v{SX+i+1}")
    a(f"v_max_f32 v{m_}, v{m_}, v{SX+15}")
    a(f"""v_bfe_u32 v{vMW}, v{vL16}, 6, 2
    v_bfe_u32 v{t_}, v{vL16}, 4, 1
    v_lshl_add_u32 v{vMW}, v{vMW}, 1, v{t_}
    v_mul_u32_u24 v{vMW}, {MP}, v{vMW}
    v_bfe_u32 v{t_}, v{vL16}, 9, 1
    v_lshl_add_u32 v{vMW}, v{t_}, 6, v{vMW}
    v_bfe_u32 v{t_}, v{vL16}, 8, 1
    v_lshl_add_u32 v{vMW}, v{t_}, 3, v{vMW}
    v_and_b32 v{t_}, 32, v{vL16}
    s_lshl_b32 s{sT0}, s{sW}, 8
    s_add_u32 s{sT0}, s{sT0}, {L_MT}
    v_add3_u32 v{vMW}, v{vMW}, v{t_}, s{sT0}""")
    a(f"s_mov_b32 s{sCNT}, 0")
    a.label(f"QA_W1_{tag}")
    a(f"""buffer_load_dwordx4 {vr(KF,4)}, v{vL16}, {W}, s{sMo} offen sc1
    buffer_load_dwordx4 {vr(KF+4,4)}, v{vL16}, {W}, s{sMo} offen offset:1024 sc1
    s_add_u32 s{sCNT}, s{sCNT}, 1
    s_cmp_gt_u32 s{sCNT}, {SPIN_MAX}
    s_cbranch_scc1 EXIT
    s_waitcnt vmcnt(0)
    v_max3_u32 v{t_}, v{KF}, v{KF+1}, v{KF+2}
    v_max3_u32 v{t_}, v{t_}, v{KF+3}, v{KF+4}
    v_max3_u32 v{t_}, v{t_}, v{KF+5}, v{KF+6}
    v_max_u32 v{t_}, v{t_}, v{KF+7}
    v_cmp_eq_u32 vcc, -1, v{t_}
    s_cbranch_vccz QA_W2_{tag}
    s_sleep 2
    s_branch QA_W1_{tag}""")
    a.label(f"QA_W2_{tag}")
    a(f"""s_mov_b32 s{sT0}, 0x05040100
    s_mov_b32 s{sT1}, 0x07060302""")
    for k in range(2):
        for hh in range(2):
            for c in range(2): a(f"v_perm_b32 v{KF+8+4*k+2*hh+c}, v{KF+4*k+2*c+1}, v{KF+4*k+2*c}, s{sT0+hh}")
            a(f"ds_write_b64 v{vMW}, {vr(KF+8+4*k+2*hh,2)} offset:{16*k + 128*hh}")
    a(f"""s_waitcnt lgkmcnt(0)
    s_barrier""")
    q = LdsQ(a)
    NR = 3
    rd = lambda n: f"ds_read_b128 {vr(KF + 4*(n % NR), 4)}, v{vKM} offset:{32*(n & 31)}"
    tk = {}
    for n in range(2): tk[n] = q.op(rd(n))
    def mm(n, fill=()):
        q.wait(tk[n])
        x = vr(KF + 4*(n % NR), 4); ks = n & 31
        if n < 32: a(f"v_mfma_f32_32x32x16_bf16 {vr(KA,16)}, {wf(1, ks)}, {x}, {'0' if ks == 0 else vr(KA,16)}")
        else: a(f"v_mfma_f32_32x32x16_bf16 {vr(VA,16)}, {x}, {wf(2, ks)}, {'0' if ks == 0 else vr(VA,16)}")
        if n + 2 < 64: tk[n + 2] = q.op(rd(n + 2))
        for l in fill: a(l)
    KR = KF + 12
    for n in range(34): mm(n)
    cv = [f"v_cvt_pk_bf16_f32 v{KR+i}, v{KA+2*i}, v{KA+2*i+1}" for i in range(8)]
    for l in cv[:4]: a(l)
    mm(34, cv[4:])
    q.op(f"ds_write_b128 v{vVM}, {vr(KR,4)}")
    kw = q.op(f"ds_write_b128 v{vVM}, {vr(KR+4,4)} offset:1024")
    mm(35, [f"v_add_u32 v{t_}, {L_KMF}, v{vL16}"])
    for n in range(36, 39): mm(n)
    q.wait(kw)
    a("s_barrier")
    krd = lambda k: f"ds_read_b128 {vr(KR + 4*(k % 3), 4)}, v{t_} offset:{1024*k}"
    kt = {k: q.op(krd(k)) for k in range(2)}
    for n in range(39, 41): mm(n)
    for k in range(8):
        q.wait(kt[k])
        a(f"v_mfma_f32_32x32x16_bf16 {vr(SM,16)}, {vr(KR + 4*(k % 3),4)}, {vr(QF+4*k,4)}, {'0' if k == 0 else vr(SM,16)}")
        if k + 2 < 8: kt[k + 2] = q.op(krd(k + 2))
    VF, P, L = XR, XR + 12, SM + 4
    mm(41)
    q.op(f"ds_read_b128 {vr(VF,4)}, v{VAD} offset:16384")
    q.op(f"ds_read_b128 {vr(VF+4,4)}, v{VAD} offset:17408")
    ORD = (0, 1, 4, 5, 2, 3, 6, 7)
    sv = [f"v_max3_f32 v{m_}, v{m_}, v{SM}, v{SM+1}", f"v_max3_f32 v{m_}, v{m_}, v{SM+2}, v{SM+3}", f"v_mov_b32 v{t_}, v{m_}",
          f"v_mov_b64 {vr(P+10,2)}, 0", f"v_mov_b64 {vr(VF+10,2)}, 0",
          f"v_permlane32_swap_b32 v{m_}, v{t_}", f"v_max_f32 v{m_}, v{m_}, v{t_}", f"v_mul_f32 v{m_}, s{sC}, v{m_}"]
    sv += [f"v_fma_f32 v{SX+r}, v{SX+r}, s{sC}, -v{m_}" for r in range(20)]
    sv += [f"v_exp_f32 v{SX+r}, v{SX+r}" for r in range(20)]
    sv += [f"v_cvt_pk_bf16_f32 v{P+i}, v{SX+2*ORD[i]}, v{SX+2*ORD[i]+1}" for i in range(8)]
    sv += [f"v_cvt_pk_bf16_f32 v{P+8}, v{SM}, v{SM+1}", f"v_cvt_pk_bf16_f32 v{P+9}, v{SM+2}, v{SM+3}"]
    sv += [f"v_add_f32 v{L}, v{SX}, v{SX+1}"] + [f"v_add_f32 v{L}, v{L}, v{SX+r}" for r in range(2, 20)]
    sv += [f"v_mov_b32 v{L+1}, v{L}", "s_nop 1", f"v_permlane32_swap_b32 v{L}, v{L+1}", f"v_add_f32 v{L}, v{L}, v{L+1}", f"v_rcp_f32 v{L}, v{L}"]
    for n in range(42, 64):
        fill, c = [], 0
        while sv and c < 20:
            c += 8 if sv[0].startswith(("v_exp", "v_perm", "v_rcp", "s_nop")) else 4
            fill.append(sv.pop(0))
        mm(n, fill)
    OX = TMP
    for k in range(2):
        a(f"v_mfma_f32_32x32x16_bf16 {vr(OX,16)}, {vr(VF+4*k,4)}, {vr(P+4*k,4)}, {'0' if k == 0 else vr(OX,16)}")
    for l in sv: a(l)
    a(f"""v_cvt_pk_bf16_f32 v{VF+8}, v{VA}, v{VA+1}
    v_cvt_pk_bf16_f32 v{VF+9}, v{VA+2}, v{VA+3}
    v_mfma_f32_32x32x16_bf16 {vr(OX,16)}, {vr(VF+8,4)}, {vr(P+8,4)}, {vr(OX,16)}""")
    O = OX
    for r in range(16): a(f"v_mul_f32 v{O+r}, v{O+r}, v{L}")
    for i in range(8): a(f"v_cvt_pk_bf16_f32 v{SX+i}, v{O+2*i}, v{O+2*i+1}")
    a(f"""buffer_store_dwordx4 {vr(SX,4)}, v{vOS}, {W}, s{sOo} offen sc1
    buffer_store_dwordx4 {vr(SX+4,4)}, v{vOS}, {W}, s{sOo} offen offset:512 sc1
    s_add_u32 s{sOo}, s{sOo}, {NG * 256 * KB}
    s_add_u32 s{sMo}, s{sMo}, {NG * 8192}
    s_add_u32 s{sPB}, s{sPB}, 24576
    s_cmp_ge_u32 s{sPB}, {L_PEND + 3 * 24576}
    s_cbranch_scc0 QA_PB_{tag}
    s_sub_u32 s{sPB}, s{sPB}, {3 * 24576}""")
    a.label(f"QA_PB_{tag}")
    a(f"""s_add_u32 s{sT2}, s{sT2}, 1
    s_waitcnt vmcnt(0)
    s_barrier""")
    flag_store(a, f"QA_FB_{tag}", sFO, sT2, TMP)

def qa_role(a):
    a.label("QA")
    lane, vD, vTR, t0, t1, t2, vTA = 16, 17, 18, 19, 20, 21, 22
    a(f"""s_sub_u32 s{sT0}, s{sROLE}, 32
    s_lshr_b32 s{sH}, s{sT0}, 2
    s_and_b32 s{sJ}, s{sT0}, 3
    v_and_b32 v{lane}, 63, v0
    v_mov_b32 v{vZ}, 0
    s_lshl_b32 s{sFM}, s{sH}, 7
    s_lshl_b32 s{sT0}, s{sJ}, 2
    s_add_u32 s{sFKV}, s{sFM}, s{sT0}
    s_add_u32 s{sFKV}, s{sFKV}, {WS_FLAGS + F_KV}
    s_add_u32 s{sFM}, s{sFM}, {WS_FLAGS + F_M}
    s_lshl_b32 s{sFO}, s{sJ}, 7
    s_lshl_b32 s{sT0}, s{sH}, 2
    s_add_u32 s{sFO}, s{sFO}, s{sT0}
    s_add_u32 s{sFO}, s{sFO}, {WS_FLAGS + F_O}
    """)
    stage_consts(a, vD, vTR, lane, t0, t1, t2, 13)
    a(f"""s_lshl_b32 s{sT0}, s{sH}, 8
    v_add_u32 v{vD}, s{sT0}, v{vD}
    s_lshl_b32 s{sT0}, s{sW}, 6
    v_xor_b32 v{vTR}, s{sT0}, v{vTR}
    v_add_u32 v{vTA}, 0x10000, v{vTR}
    s_lshl_b32 s{sT2}, s{sW}, 10""")
    order = [1, 2, 0]
    ptrs = [S_WQ, S_WK, S_WV]
    def issue(u):
        if u & 3 == 0: set_srd(a, SRD_T, ptrs[order[u >> 2]], 4 * MB)
        for i in range(8):
            a(f"""s_add_u32 m0, s{sT2}, {(u & 3) * 32768 + i * 4096}
            s_mov_b32 s{sT0}, {(128 * (u & 3) + 16 * i) * 8192}
            buffer_load_dwordx4 v{vD}, {T}, s{sT0} offen lds""")
    for u in range(4): issue(u)
    x_consts(a, lane, t0, t1)
    a(f"""v_lshlrev_b32 v{vL16}, 4, v{lane}
    v_and_b32 v{t0}, 15, v{lane}
    v_lshrrev_b32 v{t1}, 5, v{lane}
    v_lshlrev_b32 v{t0}, 4, v{t0}
    v_lshl_add_u32 v{t0}, v{t1}, 8, v{t0}
    v_bfe_u32 v{t2}, v{lane}, 4, 1
    v_lshl_add_u32 v{vKS}, v{t2}, 12, v{t0}
    v_add_u32 v{vKS}, s{sT2}, v{vKS}
    v_lshl_add_u32 v{vVS}, v{t2}, 10, v{t0}
    s_lshl_b32 s{sT0}, s{sW}, 11
    s_add_u32 s{sPA}, s{sT0}, {L_PEND}
    s_mov_b32 s{sPB}, s{sPA}
    s_add_u32 s{sT0}, s{sT0}, {WS_VX - WS_KX}
    v_add_u32 v{vVS}, s{sT0}, v{vVS}
    """)
    a(f"""v_and_b32 v{t0}, 7, v{lane}
    v_mul_u32_u24 v{t0}, {MP}, v{t0}
    v_lshl_add_u32 v{vKM}, v{t1}, 4, v{t0}
    v_add_u32 v{vKM}, {L_MT}, v{vKM}
    s_lshl_b32 s{sT0}, s{sW}, 11
    s_add_u32 s{sT0}, s{sT0}, {L_KMF}
    v_add_u32 v{vVM}, s{sT0}, v{vL16}
    v_and_b32 v{t0}, 7, v{lane}
    v_lshlrev_b32 v{t0}, 4, v{t0}
    v_lshl_add_u32 v{t0}, v{t1}, 8, v{t0}
    v_bfe_u32 v{vOS}, v{lane}, 3, 2
    v_lshl_add_u32 v{vOS}, v{vOS}, 16, v{t0}
    s_lshr_b32 s{sT0}, s{sW}, 1
    s_lshl_b32 s{sT0}, s{sT0}, 10
    s_and_b32 s{sT1}, s{sW}, 1
    s_lshl_b32 s{sT1}, s{sT1}, 7
    s_add_u32 s{sT0}, s{sT0}, s{sT1}
    v_add_u32 v{vOS}, s{sT0}, v{vOS}
    v_and_b32 v{t0}, 31, v{lane}
    v_lshlrev_b32 v{t1}, 2, v{t1}
    v_sub_u32 v{t0}, v{t0}, v{t1}""")
    for r in range(16): a(f"v_cmp_le_i32 s[{sMASK+2*r}:{sMASK+2*r+1}], {8*(r>>2) + (r&3)}, v{t0}")
    a(f"""s_lshl_b32 s{sT0}, s{sJ}, 5
    s_add_u32 s{sT0}, s{sT0}, s{sH}
    s_lshl_b32 s{sKXo}, s{sT0}, 13
    s_add_u32 s{sKXo}, s{sKXo}, {WS_KX}
    s_lshl_b32 s{sMo}, s{sJ}, 2
    s_add_u32 s{sMo}, s{sMo}, s{sW}
    s_lshl_b32 s{sMo}, s{sMo}, 11
    s_add_u32 s{sMo}, s{sMo}, {WS_MH}
    s_lshl_b32 s{sOo}, s{sJ}, 18
    s_lshl_b32 s{sT0}, s{sH}, 11
    s_add_u32 s{sOo}, s{sOo}, s{sT0}
    s_add_u32 s{sOo}, s{sOo}, {WS_O}
    s_mov_b32 s{sC}, 0x3e0293ee
    s_lshl_b32 s{sL}, s{sW}, 13
    s_lshl_b32 s{sXO}, s{sJ}, 15
    s_add_u32 s{sXO}, s{sXO}, s{sL}
    s_mov_b32 s{sN}, 0""")
    for u in range(12):
        a(f"s_waitcnt vmcnt({8 * min(3, 12 - u)})")
        a("s_barrier")
        for i in range(8):
            d = 128 + (order[u >> 2] * 32 + 8 * (u & 3) + i) * 4
            for m in range(2):
                a(f"ds_read_b64_tr_b16 {wr(d + 2*m, 2)}, v{vTA if u & 2 else vTR} offset:{(u & 1)*32768 + i*4096 + m*1024}")
        a("s_waitcnt lgkmcnt(0)")
        a("s_barrier")
        if u == 7: a(f"global_load_dword v{t2}, v{vZ}, s[{S_DBG}:{S_DBG+1}] offset:{D_INIT} sc1")
        if u + 4 < 12: issue(u + 4)
        if u == 8:
            set_srd(a, SRD_T, S_BX, 2 * MB)
            x_issue(a, sXO, 1024, sL, t0)
    a(f"""v_readfirstlane_b32 s{sT0}, v{t2}
    s_cmp_ge_u32 s{sT0}, {INIT_TARGET}
    s_cbranch_scc1 QA_INIT_OK""")
    wait_dbg(a, "QA_INIT", D_INIT, INIT_TARGET, t0, t1, sCNT, sT0, "EXIT")
    rt(a, 3)
    a(f"s_mov_b32 s{sT2}, 0")
    a.label("QA_LOOP")
    a(f"""s_cmp_ge_u32 s{sN}, {64 // NG}
    s_cbranch_scc1 QA_B""")
    phase_a(a, "l")
    if RT["on"]:
        a(f"s_cmp_lg_u32 s{sN}, 1\ns_cbranch_scc1 QA_RT")
        rt(a, 4)
        a.label("QA_RT")
    a(f"""s_cmp_lt_u32 s{sN}, 3
    s_cbranch_scc1 QA_LOOP""")
    a.label("QA_B")
    phase_b(a, "l")
    a(f"""s_cmp_lt_u32 s{sT2}, {64 // NG}
    s_cbranch_scc1 QA_LOOP""")
    rt(a, 7)
    a("""s_waitcnt vmcnt(0)
    s_endpgm""")
```

```python
import sys
from asmlib import *
from layout import *
import chain
from chain import *
import qa, op, pa

KNAME = "concat_heads__spectral_gfnet__memory_aug_recurrent_mem_tr__prompt_kernel"

def prologue(a):
    a(f"""
    s_cmp_ge_u32 s2, 256
    s_cbranch_scc1 EXIT
    s_load_dwordx16 s[8:23], s[0:1], 0
    s_load_dwordx8 s[24:31], s[0:1], 64
    s_load_dwordx2 s[32:33], s[0:1], 96
    v_lshrrev_b32 v1, 6, v0
    s_getreg_b32 s{sXCC}, hwreg(HW_REG_XCC_ID, 0, 4)
    v_readfirstlane_b32 s{sW}, v1
    s_waitcnt lgkmcnt(0)
    """)
    set_srd(a, SRD_WS, S_WS, WS_END)
    if os.environ.get("FAKEX"):
        a(f"""s_mul_hi_u32 s48, s2, {(1 << 32) // 11 + 1}
        s_mul_i32 s48, s48, 11
        s_sub_u32 s{sXCC}, s2, s48""")
    a(f"""s_sub_u32 s48, s{sXCC}, 5
    s_cmp_ge_u32 s48, 2
    s_cbranch_scc1 NOWARM
    s_bfe_u32 s49, s2, 0x50003
    s_lshl_b32 s49, s49, 1
    s_add_u32 s48, s48, s49
    s_lshl_b32 s48, s48, 15
    v_lshlrev_b32 v8, 7, v0
    v_add_u32 v8, s48, v8
    v_add_u32 v9, {2 * MB}, v8""")
    n = 0
    for ptr in (S_WK, S_WV, S_WQ):
        set_srd(a, SRD_T, ptr, 4 * MB)
        for v in (8, 9):
            a(f"buffer_load_dword v{20 + n}, v{v}, s[{SRD_T}:{SRD_T+3}], 0 offen"); n += 1
    a.label("NOWARM")
    a(f"""
    v_mov_b32 v2, 163836
    s_cmp_lg_u32 s{sW}, 0
    s_cbranch_scc1 ROLE_WAIT
    s_mov_b64 exec, 1
    v_mov_b32 v3, 1
    s_min_u32 s48, s{sXCC}, 8
    s_lshl_b32 s49, s48, 2
    s_add_u32 s49, s49, {D_TICK - 4}
    s_cmp_eq_u32 s48, 0
    s_cselect_b32 s49, 0, s49
    v_mov_b32 v4, s49
    global_atomic_add v6, v4, v3, s[{S_DBG}:{S_DBG+1}] sc0
    s_lshl_b32 s{sROLE}, s48, 5
    s_waitcnt vmcnt(0)
    v_readfirstlane_b32 s49, v6
    s_add_u32 s{sROLE}, s{sROLE}, s49
    s_cmp_lt_u32 s49, 32
    s_cselect_b32 s49, s48, 8
    s_cmp_lt_u32 s49, 8
    s_cbranch_scc1 ROLE_SET
    v_mov_b32 v4, {D_OVF}
    global_atomic_add v6, v4, v3, s[{S_DBG}:{S_DBG+1}] sc0
    s_waitcnt vmcnt(0)
    v_readfirstlane_b32 s50, v6
    s_mov_b64 exec, -1
    """)
    all_arrived(a, "ROLE_ALL", 4, 6, 51, 52, "ROLE_NONE")
    a("s_mov_b32 s53, 0")
    a.label("ROLE_SCAN")
    a(f"""v_readlane_b32 s48, v6, s53
    s_min_u32 s48, s48, 32
    s_sub_u32 s49, 32, s48
    s_lshl_b32 s{sROLE}, s53, 5
    s_add_u32 s{sROLE}, s{sROLE}, s48
    s_add_u32 s{sROLE}, s{sROLE}, s50
    s_cmp_lt_u32 s50, s49
    s_cbranch_scc1 ROLE_SET
    s_sub_u32 s50, s50, s49
    s_add_u32 s53, s53, 1
    s_cmp_lt_u32 s53, 8
    s_cbranch_scc1 ROLE_SCAN
    """)
    a.label("ROLE_NONE")
    a(f"s_mov_b32 s{sROLE}, 256")
    a.label("ROLE_SET")
    a(f"""
    v_mov_b32 v3, s{sROLE}
    ds_write_b32 v2, v3
    s_waitcnt lgkmcnt(0)
    s_mov_b64 exec, -1
    """)
    a.label("ROLE_WAIT")
    if os.environ.get("CTALL"):
        a(f"""s_cmp_eq_u32 s{sW}, 0
        s_cbranch_scc1 NOCT
        s_nop 15
        s_getpc_b64 s[50:51]
        v_lshlrev_b32 v12, 7, v0
        v_subrev_u32 v12, 8192, v12
        v_add_u32 v13, 24576, v12
        global_load_dword v14, v12, s[50:51]
        global_load_dword v15, v13, s[50:51]""")
        a.label("NOCT")
    a(f"""
    s_waitcnt vmcnt(0)
    s_barrier
    ds_read_b32 v3, v2
    s_waitcnt lgkmcnt(0)
    v_readfirstlane_b32 s{sROLE}, v3
    s_barrier
    """)

def build(prof=False, roles=("chain",)):
    a = Asm()
    RT["on"] = bool(prof)
    if prof: a("s_memrealtime s[4:5]")
    prologue(a)
    if prof:
        a(f"""v_mov_b32 v10, s4
        s_lshl_b32 s2, s{sROLE}, 6
        s_add_u32 s2, s2, {WS_PROF + 640*KB}
        v_mov_b32 v11, 0
        buffer_store_dword v10, v11, {W}, s2 offen""")
        if os.environ.get("RTDBG"):
            a(f"""s_cmp_lg_u32 s{sROLE}, 0
            s_cbranch_scc1 RTD0
            v_and_b32 v10, 0xffffff, v10
            global_store_dword v11, v10, s[{S_DBG}:{S_DBG+1}]""")
            a.label("RTD0")
        rt(a, 1)
    a(f"""s_cmp_ge_u32 s{sROLE}, 160
    s_cbranch_scc1 REST
    s_cmp_ge_u32 s{sROLE}, 32
    s_cbranch_scc1 QA
    s_mov_b32 s{sH}, s{sROLE}
    """)
    chain_role(a, prof)
    qa.qa_role(a)
    a.label("REST")
    a(f"""s_cmp_ge_u32 s{sROLE}, 224
    s_cbranch_scc1 INIT""")
    pa.pa_role(a, 160)
    op.op_role(a, 160)
    init_role(a)
    a.label("EXIT")
    a("s_endpgm")
    L = fix_hazards(a.lines, verbose=True)
    if int(os.environ.get("ALN", "1")):
        L, left = fix_straddles(L, "CH_TOP_fast", "CH_TOP_slow")
        print("straddles left:", left)
    body = render(L)
    hdr = open("concat_heads__spectral_gfnet__memory_aug_recurrent_mem_tr__prompt.s.ref").read().split("\n")
    head = [l for l in hdr if l.startswith(";") and "@launch" not in l][:15]
    txt = "\n".join(head) + "\n; @launch grid=(256,1,1) block=(256,1,1) lds=163840\n"
    txt += f""".amdgcn_target "amdgcn-amd-amdhsa--gfx950"
.text
.globl {KNAME}
.p2align 8
.type {KNAME},@function
{KNAME}:
""" + body + f""".section .rodata,"a"
.p2align 6
.amdhsa_kernel {KNAME}
  .amdhsa_next_free_vgpr 512
  .amdhsa_next_free_sgpr 102
  .amdhsa_accum_offset 256
  .amdhsa_group_segment_fixed_size 0
  .amdhsa_kernarg_size 104
  .amdhsa_user_sgpr_count 2
  .amdhsa_user_sgpr_kernarg_segment_ptr 1
  .amdhsa_system_sgpr_workgroup_id_x 1
.end_amdhsa_kernel
"""
    return txt

if __name__ == "__main__":
    out = sys.argv[1]
    prof = True if "prof" in sys.argv[2:] else ("rt" if "rt" in sys.argv[2:] else False)
    open(out, "w").write(build(prof=prof))
```

```python
from asmlib import *
from layout import *
import os

S_AX, S_WR, S_WI, S_BX, S_MEM0, S_WQ, S_WK, S_WV, S_WO, S_SEG, S_OUT, S_DBG, S_WS = 8,10,12,14,16,18,20,22,24,26,28,30,32
SRD_WS = 36
SRD_T  = 40
sW, sROLE, sXCC = 44, 45, 46
sLKX = 47
sC2, sONE2 = 48, 50
sH, sS, sT0, sT1, sT2, sCNT, sINB_R, sINB_R2, sKXO, sFREE0, sMR, sKX, sVX, sKM, sTAG, sPOM, sPROF, sPF = range(52, 70)
sXM = 90
sINW = 98
sMODE = 35
sHM = 12
sHW, sHR, sFM, sRDY = 4, 5, 6, 7
sKVA = 0
sKV = 8

SPIN_MAX = 1 << 16
CFG = {k: int(os.environ.get(k.upper(), v)) for k, v in dict(d1=208, d2=0, adv=1, advp=1, dep=3, gap=64, pub=1, pad=256, bar=15, w1=4, join=8, dr=0, dl=320, gu=0, gt=-72, vl=0, v2=1, vw=4, n0=2, ct=0, pace=0, fe=2, pk=5, pa=11, pb=10, ga=40, g3=48, g4=56, light=0, only=6, at=-1, e1=0, e2=0, e3=1, e4=1, hm=7, pg=8, pq=20, pd=8, w0p=3, hr=8, hb=4, p0=160, np=0, ps=32, pf=4, ds=0, g2=48, re=2, fast=1, gate=1).items()}
INB_STRIDE = 8192 + CFG["pad"]

L_WL = 0
L_MB = 131072
L_OX = L_MB
L_KXB = L_MB + 8192
L_X = L_KXB + 16384
XP = 1088
L_SEL = L_X + 4 * XP
L_JUNK = L_SEL + 1024
L_SEL2 = L_JUNK + 256
L_FL = L_SEL2 + 1024

vLB, vG, vWL1, vG2, vXW, vXR, vOW, vIDX, vPS, vMS, vHR, vT = range(12)
PM = 12
aQK, aV, X, VX, MA, RING = 16, 32, 40, 56, 64, 96

KORD = (2, 4, 6, 3, 5, 7)
QKSEQ = [(m, T, kk) for kk in range(2) for (m, T) in ((0, 0), (1, 0), (0, 1), (1, 1), (2, 0), (2, 1))] + \
        [(m, T, kk) for kk in KORD[:4] for (m, T) in ((0, 0), (1, 0), (0, 1))] + \
        [(0, 0, 5), (1, 0, 5), (0, 0, 7), (1, 0, 7), (0, 1, 5), (0, 1, 7)] + [(1, 1, kk) for kk in KORD]
VSEQ = [(2, T, kk) for kk in range(2, 8) for T in range(2)]
OSEQ = [(3, p, 0) for p in range(4)] + [(3, p, kk) for p in range(4) for kk in range(1, 4)]
RB0 = 24
RBS = (12, 12, 13, 14, 18, 18, 19, 19)
def wfrag_map():
    m = {}
    for i in range(4):
        m[QKSEQ[i]] = ("lds", i, i)
        m[QKSEQ[RB0 + i]] = ("lds", 4 + i, i)
        m[VSEQ[2 + i]] = ("lds", 8 + i, i)
        m[OSEQ[12 + i]] = ("lds", 12 + i, i)
    nxt = 128
    for k in QKSEQ + VSEQ + OSEQ:
        if k not in m:
            m[k] = ("reg", nxt); nxt += 8
    assert nxt == 512
    return m
WF = wfrag_map()
def wop(key):
    e = WF[key]
    return wr(e[1], 8) if e[0] == "reg" else vr(RING + 8 * e[2], 8)

class LdsQ:
    def __init__(self, a): self.a = a; self.n = 0
    def op(self, text):
        self.a(text); self.n += 1; return self.n
    def wait(self, tok):
        k = self.n - tok
        self.a(f"s_waitcnt lgkmcnt({min(k, 15)})")

def ring_load(rnd):
    L = []
    for slot in range(4):
        f = 4 * rnd + slot
        base, off = (vG, f * 8192) if f < 8 else (vWL1, (f - 8) * 8192)
        for hh in range(2):
            L.append(f"ds_read_b128 {vr(RING + 8*slot + 4*hh, 4)}, v{base} offset:{off + 1024*hh}")
    return L

def set_srd(a, srd, sptr, nbytes):
    a(f"""s_mov_b32 s{srd}, s{sptr}
    s_mov_b32 s{srd+1}, s{sptr+1}
    s_mov_b32 s{srd+2}, {nbytes}
    s_mov_b32 s{srd+3}, 0x20000""")

W = f"s[{SRD_WS}:{SRD_WS+3}]"

RT = {"on": False}
def rt(a, k, vt=126):
    if not RT["on"]: return
    lab = a.uid("RT")
    if os.environ.get("RTDBG"):
        MAP = {(0,1):5, (0,2):6, (0,4):7, (0,7):8, (32,4):9, (32,7):10, (160,2):11, (160,3):12, (160,4):13, (160,5):14, (160,7):15}
        a(f"s_cmp_lg_u32 s{sW}, 0\ns_cbranch_scc1 {lab}\ns_mov_b32 s3, 0")
        for (r, kk), wd in MAP.items():
            if kk == k: a(f"s_cmp_eq_u32 s{sROLE}, {r}\ns_cselect_b32 s3, {4*wd}, s3")
        a(f"""s_cmp_eq_u32 s3, 0
        s_cbranch_scc1 {lab}
        v_mov_b32 v{vt+1}, s3
        s_memrealtime s[2:3]
        s_waitcnt lgkmcnt(0)
        s_and_b32 s2, s2, 0xffffff
        v_mov_b32 v{vt}, s2
        global_store_dword v{vt+1}, v{vt}, s[{S_DBG}:{S_DBG+1}]
        s_waitcnt vmcnt(0)""")
        a.label(lab)
        return
    a(f"""s_cmp_lg_u32 s{sW}, 0
    s_cbranch_scc1 {lab}
    s_memrealtime s[2:3]
    s_waitcnt lgkmcnt(0)
    v_mov_b32 v{vt}, s2
    s_lshl_b32 s2, s{sROLE}, 6
    s_add_u32 s2, s2, {WS_PROF + 640*KB + 4*k}
    v_mov_b32 v{vt+1}, 0
    buffer_store_dword v{vt}, v{vt+1}, {W}, s2 offen
    s_waitcnt vmcnt(0)""")
    a.label(lab)

def until(a, env):
    if not os.environ.get(env): return
    lab = a.uid("UNTIL")
    a.label(lab)
    a(f"""s_memrealtime s[92:93]
    s_waitcnt lgkmcnt(0)
    s_sub_u32 s92, s92, s3
    s_cmp_lt_u32 s92, {int(float(os.environ[env]) * 100)}
    s_cbranch_scc1 {lab}""")

def delay(a, cyc):
    n = cyc // 4
    while n > 0:
        k = min(n, 16); a(f"s_nop {k-1}"); n -= k

def all_arrived(a, name, va, vd, sC, sT, fail, early=None):
    a(f"""v_mbcnt_lo_u32_b32 v{va}, -1, 0
    v_and_b32 v{va}, 15, v{va}
    v_lshlrev_b32 v{va}, 2, v{va}
    v_add_u32 v{va}, {D_TICK - 4}, v{va}
    v_writelane_b32 v{va}, 0, 0
    s_mov_b32 s{sC}, 0""")
    a.label(name)
    a(f"""global_load_dword v{vd}, v{va}, s[{S_DBG}:{S_DBG+1}] sc1
    s_add_u32 s{sC}, s{sC}, 1
    s_cmp_gt_u32 s{sC}, {SPIN_MAX}
    s_cbranch_scc1 {fail}
    s_waitcnt vmcnt(0)
    v_readlane_b32 s{sT}, v{vd}, 0""")
    if early: a(f"s_cmp_ge_u32 s{sT}, 32\ns_cbranch_scc1 {early}")
    for i in range(1, 9): a(f"v_readlane_b32 vcc_lo, v{vd}, {i}\ns_add_u32 s{sT}, s{sT}, vcc_lo")
    a(f"""s_cmp_lt_u32 s{sT}, 256
    s_cbranch_scc1 {name}""")

def init_role(a):
    a.label("INIT")
    a(f"""s_cmp_ge_u32 s{sROLE}, 256
    s_cbranch_scc1 EXIT
    s_sub_u32 s48, s{sROLE}, 224
    v_lshlrev_b32 v1, 4, v0
    v_mov_b64 v[4:5], -1
    v_mov_b64 v[6:7], -1
    s_mul_i32 s49, s48, {INB_STRIDE}
    s_add_u32 s49, s49, {WS_INBOX}
    buffer_store_dwordx4 v[4:7], v1, {W}, s49 offen sc1
    s_add_u32 s49, s49, 4096
    buffer_store_dwordx4 v[4:7], v1, {W}, s49 offen sc1
    v_lshlrev_b32 v2, 2, v0
    s_lshl_b32 s49, s48, 10
    s_add_u32 s50, s49, {WS_MBUF}
    buffer_store_dword v4, v2, {W}, s50 offen sc1
    s_add_u32 s50, s49, {WS_HINT}
    buffer_store_dword v4, v2, {W}, s50 offen sc1
    s_lshl_b32 s50, s48, 14
    s_add_u32 s50, s50, {WS_MH + 8192}""")
    for i in range(4):
        a(f"""buffer_store_dwordx4 v[4:7], v1, {W}, s50 offen sc1
        s_add_u32 s50, s50, 4096""")
    set_srd(a, SRD_T, S_MEM0, 8192)
    a(f"""s_cmp_lg_u32 s48, 1
    s_cbranch_scc1 INIT_NM
    v_bfe_u32 v8, v0, 2, 2
    v_and_b32 v9, 1, v0
    v_lshl_add_u32 v8, v8, 1, v9
    v_lshlrev_b32 v8, 10, v8
    v_lshrrev_b32 v9, 7, v0
    v_lshl_add_u32 v8, v9, 8, v8
    v_bfe_u32 v9, v0, 6, 1
    v_lshl_add_u32 v8, v9, 4, v8
    v_bfe_u32 v9, v0, 5, 1
    v_lshl_add_u32 v8, v9, 6, v8
    v_bfe_u32 v9, v0, 4, 1
    v_lshl_add_u32 v8, v9, 3, v8
    v_bfe_u32 v9, v0, 1, 1
    v_lshl_add_u32 v8, v9, 5, v8
    buffer_load_dwordx2 v[12:13], v8, s[{SRD_T}:{SRD_T+3}], 0 offen
    buffer_load_dwordx2 v[14:15], v8, s[{SRD_T}:{SRD_T+3}], 0 offen offset:128
    buffer_load_dwordx2 v[16:17], v8, s[{SRD_T}:{SRD_T+3}], 0 offen offset:512
    buffer_load_dwordx2 v[18:19], v8, s[{SRD_T}:{SRD_T+3}], 0 offen offset:640
    s_mov_b32 s50, {WS_MH}
    s_mov_b32 s51, {WS_MH + 4096}
    s_mov_b32 s52, 0x05040100
    s_mov_b32 s53, 0x07060302
    s_waitcnt vmcnt(0)""")
    for k in range(2):
        for c in range(4): a(f"v_perm_b32 v{20+4*k+c}, v{14+4*k+(c>>1)}, v{12+4*k+(c>>1)}, s{52+(c&1)}")
    a(f"""buffer_store_dwordx4 v[20:23], v1, {W}, s50 offen sc1
    buffer_store_dwordx4 v[24:27], v1, {W}, s51 offen sc1""")
    a.label("INIT_NM")
    a(f"""v_mov_b32 v3, 0
    s_add_u32 s50, s49, {WS_FLAGS}
    buffer_store_dword v3, v2, {W}, s50 offen sc1
    s_waitcnt vmcnt(0)
    v_mov_b32 v4, 1
    v_mov_b32 v5, {D_INIT}
    s_mov_b64 exec, 1
    global_atomic_add v5, v4, s[{S_DBG}:{S_DBG+1}]
    s_mov_b64 exec, -1
    s_lshl_b32 s49, s48, 15
    v_lshlrev_b32 v1, 7, v0""")
    set_srd(a, SRD_T, S_BX, 512 * KB)
    a(f"buffer_load_dword v8, v1, s[{SRD_T}:{SRD_T+3}], s49 offen")
    set_srd(a, SRD_T, S_WO, 4 * MB)
    for i in range(4):
        a(f"""buffer_load_dword v{9 + i}, v1, s[{SRD_T}:{SRD_T+3}], s49 offen
        s_add_u32 s49, s49, {MB}""")
    a(f"""s_waitcnt vmcnt(0)
    s_cmp_eq_u32 s{sROLE}, 224
    s_cbranch_scc1 PA
    s_branch OP""")

def code_touch(a, va, vd, sp):
    if not CFG["ct"]: return
    a(f"""s_getpc_b64 s[{sp}:{sp+1}]
    global_load_dword v{vd}, v{va}, s[{sp}:{sp+1}]""")

def chain_startup(a):
    t0, t1, t2, t3, t4, t5, t6, t7 = 16, 17, 18, 19, 20, 21, 22, 23
    vLane, vDQ, vDO, vTR, vTA, vM0, vTO = 24, 25, 26, 27, 28, 30, 31
    a(f"v_lshlrev_b32 v15, 7, v0")
    code_touch(a, 15, vT, 72)
    a(f"""
    v_and_b32 v{vLane}, 63, v0
    v_lshlrev_b32 v{vLB}, 4, v{vLane}
    s_lshl_b32 s{sT0}, s{sW}, 11
    v_add_u32 v{vG}, s{sT0}, v{vLB}
    v_add_u32 v{vLB}, {L_MB}, v{vLB}
    v_add_u32 v{vWL1}, 0x10000, v{vG}
    v_add_u32 v{vG2}, {L_MB}, v{vG}
    """)
    a(f"""
    s_mul_i32 s{sINB_R}, s{sH}, {INB_STRIDE}
    s_add_u32 s{sINB_R}, s{sINB_R}, {WS_INBOX}
    s_lshl_b32 s{sT0}, s{sW}, 11
    s_sub_u32 s{sINB_R}, s{sINB_R}, s{sT0}
    s_add_u32 s{sINB_R2}, s{sINB_R}, 4096
    s_lshl_b32 s{sHW}, s{sH}, 2
    s_add_u32 s{sHW}, s{sHW}, {WS_HINT}
    s_and_b32 s{sHR}, s{sH}, 7
    s_lshl_b32 s{sHR}, s{sHR}, 7
    s_add_u32 s{sHR}, s{sHR}, {WS_HINT}
    s_lshl_b32 s{sFM}, s{sH}, 7
    s_add_u32 s{sKVA}, s{S_WS}, s{sFM}
    s_addc_u32 s{sKVA+1}, s{S_WS+1}, 0
    s_add_u32 s{sFM}, s{sFM}, {WS_FLAGS + F_M}
    s_mov_b32 s{sRDY}, 0""")
    a(f"""
    v_lshrrev_b32 v{t0}, 4, v{vLane}
    s_and_b32 s{sT0}, s{sW}, 1
    s_lshl_b32 s{sT1}, s{sT0}, 2
    v_add_u32 v{t1}, s{sT1}, v{t0}
    v_lshlrev_b32 v{t1}, 1, v{t1}
    v_and_b32 v{t2}, 15, v{vLane}
    v_xor_b32 v{t1}, v{t1}, v{t2}
    v_lshlrev_b32 v{t1}, 4, v{t1}
    v_lshrrev_b32 v{t2}, 1, v{t0}
    v_and_b32 v{t3}, 1, v{t0}
    v_lshlrev_b32 v{vDQ}, 6, v{t3}
    v_lshl_add_u32 v{vDQ}, v{t2}, 4, v{vDQ}
    s_lshl_b32 s{sT1}, s{sW}, 1
    v_add_u32 v{vDQ}, s{sT1}, v{vDQ}
    v_lshl_add_u32 v{vDQ}, v{vDQ}, 13, v{t1}
    s_lshl_b32 s{sT1}, s{sH}, 8
    v_add_u32 v{vDQ}, s{sT1}, v{vDQ}
    v_lshl_add_u32 v{t2}, v{t2}, 5, v{t3}
    s_lshl_b32 s{sT0}, s{sT0}, 4
    s_lshr_b32 s{sT1}, s{sW}, 1
    s_lshl_b32 s{sT1}, s{sT1}, 2
    s_add_u32 s{sT0}, s{sT0}, s{sT1}
    v_add_u32 v{t2}, s{sT0}, v{t2}
    v_and_b32 v{t3}, 128, v{t1}
    v_add_u32 v{t1}, v{t1}, v{t3}
    v_lshl_add_u32 v{vDO}, v{t2}, 10, v{t1}
    s_lshl_b32 s{sT1}, s{sH}, 17
    v_add_u32 v{vDO}, s{sT1}, v{vDO}
    """)
    a(f"""
    v_lshrrev_b32 v{t0}, 4, v{vLane}
    v_bfe_u32 v{t1}, v{vLane}, 2, 2
    v_and_b32 v{t2}, 3, v{vLane}
    v_and_b32 v{t3}, 1, v{t0}
    v_lshl_add_u32 v{t3}, v{t3}, 2, v{t1}
    v_lshlrev_b32 v{t3}, 5, v{t3}
    v_lshl_add_u32 v{t3}, v{t2}, 3, v{t3}
    v_lshl_add_u32 v{t3}, v{t1}, 8, v{t3}
    v_lshl_add_u32 v{vTR}, v{t0}, 10, v{t3}
    v_and_b32 v{t4}, 1, v{t1}
    v_lshrrev_b32 v{t5}, 1, v{t1}
    v_xor_b32 v{t5}, v{t5}, v{t4}
    v_and_b32 v{t3}, 1, v{t0}
    v_lshl_add_u32 v{t5}, v{t3}, 2, v{t5}
    v_lshlrev_b32 v{t5}, 5, v{t5}
    v_lshl_add_u32 v{t5}, v{t2}, 3, v{t5}
    v_lshl_add_u32 v{t5}, v{t4}, 8, v{t5}
    v_lshl_add_u32 v{vTO}, v{t0}, 10, v{t5}
    s_lshl_b32 s{sT2}, s{sW}, 10
    """)
    ptrs = [S_WQ, S_WK, S_WV, S_WO]
    MORD = (1, 2, 0, 3)
    def issue(u):
        c, mh = u >> 1, u & 1
        mat, half = MORD[c >> 1], c & 1
        if u & 3 == 0: set_srd(a, SRD_T, ptrs[mat], 4 * MB)
        for tl in range(4):
            for m in (2 * mh, 2 * mh + 1):
                if mat < 3:
                    so = (128 * tl + 8 * half + 32 * (m >> 1) + (m & 1)) * 8192
                    v = vDQ
                else:
                    so = (64 * (tl & 1) + 8 * (m >> 1) + 2 * (m & 1)) * 1024 + (tl >> 1) * 512 + half * 128
                    v = vDO
                a(f"""s_add_u32 m0, s{sT2}, {half * 65536 + (tl * 4 + m) * 4096}
                s_mov_b32 s{sT0}, {so}
                buffer_load_dwordx4 v{v}, s[{SRD_T}:{SRD_T+3}], s{sT0} offen lds""")
    def hold(f): return 32 + 8 * (f if f < 12 else f - 12)
    def dest(key):
        e = WF[key]
        return e[1] if e[0] == "reg" else hold(e[1])
    def addrs(omat):
        for n in range(8):
            va = 16 + n
            if not omat:
                T, lo = n >> 2, n & 3
                a(f"""s_lshl_b32 s{sT0}, s{sW}, 6
                s_add_u32 s{sT0}, s{sT0}, {32 * T}
                s_xor_b32 s{sT1}, s{sW}, {lo}
                s_lshl_b32 s{sT1}, s{sT1}, 14
                v_xor_b32 v{va}, s{sT0}, v{vTR}
                v_add_u32 v{va}, s{sT1}, v{va}""")
            else:
                pl, kk = n >> 2, n & 3
                a(f"""s_xor_b32 s{sT1}, s{sW}, {kk}
                s_and_b32 s{sT0}, s{sT1}, 1
                s_lshl_b32 s{sCNT}, s{sT0}, 9
                s_lshl_b32 s{sT0}, s{sT0}, 6
                s_xor_b32 s{sT0}, s{sT0}, {64 * pl}
                s_and_b32 s{sTAG}, s{sW}, 1
                s_lshl_b32 s{sTAG}, s{sTAG}, 7
                s_add_u32 s{sT0}, s{sT0}, s{sTAG}
                s_lshr_b32 s{sT1}, s{sT1}, 1
                s_and_b32 s{sTAG}, s{sW}, 2
                s_add_u32 s{sT1}, s{sT1}, s{sTAG}
                s_lshl_b32 s{sT1}, s{sT1}, 14
                s_add_u32 s{sT1}, s{sT1}, s{sCNT}
                v_xor_b32 v{va}, s{sT0}, v{vTO}
                v_add_u32 v{va}, s{sT1}, v{va}""")
    def consume(u):
        c, mh = u >> 1, u & 1
        mat, half = MORD[c >> 1], c & 1
        for n in range(8):
            d = dest((mat, n >> 2, 2 * (n & 3) + half)) if mat < 3 else dest((3, 2 * half + (n >> 2), n & 3))
            for m in (2 * mh, 2 * mh + 1):
                a(f"ds_read_b64_tr_b16 {wr(d + 2*m, 2)}, v{16+n} offset:{m*4096}")
        a("s_waitcnt lgkmcnt(0)")
    def spill(fs):
        for f in fs:
            base, off = (vG, f * 8192) if f < 8 else (vWL1, (f - 8) * 8192)
            for hh in range(2):
                a(f"ds_write_b128 v{base}, {vr(hold(f) + 4*hh, 4)} offset:{off + 1024*hh}")
        a("s_waitcnt lgkmcnt(0)")
    for u in range(4): issue(u)
    a(f"""
    v_and_b32 v{t0}, 15, v{vLane}
    v_lshrrev_b32 v{t1}, 4, v{vLane}
    v_and_b32 v{t2}, 3, v{vLane}
    v_bfe_u32 v{t3}, v{vLane}, 2, 2
    """)
    a(f"""
    s_lshl_b32 s{sT0}, s{sW}, 8
    s_add_u32 s{sT1}, s{sT0}, {L_X}
    v_mul_u32_u24 v{t5}, {XP}, v{t1}
    v_lshl_add_u32 v{t5}, v{t0}, 3, v{t5}
    v_add_u32 v{vXW}, s{sT1}, v{t5}
    """)
    a(f"""
    v_and_b32 v{t4}, 1, v{t1}
    v_lshl_add_u32 v{t4}, v{t4}, 2, v{t3}
    v_lshrrev_b32 v{t5}, 1, v{t1}
    v_lshl_add_u32 v{t4}, v{t5}, 4, v{t4}
    v_mul_u32_u24 v{t5}, {XP}, v{t2}
    v_lshl_add_u32 v{t4}, v{t4}, 3, v{t5}
    v_add_u32 v{vXR}, {L_X}, v{t4}
    v_and_b32 v{vHR}, 31, v{vLane}
    v_lshlrev_b32 v{vHR}, 2, v{vHR}
    v_cmp_lt_u32 vcc, 1, v{t2}
    v_mov_b32 v{t5}, 0x4444
    v_mov_b32 v{t6}, 0xeeee
    v_cndmask_b32 v{vIDX}, v{t5}, v{t6}, vcc
    """)
    a(f"""
    v_and_b32 v{t4}, 1, v{vLane}
    v_lshl_add_u32 v{t7}, v{t3}, 1, v{t4}
    v_lshlrev_b32 v{t4}, 4, v{t7}
    v_lshl_add_u32 v{t4}, v{t1}, 7, v{t4}
    s_lshl_b32 s{sT0}, s{sW}, 9
    s_add_u32 s{sT0}, s{sT0}, {L_OX}
    v_add_u32 v{vOW}, s{sT0}, v{t4}
    v_mov_b32 v{t6}, 0x80000000
    """)
    a(f"""
    v_bfe_u32 v{t4}, v{vLane}, 2, 1
    v_bfe_u32 v{t5}, v{vLane}, 3, 1
    v_lshl_add_u32 v{vMS}, v{t4}, 1, v{t5}
    v_lshl_add_u32 v{vMS}, v{vMS}, 2, v{t2}
    v_lshlrev_b32 v{vMS}, 2, v{vMS}
    v_lshl_add_u32 v{vMS}, v{t1}, 8, v{vMS}
    s_lshr_b32 s{sT0}, s{sH}, 3
    s_lshl_b32 s{sT0}, s{sT0}, 11
    s_and_b32 s{sT1}, s{sH}, 1
    s_lshl_b32 s{sT1}, s{sT1}, 10
    s_add_u32 s{sT0}, s{sT0}, s{sT1}
    s_and_b32 s{sT1}, s{sH}, 6
    s_lshl_b32 s{sT1}, s{sT1}, 5
    s_add_u32 s{sT0}, s{sT0}, s{sT1}
    s_cmp_eq_u32 s{sW}, 0
    s_cselect_b32 s{sT0}, s{sT0}, 0x80000000
    v_add_u32 v{vMS}, s{sT0}, v{vMS}
    v_lshl_add_u32 v{t5}, v{t1}, 1, v{t5}
    s_lshl_b32 s{sT1}, s{sW}, 3
    v_add_u32 v{t5}, s{sT1}, v{t5}
    v_mul_u32_u24 v{t5}, {INB_STRIDE}, v{t5}
    v_lshl_add_u32 v{t5}, v{t2}, 4, v{t5}
    v_lshl_add_u32 v{t5}, v{t4}, 3, v{t5}
    s_lshl_b32 s{sT0}, s{sH}, 6
    v_add_u32 v{vPS}, s{sT0}, v{t5}
    """)
    a(f"""
    v_and_b32 v{t5}, 1, v{vLane}
    v_lshlrev_b32 v{t5}, 4, v{t5}
    v_mov_b32 v{t6}, 0x3f80
    v_lshlrev_b32 v{t5}, v{t5}, v{t6}
    v_bfe_u32 v{t6}, v{vLane}, 1, 3
    """)
    for d in range(4):
        a(f"""v_cmp_eq_u32 vcc, {4 + d}, v{t6}
        v_cndmask_b32 v{PM+d}, 0, v{t5}, vcc""")
    a(f"""ds_write_b128 v{vLB}, v[{PM}:{PM+3}] offset:{L_SEL2-L_MB}
    s_waitcnt lgkmcnt(0)""")
    for d in range(4):
        a(f"""v_cmp_eq_u32 vcc, {d}, v{t6}
        v_cndmask_b32 v{PM+d}, 0, v{t5}, vcc""")
    a(f"""ds_write_b128 v{vLB}, v[{PM}:{PM+3}] offset:{L_SEL-L_MB}
    s_waitcnt lgkmcnt(0)
    v_mov_b64 v[{PM}:{PM+1}], 0
    v_mov_b64 v[{PM+2}:{PM+3}], 0
    """)
    a(f"""
    s_mov_b32 s{sS}, -1
    s_lshl_b32 s{sT0}, s{sH}, 13
    s_add_u32 s{sKX}, s{sT0}, {WS_KX}
    s_add_u32 s{sVX}, s{sT0}, {WS_VX - 256*KB}
    s_mov_b32 s{sKM}, {WS_MH + 64 * 8192}
    s_mov_b32 s{sC2}, 0x3e0293ee
    s_mov_b32 s{sC2+1}, 0x3e0293ee
    s_mov_b32 s{sONE2}, 0x3f803f80
    s_mov_b32 s{sONE2+1}, 0x3f803f80
    s_lshl_b32 s{sT0}, s{sW}, 11
    s_add_u32 s{sLKX}, s{sT0}, {L_MB}
    s_mov_b32 s{sKXO}, 16384
    s_add_u32 s{sPF}, s{sVX}, s{sT0}
    s_add_u32 s{sPF}, s{sPF}, {256*KB - 2*L_MB}
    s_lshl_b32 s{sFREE0}, s{sH}, 8
    s_add_u32 s{sFREE0}, s{sFREE0}, {WS_MBUF - (L_MB >> 2)}
    s_mov_b32 s{sMR}, {WS_MBUF}
    s_mov_b32 s{sPOM}, 0
    s_cmp_eq_u32 s{sW}, 0
    s_cselect_b32 s{sHM}, 0xff, 0
    s_mov_b32 s{sHM+1}, 0
    """)
    for p in range(4): a(f"s_mov_b32 s{sINW+p}, {WS_INBOX + 2048 * p}")
    addrs(False)
    for u in range(16):
        if u == 12: addrs(True)
        elif u and u & 1 == 0:
            for n in range(8): a(f"v_xor_b32 v{16+n}, 0x10000, v{16+n}")
        if u == 13: start_gates(a)
        if u == 13: first_kv(a, "A", vTA, blocking=False)
        a(f"s_waitcnt vmcnt({8 * min(3, 15 - u)})")
        a("s_barrier")
        consume(u)
        a("s_barrier")
        if u == 8:
            a(f"""v_mov_b32 v{PM}, 0
            global_load_dwordx2 v[28:29], v{PM}, s[{S_DBG}:{S_DBG+1}] sc1""")
        if u in (2, 5, 8, 11):
            a(f"""s_lshl_b32 s{sT0}, s{sW}, 13
            v_lshlrev_b32 v{vT}, 7, v{vLane}
            v_add_u32 v{vT}, s{sT0}, v{vT}""")
            code_touch(a, vT, vT, 72)
        if u + 4 < 16: issue(u + 4)
        if u == 13:
            spill(range(0, 8))
            a(f"""s_mov_b32 s{sT0}, {WS_MH}
            buffer_load_dwordx4 {vr(MA,4)}, v{vG}, {W}, s{sT0} offen sc1
            buffer_load_dwordx4 {vr(MA+4,4)}, v{vG}, {W}, s{sT0} offen offset:1024 sc1""")
    a(f"""ds_write_b128 v{vG2}, {vr(MA,4)}
    ds_write_b128 v{vG2}, {vr(MA+4,4)} offset:1024""")
    a(f"""v_mov_b32 v16, 0
    ds_write_b32 v{vLB}, v16 offset:{L_FL - L_MB}""")
    spill(range(8, 16))
    first_kv(a, "B", vTA, blocking=True)

def start_gates(a):
    a(f"""v_readfirstlane_b32 s{sT0}, v28
    v_readfirstlane_b32 s{sT1}, v29
    s_mov_b32 s{sMODE}, 1
    s_cmp_ge_u32 s{sT0}, 32
    s_cbranch_scc1 CH_MODE""")
    all_arrived(a, "CH_ROSTER", 28, 29, sCNT, sT0, "CH_DONE", early="CH_MODE")
    a(f"s_mov_b32 s{sMODE}, 0")
    a.label("CH_MODE")
    a(f"s_mov_b32 s{sCNT}, 0")
    a.label("CH_INIT")
    a(f"""s_cmp_ge_u32 s{sT1}, 128
    s_cbranch_scc1 CH_G2
    global_load_dword v29, v{PM}, s[{S_DBG}:{S_DBG+1}] offset:{D_INIT} sc1
    s_add_u32 s{sCNT}, s{sCNT}, 1
    s_cmp_gt_u32 s{sCNT}, {SPIN_MAX}
    s_cbranch_scc1 CH_DONE
    s_waitcnt vmcnt(0)
    v_readfirstlane_b32 s{sT1}, v29
    s_branch CH_INIT""")
    a.label("CH_G2")

def first_kv(a, tag, vt, blocking):
    a(f"""s_cmp_lg_u32 s{sPOM}, 0
    s_cbranch_scc1 CH_FK_{tag}
    s_mov_b32 s{sCNT}, 0""")
    if CFG["gate"]:
        if blocking: kv_gate(a, "CH_KV0", f"s_mov_b32 s{sT1}, 2")
        else:
            a(f"""s_load_dwordx4 s[{sKV}:{sKV+3}], s[{sKVA}:{sKVA+1}], {WS_FLAGS + F_KV} glc
            s_waitcnt lgkmcnt(0)""")
            kv_min(a)
            a(f"""s_mov_b32 s{sRDY}, s{sKV}
            s_cmp_lt_u32 s{sRDY}, 2
            s_cbranch_scc1 CH_FK_{tag}""")
    a(f"""s_add_u32 m0, s{sLKX}, 8192
    s_mov_b32 s{sPOM}, 1
    buffer_load_dwordx4 v{vG}, {W}, s{sKX} offen sc1 lds
    buffer_load_dwordx4 v{vG}, {W}, s{sKX} offen offset:1024 sc1 lds
    v_lshlrev_b32 v{vt}, 1, v{vLB}
    s_mov_b32 m0, {L_JUNK}
    buffer_load_dword v{vt}, {W}, s{sPF} offen sc1 lds""")
    a.label(f"CH_FK_{tag}")

def zlist(b, n):
    return [f"v_mov_b64 v[{b+i}:{b+i+1}], 0" for i in range(0, n, 2)]

def smf(acc, A, B):
    return f"v_smfmac_f32_16x16x64_bf16 {vr(acc,4)}, {vr(A,4)}, {B}, v{vIDX}"

NST = 10
def mark(a, prof, name):
    if (prof or MEAN) and os.environ.get("MARK") == name: a("s_memtime s[74:75]")
MEAN = bool(os.environ.get("MEAN"))
CNT = bool(os.environ.get("CNT"))
def stamp(a, prof, k):
    if MEAN and k in (6, 7):
        a(f"s_memtime s[{70+2*k}:{71+2*k}]")
        if k == 6:
            a(f"""s_waitcnt lgkmcnt(0)
            s_sub_u32 s76, s74, s84
            s_sub_u32 s77, s82, s84
            s_sub_u32 s78, s84, s79
            s_mov_b32 s79, s84
            s_cmp_ge_u32 s{sS}, 8
            s_cselect_b32 s76, s76, 0
            s_cselect_b32 s77, s77, 0
            s_cselect_b32 s78, s78, 0
            s_add_u32 s70, s70, s76
            s_add_u32 s71, s71, s77
            s_add_u32 s72, s72, s78
            s_cmp_lg_u32 s{sW}, 0""")
        return
    if prof:
        if CFG["light"] and k not in (7, 8, 9, CFG["only"]): return
        if k == 9: a(f"s_memrealtime s[{70+2*k}:{71+2*k}]")
        else: a(f"s_memtime s[{70+2*k}:{71+2*k}]")

PUBST = f"buffer_store_dword v{X}, v{vMS}, {W}, s{sKM} offen sc1"
MR = X + 4
def kv_min(a):
    for j in range(NG):
        a(f"s_lshl_b32 s{sKV+j}, s{sKV+j}, 2")
        if j: a(f"s_add_u32 s{sKV+j}, s{sKV+j}, {j}\ns_min_u32 s{sKV}, s{sKV}, s{sKV+j}")
def kv_gate(a, name, need_expr):
    a(need_expr)
    a(f"s_min_u32 s{sT1}, s{sT1}, 64")
    a.label(name)
    a(f"""s_cmp_ge_u32 s{sRDY}, s{sT1}
    s_cbranch_scc1 {name}_OK
    {"s_bitset1_b64 s[70:71], s%d" % sS if CNT else ""}
    s_load_dwordx4 s[{sKV}:{sKV+3}], s[{sKVA}:{sKVA+1}], {WS_FLAGS + F_KV} glc
    s_add_u32 s{sCNT}, s{sCNT}, 1
    s_cmp_gt_u32 s{sCNT}, {SPIN_MAX}
    s_cbranch_scc1 CH_DONE
    s_waitcnt lgkmcnt(0)""")
    kv_min(a)
    a(f"""s_mov_b32 s{sRDY}, s{sKV}
    s_branch {name}""")
    a.label(name + "_OK")
def hop_prep(a, part=7, wait=True):
    if part & 1:
        for l in ring_load(0): a(l)
    if part & 2:
        hop_prep2(a)
    if part & 4:
        for l in zlist(aQK + 4, 20): a(l)
        if wait: a("s_waitcnt lgkmcnt(0)")
def hop_prep2(a):
    for lo in range(1, 4): a(f"v_xor_b32 v{MR+lo}, {2048*lo}, v{vG2}")
    a(f"""s_add_u32 s{sPF}, s{sPF}, {256*KB*CFG["adv"]}
    s_sub_u32 s{sT0}, s{sFM}, {F_M - F_KV + 3}
    v_lshl_add_u32 v{MR}, v{vLB}, 1, s{sPF}
    s_mov_b64 exec, 0x8888
    v_lshrrev_b32 v{MR}, 2, v{vHR}
    v_add_u32 v{MR}, s{sT0}, v{MR}
    s_mov_b64 exec, -1
    s_add_u32 s{sKX}, s{sKX}, {256*KB*CFG["adv"]}
    s_add_u32 s{sVX}, s{sVX}, {256*KB*CFG["adv"]}
    s_mov_b32 m0, s{sLKX}""")

def chain_loop(a, tag, stf, prof=False):
    q = LdsQ(a)
    ck = vT
    a.label(f"CH_TOP_{tag}")
    Q0, K0, Q1, K1 = aQK, aQK + 4, aQK + 8, aQK + 12
    acc = lambda mat, T: (aQK + 8 * T + 4 * mat) if mat < 2 else aV + 4 * T
    N = len(QKSEQ)
    pre = {i: [] for i in range(N)}
    post = {i: [] for i in range(N)}
    W1 = CFG["w1"]
    JOIN, B2 = CFG["join"], CFG["bar"]
    x = lambda l: ("x", l, None)
    PB = CFG["pub"]
    post[1] = [f"v_max3_u32 v{ck}, v{MA}, v{MA+1}, v{MA+2}"]
    post[3] = [f"v_max_u32 v{ck}, v{ck}, v{MA+3}"]
    pre[2] = [x(f"buffer_load_dwordx4 {vr(VX,4)}, v{vG}, {W}, s{sVX} offen sc1")]
    pre[W1] = [x("s_waitcnt vmcnt(3)")]
    post[W1] = [f"v_max3_u32 v{ck}, v{ck}, v{MA+4}, v{MA+5}"]
    post[W1+1] = [f"v_max3_u32 v{ck}, v{ck}, v{MA+6}, v{MA+7}"]
    post[W1+2] = [f"v_cmp_eq_u32 vcc, -1, v{ck}"]
    pre[7] = [x(f"buffer_load_dwordx4 {vr(VX+4,4)}, v{vG}, {W}, s{sVX} offen offset:1024 sc1")]
    pre[JOIN] += [x(f"s_cbranch_vccnz CH_RETRY_{tag}"), ("lab", f"CH_JOIN_{tag}", None)]
    if PB:
        pre[CFG["pa"]] += [x(PUBST)]

    sc = step_scalars()
    mr = {kk: ("lds", f"ds_read_b128 {vr(MA+4*kk,4)}, v{MR+(kk>>1)} offset:{1024*(kk&1)}", f"m{kk}") for kk in range(2, 8)}
    pre[JOIN] += [x(f"s_waitcnt vmcnt(3)"), x("s_barrier"), mr[2]]
    pre[JOIN+1] += [mr[4], mr[6]]
    pre[B2] += [x(f"s_waitcnt vmcnt({2 + PB})"), x("s_barrier"), mr[3]]
    pre[B2+1] += [mr[5], mr[7]]
    if prof: pre[B2+1] += [x(f"s_mov_b64 exec, 0xffff\nbuffer_store_dword v{X+8}, v{X+9}, {W}, s34 offen\ns_mov_b64 exec, -1")]
    rB, rC = ring_load(1), ring_load(2)
    for i, sl in enumerate(RBS): pre[sl].append(("lds", rB[i], f"rB{i}"))
    for n, kk in enumerate(KORD[:4]): pre[11 + 3 * n].append(("w", f"m{kk}", None))
    pre[22].append(("w", "m7", None))
    for i in range(8): pre[RB0 + 1 + i].insert(0, ("lds", rC[i], f"rC{i}"))
    for i in range(4): pre[RB0 - 1 + i].append(("w", f"rB{2*i+1}", None))
    vm = [f"buffer_load_dwordx4 v{vG}, {W}, s{sKX} offen sc1 lds",
          f"buffer_load_dwordx4 v{vG}, {W}, s{sKX} offen offset:1024 sc1 lds",
          f"buffer_load_dword v{MR}, {W}, 0 offen sc1 lds"]
    for i, l in zip((17, 21, 28), vm): pre[i].insert(0 if i < 25 else 1, x(l))
    pre[13].append(x(f"s_add_u32 m0, s{sKXO}, s{sLKX}"))
    pre[22].append(x(f"s_xor_b32 s{sKXO}, s{sKXO}, {8192 ^ 16384}"))
    pre[27].append(x(f"s_mov_b32 m0, {L_JUNK}"))
    for i, l in zip((18, 20, 29, 30, 31, 32, 33, 33, 34, 35, 35), sc): pre[i].append(x(l))
    assert len(sc) <= 11
    NY = len(vm) + PB + (1 if prof else 0)
    post[23].append(f"v_add_u32 v{vT}, s{sKXO}, v{vLB}")
    def fin2(b, dst): return [f"v_add_f32 v{b}, v{b}, v{b+2}", f"v_add_f32 v{b+1}, v{b+1}, v{b+3}", f"v_cvt_pk_bf16_f32 v{dst}, v{b}, v{b+1}"]
    f = fin2(Q0, Q0) + fin2(K0, Q0 + 1) + fin2(Q1, Q1)
    for i, l in enumerate(f[:8]): post[28 + i].append(l)
    pre[34].insert(0, ("lds", f"ds_write_b64 v{vXW}, {vr(Q0,2)}", "xw0"))
    tok = {}
    a("s_waitcnt vmcnt(3)")
    mark(a, prof, 's0')
    for i, key in enumerate(QKSEQ):
        a(smf(acc(key[0], key[1]), MA + 4 * key[2], wop(key)))
        for kind, l, name in pre[i]:
            if kind == "lds": tok[name] = q.op(l)
            elif kind == "w": q.wait(tok[l])
            elif kind == "lab": a.label(l)
            else: a(l)
        for l in post[i]: a(l)
        mark(a, prof, f"q{i}")
    vi = 0
    def vnext(n=1):
        nonlocal vi
        for _ in range(n):
            key = VSEQ[vi]; vi += 1
            a(smf(aV + 4*key[1], MA + 4*key[2], wop(key)))
    VL = CFG["vl"]
    vnext()
    q.wait(tok["rC7"])
    a(f[8])
    if CFG["v2"]: vnext()
    for l in fin2(K1, Q1 + 1): a(l)
    xw = q.op(f"ds_write_b64 v{vXW}, {vr(Q1,2)} offset:128")
    vnext(CFG["vw"])
    q.wait(xw)
    mark(a, prof, "xw")
    a("s_barrier")
    mark(a, prof, "b2")
    kxl = [f"ds_read_b128 {vr(RING+4*i,4)}, v{vT} offset:{1024*i}" for i in range(8)]
    todo = [("x", f"ds_read_b64_tr_b16 {vr(X+2*k,2)}, v{vXR} offset:{(k>>1)*256 + (k&1)*64}") for k in range(8)] + [("k", l) for l in kxl]
    xr, kx = [], []
    def dsn(n):
        for _ in range(n):
            if todo:
                kind, l = todo.pop(0)
                (xr if kind == "x" else kx).append(q.op(l))
    dsn(CFG["n0"])
    while vi < 12 - VL:
        vnext()
        dsn(2 if len(xr) < 8 else 1)
    mark(a, prof, 's2')
    SX, SM, m_, t_ = aQK, aQK + 8, aQK + 12, aQK + 14
    OACC, OA, ONES, LA = MA, MA + 16, MA + 16, X + 4
    sfill = [f"v_mov_b64 {vr(ONES,2)}, s[{sONE2}:{sONE2+1}]", f"v_mov_b64 {vr(ONES+2,2)}, s[{sONE2}:{sONE2+1}]"] + zlist(OACC, 16)
    vfin = fin2(aV, aV) + fin2(aV + 4, aV + 1)
    def sm(acc_, A, ks):
        c = "0" if ks == 0 else vr(acc_, 4)
        a(f"v_mfma_f32_16x16x32_bf16 {vr(acc_,4)}, {vr(A,4)}, {vr(X+4*ks,4)}, {c}")
    assert vi >= 6
    q.wait(xr[1])
    for ks in range(4):
        sm(SM, X + 4*ks, ks)
        dsn(2 if len(xr) < 8 else 1)
        q.wait(xr[2*ks+3] if ks < 3 else kx[0])
    fl = sfill + ([] if VL else vfin)
    mx = [f"v_max3_f32 v{m_}, v{SM+2}, v{SM+3}, v{SX}", f"v_max3_f32 v{m_}, v{m_}, v{SX+1}, v{SX+2}", f"v_max_f32 v{m_}, v{m_}, v{SX+3}"]
    for j in range(8):
        kt, ks = j >> 2, j & 3
        sm(SX + 4*kt, RING + 4*j, ks)
        n = 2
        if todo: dsn(1); n = 1
        if j < 7: q.wait(kx[j + 1])
        if j == 6: fl = mx + fl
        for _ in range(n):
            if fl: a(fl.pop(0))
    rD = ring_load(3)
    for _ in range(VL):
        vnext()
        if fl: a(fl.pop(0))
    for l in fl: a(l)
    mark(a, prof, 's3')
    a(f"v_max3_f32 v{m_}, v{m_}, v{SX+4}, v{SX+5}")
    a(f"v_max3_f32 v{t_}, v{m_}, v{SX+6}, v{SX+7}")
    a(f"v_max3_f32 v{m_}, v{m_}, v{SX+6}, v{SX+7}")
    a(f"v_permlane16_swap_b32 v{m_}, v{t_}")
    a(f"v_max_f32 v{t_+1}, v{m_}, v{t_}")
    a(f"v_max_f32 v{m_}, v{m_}, v{t_}")
    a(f"v_permlane32_swap_b32 v{m_}, v{t_+1}")
    a(f"v_max_f32 v{m_}, v{m_}, v{t_+1}")
    a(f"v_mul_f32 v{m_}, s{sC2}, v{m_}")
    def pf(r): a(f"v_pk_fma_f32 {vr(r,2)}, {vr(r,2)}, s[{sC2}:{sC2+1}], {vr(m_,2)} op_sel_hi:[1,1,0] neg_lo:[0,0,1] neg_hi:[0,0,1]")
    P, OAc = X, X + 8
    mark(a, prof, "mx")
    pf(SM + 2)
    for i in range(4): pf(SX + 2*i)
    if VL:
        a(f"""v_pk_add_f32 {vr(aV,2)}, {vr(aV,2)}, {vr(aV+2,2)}
        v_pk_add_f32 {vr(aV+4,2)}, {vr(aV+4,2)}, {vr(aV+6,2)}
        v_cvt_pk_bf16_f32 v{aV}, v{aV}, v{aV+1}
        v_cvt_pk_bf16_f32 v{aV+1}, v{aV+4}, v{aV+5}""")
    a(f"v_exp_f32 v{SM+2}, v{SM+2}")
    a(f"v_exp_f32 v{SM+3}, v{SM+3}")
    a(f"v_exp_f32 v{SX}, v{SX}")
    a(f"v_cvt_pk_bf16_f32 v{PM}, v{SM+2}, v{SM+3}")
    a(f"v_cvt_pk_bf16_f32 v{PM+3}, v{SM+2}, v{SM+3}")
    a(f"v_exp_f32 v{SX+1}, v{SX+1}")
    a(f"v_mfma_f32_16x16x16_bf16 {vr(LA,4)}, {vr(ONES,2)}, {vr(PM,2)}, 0")
    a(f"v_exp_f32 v{SX+2}, v{SX+2}")
    a(f"v_mfma_f32_16x16x16_bf16 {vr(OAc,4)}, {vr(aV,2)}, {vr(PM,2)}, 0")
    a(f"v_exp_f32 v{SX+3}, v{SX+3}")
    a(f"v_mfma_f32_16x16x16_bf16 {vr(OAc+4,4)}, {vr(aV,2)}, {vr(PM+2,2)}, 0")
    for i in range(4, 8): a(f"v_exp_f32 v{SX+i}, v{SX+i}")
    for i in range(4): a(f"v_cvt_pk_bf16_f32 v{P+i}, v{SX+2*i}, v{SX+2*i+1}")
    OAD = aQK + 4
    a(f"v_mfma_f32_16x16x32_bf16 {vr(LA,4)}, {vr(ONES,4)}, {vr(P,4)}, {vr(LA,4)}")
    a(f"s_waitcnt vmcnt({NY})")
    a(f"v_xor_b32 v{OAD+1}, 512, v{vOW}")
    a(f"v_xor_b32 v{OAD+2}, 1024, v{vOW}")
    a(f"v_mfma_f32_16x16x32_bf16 {vr(OAc,4)}, {vr(VX,4)}, {vr(P,4)}, {vr(OAc,4)}")
    a(f"v_xor_b32 v{OAD+3}, 1536, v{vOW}")
    HV = aQK + 8
    a(f"v_lshlrev_b32 v{HV+1}, 5, v{vHR}")
    a(f"v_mfma_f32_16x16x32_bf16 {vr(OAc+4,4)}, {vr(VX+4,4)}, {vr(P,4)}, {vr(OAc+4,4)}")
    mark(a, prof, "pv")
    DP = "quad_perm:[0,1,0,1] row_mask:0xf bank_mask:0xf"
    a(f"v_rcp_f32_dpp v{t_}, v{LA} {DP}")
    a(f"v_mov_b32 v{HV}, s{sS}")
    for i in range(8):
        a(f"v_mul_f32_dpp v{OAc+i}, v{OAc+i}, v{t_} {DP}")
        if i == 3:
            a(f"v_cvt_pk_bf16_f32 v{OA}, v{OAc}, v{OAc+1}")
            a(f"v_cvt_pk_bf16_f32 v{OA+1}, v{OAc+2}, v{OAc+3}")
    a(f"v_cvt_pk_bf16_f32 v{OA+2}, v{OAc+4}, v{OAc+5}")
    a(f"v_cvt_pk_bf16_f32 v{OA+3}, v{OAc+6}, v{OAc+7}")
    mark(a, prof, 's4')
    if CFG["e1"]: a(f"s_mov_b64 exec, s[{sXM}:{sXM+1}]")
    ow = q.op(f"ds_write_b128 v{vOW}, {vr(OA,4)}")
    if CFG["e1"]: a(f"s_mov_b64 exec, -1")
    PK = X + 4
    SEL = aQK
    def fin(p):
        b = OACC + 4 * p
        return [f"v_cvt_pk_bf16_f32 v{PK+2*p}, v{b}, v{b+1}", f"v_cvt_pk_bf16_f32 v{PK+2*p+1}, v{b+2}, v{b+3}",
                f"v_bfi_b32 v{PK+2*p}, 1, s{sTAG}, v{PK+2*p}"]
    def pst(p): return f"buffer_store_dwordx2 {vr(PK+2*p,2)}, v{vPS}, {W}, s{sINW+p} offen {stf}"
    def osm(i): a(smf(OACC + 4*OSEQ[i][1], OA + 4*OSEQ[i][2], wop(OSEQ[i])))
    late = rD + [f"ds_read_b128 {vr(SEL,4)}, v{vLB} offset:{L_SEL-L_MB}", f"ds_read_b128 {vr(SEL+4,4)}, v{vLB} offset:{L_SEL2-L_MB}",
                 f"ds_read_b32 v{HV+2}, v{vLB} offset:{L_FL-L_MB}"]
    rd = []
    for i in range(3):
        osm(i)
        if i >= 3 - CFG["re"]: rd.append(q.op(late.pop(0)))
    q.wait(ow)
    mark(a, prof, "ow")
    a("s_barrier")
    mark(a, prof, "b4")
    oa = [q.op(f"ds_read_b128 {vr(OA+4*k,4)}, v{OAD+k}") for k in range(1, 4)]
    osm(3)
    q.wait(oa[0])
    mark(a, prof, 's5')
    post = {8: fin(0)[0:2], 9: fin(0)[2:], 11: fin(1)[0:2], 12: fin(1)[2:], 14: fin(2)[0:2], 15: fin(2)[2:]}
    for i in range(4, 16):
        osm(i)
        n = 0
        while late and n < (1 if (i in post or i < 6 or i == 10) else 2):
            rd.append(q.op(late.pop(0))); n += 1
        if i < 6: q.wait(oa[i - 3])
        if i in (11, 12, 13, 14): q.wait(rd[2 * (i - 11) + 1])
        if i in (10, 13): a(pst((i - 10) // 3))
        if i == 15: a(f"s_cmp_lg_u32 s{sW}, 0")
        for l in post.get(i, []): a(l)
    assert not late
    a(pst(2))
    if CFG["gu"]:
        a(f"""s_mov_b64 exec, s[{sHM}:{sHM+1}]
        buffer_store_dword v{HV}, v{HV+1}, {W}, s{sHW} offen offset:1024 {stf}
        s_mov_b64 exec, -1""")
    for l in fin(3): a(l)
    a(pst(3))
    stamp(a, prof, 6)
    a(f"s_cbranch_scc1 CH_HK_{tag}")
    RA = X
    hint = lambda r, off=0: f"""s_mov_b64 exec, 0xff
    buffer_store_dword v{r}, v{HV+1}, {W}, s{sHW} offen offset:{off} {stf}
    s_mov_b64 exec, -1"""
    GU = CFG["gu"]
    def longwait(name):
        a(f"""s_waitcnt lgkmcnt(0)
        v_readfirstlane_b32 s{sT0}, v{HV+2}
        s_cmp_eq_u32 s{sT0}, s{sS}
        s_cbranch_scc1 {name}_L""")
        a.label(name)
        rare.append((name + "_L", name))
    rare = []
    setfl = f"""s_add_u32 s{sT0}, s{sS}, 1
    v_mov_b32 v{ck}, s{sT0}
    ds_write_b32 v{vLB}, v{ck} offset:{L_FL-L_MB}"""
    longwait(f"CH_LW0_{tag}")
    delay(a, CFG["d1"] - 28)
    def sweep(base, pace=0, hm=None):
        for m in range(8):
            a(f"buffer_load_dwordx4 {vr(base+4*m,4)}, v{vG}, {W}, s{sINB_R if m < 4 else sINB_R2} offen offset:{1024*(m&3)} sc1")
            if m == hm: a(hint(HV))
            if m in (1, 3, 5): delay(a, pace - (20 if m == hm else 0))
    def reduce_(base, younger, fail, par):
        RB = X + 12
        def fold(r):
            dp = lambda d, s_, ctl, bm: f"v_add_f32_dpp v{d}, v{s_}, v{s_} {ctl} row_mask:0xf bank_mask:{bm}"
            return [dp(r, r, "row_ror:8", "0x3"), dp(r, r + 1, "row_ror:8", "0xc"), dp(r + 2, r + 2, "row_ror:8", "0x3"), dp(r + 2, r + 3, "row_ror:8", "0xc"),
                    dp(r + 1, r, "row_ror:12", "0x5"), dp(r + 1, r + 2, "row_ror:4", "0xa")]
        f0, f1 = fold(RA), fold(RB)
        op3 = "0x80" if par else "0xfe"
        mark(a, prof, "h2")
        yo = lambda m: younger if m <= CFG["hm"] else 0
        a(f"s_waitcnt vmcnt({7 + yo(0)})")
        for m in range(8):
            mark(a, prof, f"d{m}")
            b = base + 4 * m
            acc_ = RA if m < 4 else RB
            a(f"v_mfma_f32_16x16x32_bf16 {vr(acc_,4)}, {vr(SEL + 4*((m >> 1) & 1),4)}, {vr(b,4)}, {'0' if m & 3 == 0 else vr(acc_,4)}")
            a(f"v_bitop3_b32 v{ck}, v{ck if m else b}, v{b}, v{b+2} bitop3:{op3}")
            if m == 5:
                for l in f0[:CFG["fe"]]: a(l)
            if m < 7: a(f"s_waitcnt vmcnt({6 - m + yo(m + 1)})")
        a(f"v_and_b32 v{ck}, 1, v{ck}")
        a(f"v_cmp_ne_u32 vcc, {par}, v{ck}")
        for l in f0[CFG["fe"]:] + f1[:5]: a(l)
        a(f"""s_cbranch_vccnz {fail}
        {f1[5]}
        v_cvt_pk_bf16_f32 v{RA}, v{RA+1}, v{RB+1}
        buffer_store_dword v{RA}, v{vMS}, {W}, s{sMR} offen {stf}""")
    DS = CFG["ds"]
    mark(a, prof, "h0")
    sweep(MA, CFG["pace"], CFG["hm"])
    mark(a, prof, "h1")
    a("s_barrier")
    hop_prep(a, CFG["w0p"])
    a(f"""s_cmp_lg_u32 s{sTAG}, 0
    s_cbranch_scc1 CH_ODD_{tag}""")
    reduce_(MA, 1, f"CH_RED2_{tag}", 0)
    if prof and CFG["light"]: a("s_memtime s[72:73]")
    a.label(f"CH_MST_{tag}")
    mark(a, prof, "ms")
    a(f"""s_cmp_eq_u32 s{sS}, 62
    s_cbranch_scc1 CH_LAST""")
    hop_prep(a, 7 - CFG["w0p"], wait=False)
    ld = f"""buffer_load_dwordx4 {vr(MA,4)}, v{vG}, {W}, s{sMR} offen sc1
    buffer_load_dwordx4 {vr(MA+4,4)}, v{vG}, {W}, s{sMR} offen offset:1024 sc1"""
    ld0, ld1 = ld.split("\n")
    assert not DS
    a.label(f"CH_POLL_{tag}")
    a("s_barrier")
    stamp(a, prof, 7)
    a(ld0); delay(a, CFG["ga"]); a(ld1)
    delay(a, CFG["g2"])
    a(f"buffer_load_dwordx4 v{vG}, {W}, s{sMR} offen sc1 lds")
    delay(a, CFG["g3"])
    a(f"buffer_load_dwordx4 v{vG}, {W}, s{sMR} offen offset:1024 sc1 lds")
    for l in zlist(aQK, 4): a(l)
    a("s_waitcnt lgkmcnt(0)")
    if not prof: delay(a, CFG["g4"])
    if prof:
        stamp(a, prof, 8)
        stamp(a, prof, 9)
        a(f"""s_waitcnt lgkmcnt(0)
        s_lshl_b32 s{sT0}, s{sS}, 6
        s_lshl_b32 s{sT1}, s{sW}, 12
        s_add_u32 s{sT0}, s{sT0}, s{sT1}
        v_mov_b32 v{X+8}, 0""")
        for k in range(NST):
            if not CFG["light"] or k in (1, 2, 6, 7, 8, 9): a(f"v_writelane_b32 v{X+8}, s{70+2*k}, {k}")
        a(f"v_writelane_b32 v{X+8}, s{sPROF}, {NST}")
        a(f"v_writelane_b32 v{X+8}, s{sCNT}, {NST+1}")
        a(f"""s_mov_b32 s{sPROF}, 0
        s_lshl_b32 s{sT1}, s{sH}, 14
        s_add_u32 s{sT0}, s{sT0}, s{sT1}
        s_add_u32 s34, s{sT0}, {WS_PROF - (L_MB >> 2)}
        v_lshrrev_b32 v{X+9}, 2, v{vLB}""")
    a(f"s_branch CH_TOP_{tag}")
    a.label(f"CH_ODD_{tag}")
    reduce_(MA, 1, f"CH_RED2_{tag}", 1)
    if prof and CFG["light"]: a("s_memtime s[72:73]")
    a(f"s_branch CH_MST_{tag}")
    a.label(f"CH_RED2_{tag}")
    sweep(MA)
    a(setfl)
    if CNT: a(f"s_bitset1_b64 s[70:71], s{sS}")
    a(f"""s_add_u32 s{sCNT}, s{sCNT}, 1
    s_cmp_gt_u32 s{sCNT}, {SPIN_MAX}
    s_cbranch_scc1 CH_DONE
    s_cmp_lg_u32 s{sTAG}, 0
    s_cbranch_scc1 CH_ODD2_{tag}""")
    for par in range(2):
        if par: a.label(f"CH_ODD2_{tag}")
        reduce_(MA, 0, f"CH_RED2_{tag}", par)
        if prof and CFG["light"]: a("s_memtime s[72:73]")
        delay(a, CFG["dr"])
        a(f"s_branch CH_MST_{tag}")
    a.label(f"CH_RETRY_{tag}")
    chk = f"""v_max3_u32 v{ck}, v{MA}, v{MA+1}, v{MA+2}
    v_max3_u32 v{ck}, v{ck}, v{MA+3}, v{MA+4}
    v_max3_u32 v{ck}, v{ck}, v{MA+5}, v{MA+6}
    v_max_u32 v{ck}, v{ck}, v{MA+7}
    v_cmp_eq_u32 vcc, -1, v{ck}"""
    a(f"""s_mov_b64 exec, vcc
    {ld}
    s_mov_b64 exec, -1""")
    if prof: a(f"s_add_u32 s{sPROF}, s{sPROF}, 1")
    a(f"""s_waitcnt vmcnt(4)
    ds_read_b128 {vr(MA+8,4)}, v{vG2}
    ds_read_b128 {vr(MA+12,4)}, v{vG2} offset:1024""")
    for l in zlist(aQK, 24): a(l)
    a(f"""s_mov_b64 exec, vcc
    s_waitcnt lgkmcnt(0)""")
    for i in range(0, 8, 2): a(f"v_mov_b64 {vr(MA+i,2)}, {vr(MA+8+i,2)}")
    a(f"""{chk}
    {ld}
    s_mov_b64 exec, -1
    s_cbranch_vccnz CH_RETRY2_{tag}""")
    a.label(f"CH_FIN_{tag}")
    a(setfl)
    if CNT: a(f"s_bitset1_b64 s[72:73], s{sS}")
    a(f"""ds_write_b128 v{vG2}, {vr(MA,4)}
    ds_write_b128 v{vG2}, {vr(MA+4,4)} offset:1024""")
    for key in QKSEQ[:JOIN + 1]: a(smf(acc(key[0], key[1]), MA + 4 * key[2], wop(key)))
    a(f"""s_waitcnt vmcnt(0) lgkmcnt(0)
    s_branch CH_JOIN_{tag}""")
    a.label(f"CH_RETRY2_{tag}")
    a(f"""s_mov_b64 exec, vcc
    {ld}
    s_add_u32 s{sCNT}, s{sCNT}, 1""")
    if prof: a(f"s_add_u32 s{sPROF}, s{sPROF}, 1")
    a(f"""s_waitcnt vmcnt(4)
    {chk}
    s_cmp_gt_u32 s{sCNT}, {SPIN_MAX}
    s_cbranch_scc1 CH_DONE
    s_mov_b64 exec, -1
    s_cbranch_vccz CH_FIN_{tag}
    s_branch CH_RETRY2_{tag}""")
    a.label(f"CH_HK_{tag}")
    a(f"""s_cmp_eq_u32 s{sS}, 62
    s_cbranch_scc1 CH_DONE""")
    hop_prep(a)
    a(f"""s_cmp_eq_u32 s{sW}, 1
    s_barrier
    s_cbranch_scc0 CH_HK23_{tag}""")
    NPR = CFG["pd"] + 1
    PRB = MA + 10
    delay(a, CFG["p0"])
    a("s_mov_b64 vcc, -1")
    for i in range(NPR - 1):
        a(f"buffer_load_dword v{PRB+i}, v{vHR}, {W}, s{sHR} offen sc1")
        delay(a, CFG["pg"] + CFG["pq"])
    a.label(f"CH_PROBE_{tag}")
    for i in range(NPR):
        a(f"""buffer_load_dword v{PRB+(i+NPR-1)%NPR}, v{vHR}, {W}, s{sHR} offen sc1
        s_waitcnt vmcnt({NPR-1})
        s_cbranch_vccz CH_POLL_{tag}
        v_cmp_ne_u32 vcc, s{sS}, v{PRB+i}""")
        if prof: a(f"s_add_u32 s{sPROF}, s{sPROF}, 0x100")
        delay(a, CFG["pg"] - (4 if prof else 0))
    a(f"""s_add_u32 s{sCNT}, s{sCNT}, 1
    s_cmp_gt_u32 s{sCNT}, {SPIN_MAX}
    s_cbranch_scc0 CH_PROBE_{tag}
    s_branch CH_DONE""")
    a.label(f"CH_HK23_{tag}")
    a(f"""s_waitcnt vmcnt(0)
    s_cmp_eq_u32 s{sW}, 2
    s_cbranch_scc1 CH_POLL_{tag}""")
    a(f"""v_mov_b32 v{X}, -1
    v_lshrrev_b32 v{X+1}, 2, v{vLB}
    s_waitcnt vmcnt(0)
    buffer_store_dword v{X}, v{X+1}, {W}, s{sPOM} offen {stf}""")
    if CFG["gate"]:
        a(f"""v_add_u32 v{ck}, {L_JUNK}, v{vHR}
        ds_read_b32 v{ck}, v{ck}
        s_waitcnt lgkmcnt(0)""")
        for j in range(NG): a(f"v_readlane_b32 s{sKV+j}, v{ck}, {4*j+3}")
        kv_min(a)
        a(f"s_max_u32 s{sRDY}, s{sRDY}, s{sKV}")
        kv_gate(a, f"CH_KV_{tag}", f"s_add_u32 s{sT1}, s{sS}, 3")
    a(f"s_branch CH_POLL_{tag}")
    for lab, back in rare:
        a.label(lab)
        delay(a, CFG["dl"])
        a(f"s_branch {back}")

def step_scalars():
    return f"""s_add_u32 s{sS}, s{sS}, 1
    s_and_b32 s{sTAG}, s{sS}, 1
    s_mov_b32 s{sCNT}, 0
    s_add_u32 s{sT2}, s{sS}, 3
    s_and_b32 s{sT2}, s{sT2}, 3
    s_lshl_b32 s{sT0}, s{sT2}, 13
    s_add_u32 s{sPOM}, s{sT0}, s{sFREE0}
    s_xor_b32 s{sT0}, s{sT0}, 16384
    s_add_u32 s{sMR}, s{sT0}, {WS_MBUF}
    s_lshl_b32 s{sKM}, s{sS}, 13
    s_add_u32 s{sKM}, s{sKM}, {WS_MH + 8192}""".split("\n")

def chain_role(a, prof=False):
    a.label("CHAIN")
    if prof: a("s_memrealtime s[92:93]")
    chain_startup(a)
    rt(a, 2, X + 2)
    a(f"""s_mov_b32 s34, {WS_PROF + 600*KB}
    v_mov_b32 v{X+9}, 0
    s_mov_b32 s70, 0
    s_mov_b32 s71, 0
    s_mov_b32 s72, 0
    s_mov_b32 s73, 0
    s_mov_b32 s{sCNT}, 0
    s_mov_b32 s{sPROF}, 0""")
    for l in ring_load(0): a(l)
    for l in zlist(aQK, 24): a(l)
    hop_prep2(a)
    rt(a, 4, X + 2)
    until(a, "TSTART")
    if prof: a("s_memrealtime s[94:95]")
    a(f"""s_waitcnt vmcnt(0) lgkmcnt(0)
    s_cmp_eq_u32 s{sMODE}, {CFG['fast']}
    s_cbranch_scc0 CH_TOP_slow""")
    chain_loop(a, "fast", "", prof is True)
    chain_loop(a, "slow", "sc1", prof is True)
    a.label("CH_LAST")
    a(PUBST)
    if prof:
        a(f"""s_memrealtime s[96:97]
        s_waitcnt lgkmcnt(0)
        v_mov_b32 v{MA}, s92
        v_mov_b32 v{MA+1}, s94
        v_mov_b32 v{MA+2}, s96
        v_mov_b32 v{MA+3}, 0
        s_lshl_b32 s{sT0}, s{sH}, 4
        s_add_u32 s{sT0}, s{sT0}, {WS_PROF + 512*KB}
        buffer_store_dwordx4 {vr(MA,4)}, v{MA+3}, {W}, s{sT0} offen""")
    rt(a, 7)
    a.label("CH_DONE")
    if MEAN or CNT:
        a(f"""v_mov_b32 v{MA+8}, s70
        v_mov_b32 v{MA+9}, s71
        v_mov_b32 v{MA+10}, s72
        v_mov_b32 v{MA+11}, s73
        v_mov_b32 v{MA+12}, 0
        s_lshl_b32 s{sT0}, s{sH}, 2
        s_add_u32 s{sT0}, s{sT0}, s{sW}
        s_lshl_b32 s{sT0}, s{sT0}, 4
        s_add_u32 s{sT0}, s{sT0}, {WS_PROF}
        buffer_store_dwordx4 {vr(MA+8,4)}, v{MA+12}, {W}, s{sT0} offen""")
    a("""s_waitcnt vmcnt(0)
    s_endpgm""")
```

```python
from asmlib import *
from layout import *
from chain import (S_WO, S_OUT, S_DBG, SRD_WS, SRD_T, sW, sROLE, W, set_srd, LdsQ, SPIN_MAX, rt, RT, until)
from qa import wait_dbg, INIT_TARGET

sCB, sTQ, sS, sT0, sT1, sT2, sCNT, sOo, sOUT, sF, sNEED, sEND = range(48, 60)
sINC, sDS = 60, 62
S0 = 20
T = f"s[{SRD_T}:{SRD_T+3}]"
vL16, vIDX, vFL, vRW, vST, vTR, vD = range(7)
A, ACC, TMP = 32, 8, 16
vRDY, vJ = 7, 160

def op_role(a, first_role):
    a.label("OP")
    lane, t0, t1, t2 = 8, 9, 10, 11
    a(f"""s_sub_u32 s{sT0}, s{sROLE}, {first_role}
    s_and_b32 s{sCB}, s{sT0}, 15
    s_lshr_b32 s{sTQ}, s{sT0}, 4
    s_and_b32 s{sT1}, s{sTQ}, 1
    s_lshl_b32 s{sT1}, s{sT1}, 1
    s_cmp_ge_u32 s{sT0}, 64
    s_cselect_b32 s{sTQ}, s{sT1}, s{sTQ}
    s_cselect_b32 s{sS}, 0, {S0}
    s_cselect_b32 s{sEND}, {S0}, 64
    s_cselect_b32 s{sINC}, 1, 4
    s_cselect_b32 s{sINC+1}, 3, 4
    s_cselect_b32 s{sDS}, 0, 1
    s_mov_b32 s{sDS+1}, 1
    s_lshl_b32 s{sINC}, s{sINC}, 16
    s_lshl_b32 s{sINC+1}, s{sINC+1}, 16
    s_lshl_b32 s{sT1}, s{sS}, 2
    s_add_u32 s{sTQ}, s{sTQ}, s{sT1}
    v_mbcnt_lo_u32_b32 v{lane}, -1, 0
    v_mbcnt_hi_u32_b32 v{lane}, -1, v{lane}
    v_lshlrev_b32 v{vL16}, 4, v{lane}""")
    a(f"""v_bfe_u32 v{t0}, v{lane}, 3, 1
    v_lshlrev_b32 v{t0}, 5, v{t0}
    v_bfe_u32 v{t1}, v{lane}, 2, 1
    v_add_u32 v{t0}, v{t0}, v{t1}
    v_bfe_u32 v{t1}, v{lane}, 4, 1
    v_lshl_add_u32 v{t0}, v{t1}, 3, v{t0}
    v_lshrrev_b32 v{t1}, 5, v{lane}
    v_lshl_add_u32 v{t0}, v{t1}, 2, v{t0}
    v_and_b32 v{t1}, 3, v{lane}
    v_lshlrev_b32 v{t2}, 4, v{t1}
    v_lshl_add_u32 v{vD}, v{t0}, 10, v{t2}
    s_lshl_b32 s{sT0}, s{sW}, 20
    s_lshl_b32 s{sT1}, s{sCB}, 6
    s_add_u32 s{sT0}, s{sT0}, s{sT1}
    v_add_u32 v{vD}, s{sT0}, v{vD}
    v_lshrrev_b32 v{t0}, 2, v{lane}
    v_lshlrev_b32 v{t0}, 6, v{t0}
    v_lshl_add_u32 v{vTR}, v{t1}, 3, v{t0}
    s_lshl_b32 s{sT2}, s{sW}, 15
    v_add_u32 v{vTR}, s{sT2}, v{vTR}""")
    set_srd(a, SRD_T, S_WO, 4 * MB)
    def issue(c):
        for i in range(16):
            kk, m = 4 * c + (i >> 2), i & 3
            a(f"""s_add_u32 m0, s{sT2}, {(c & 1) * 16384 + i * 1024}
            s_mov_b32 s{sT0}, {(64 * kk + 16 * (m >> 1) + 2 * (m & 1)) * 1024}
            buffer_load_dwordx4 v{vD}, {T}, s{sT0} offen lds""")
    a("s_barrier")
    issue(0); issue(1)
    a(f"""v_mov_b32 v{t0}, 0x4444
    v_mov_b32 v{t1}, 0xeeee
    v_and_b32 v{t2}, 8, v{lane}
    v_cmp_ne_u32 vcc, 0, v{t2}
    v_cndmask_b32 v{vIDX}, v{t0}, v{t1}, vcc
    v_and_b32 v{t0}, 7, v{lane}
    s_lshl_b32 s{sT0}, s{sW}, 5
    v_lshlrev_b32 v{vFL}, 2, v{t0}
    v_add_u32 v{vFL}, s{sT0}, v{vFL}
    v_bfe_u32 v{vJ}, v{lane}, 3, 2
    v_lshl_add_u32 v{vFL}, v{vJ}, 7, v{vFL}
    v_mov_b32 v{vRDY}, 0
    s_lshl_b32 s{sT0}, s{sW}, 10
    s_add_u32 s{sT0}, s{sT0}, 131072
    v_add_u32 v{vRW}, s{sT0}, v{vL16}""")
    a(f"""v_bfe_u32 v{t0}, v{lane}, 4, 1
    v_and_b32 v{t1}, 1, v{lane}
    v_lshl_add_u32 v{t0}, v{t0}, 1, v{t1}
    v_lshlrev_b32 v{t0}, 12, v{t0}
    v_lshrrev_b32 v{t1}, 5, v{lane}
    v_lshl_add_u32 v{t0}, v{t1}, 5, v{t0}
    v_and_b32 v{t1}, 14, v{lane}
    v_lshl_add_u32 v{vST}, v{t1}, 1, v{t0}
    s_lshl_b32 s{sOUT}, s{sTQ}, 14
    s_lshl_b32 s{sT1}, s{sCB}, 6
    s_add_u32 s{sOUT}, s{sOUT}, s{sT1}
    s_add_u32 s{sOUT}, s{sOUT}, 1024
    s_lshl_b32 s{sOo}, s{sTQ}, 16
    s_lshl_b32 s{sT1}, s{sW}, 14
    s_add_u32 s{sOo}, s{sOo}, s{sT1}
    s_add_u32 s{sOo}, s{sOo}, {WS_O}""")
    for c in range(4):
        a(f"s_waitcnt vmcnt({16 if c < 3 else 0})")
        for i in range(16):
            kk, m = 4 * c + (i >> 2), i & 3
            for Tt in range(2):
                a(f"ds_read_b64_tr_b16 {ar((2*kk + Tt)*8 + 2*m, 2)}, v{vTR} offset:{(c & 1)*16384 + i*1024 + Tt*32}")
        a("s_waitcnt lgkmcnt(0)")
        if c + 2 < 4: issue(c + 2)
    set_srd(a, SRD_T, S_OUT, 4 * MB)
    wait_dbg(a, "OP_INIT", D_INIT, INIT_TARGET, t0, t1, sCNT, sT0, "EXIT")
    a(f"""s_mov_b32 s{sF}, {WS_FLAGS + F_O}
    s_mov_b32 s{sNEED}, 0""")
    rt(a, 5, 200)
    a.label("OP_LOOP")
    if RT["on"]:
        a(f"s_cmp_lg_u32 s{sS}, 32\ns_cbranch_scc1 OP_RT")
        rt(a, 6, 200)
        a.label("OP_RT")
    def loads(buf, so):
        for kk in range(16):
            if kk & 3 == 0: a(f"s_add_u32 s{sT0}, s{so}, {1024 * kk}")
            a(f"buffer_load_dwordx4 {vr(A+64*buf+4*kk,4)}, v{vL16}, {W}, s{sT0} offen offset:{1024*(kk&3)} sc1")
    for buf in range(2):
        for l in [f"v_mov_b64 v[{ACC+i}:{ACC+i+1}], 0" for i in range(0, 8, 2)]: a(l)
        a(f"""s_cmp_lg_u32 s{sNEED}, 0
        s_cbranch_scc1 OP_HAVE{buf}
        s_mov_b32 s{sCNT}, 0""")
        a.label(f"OP_W{buf}")
        a(f"""buffer_load_dword v{vRDY}, v{vFL}, {W}, s{sF} offen sc1
        s_add_u32 s{sCNT}, s{sCNT}, 1
        s_cmp_gt_u32 s{sCNT}, {SPIN_MAX}
        s_cbranch_scc1 EXIT
        s_waitcnt vmcnt(0)
        v_lshl_add_u32 v{vRDY}, v{vRDY}, 2, v{vJ}
        v_cmp_ge_u32 vcc, s{sS}, v{vRDY}
        s_cbranch_vccz OP_GO{buf}
        s_sleep 1
        s_branch OP_W{buf}""")
        a.label(f"OP_GO{buf}")
        loads(buf, sOo)
        a.label(f"OP_HAVE{buf}")
        a(f"""s_add_u32 s{sS}, s{sS}, s{sDS+buf}
        s_add_u32 s{sOo}, s{sOo}, s{sINC+buf}
        v_cmp_ge_u32 vcc, s{sS}, v{vRDY}
        s_mov_b32 s{sNEED}, 0
        s_cbranch_vccnz OP_FINE{buf}
        s_mov_b32 s{sNEED}, 1""")
        loads(buf ^ 1, sOo)
        a("s_waitcnt vmcnt(16)")
        for kk in range(16):
            for Tt in range(2):
                a(f"v_smfmac_f32_16x16x64_bf16 {vr(ACC+4*Tt,4)}, {vr(A+64*buf+4*kk,4)}, {ar((2*kk+Tt)*8,8)}, v{vIDX}")
        a(f"s_branch OP_RED{buf}")
        a.label(f"OP_FINE{buf}")
        for kk in range(16):
            a(f"s_waitcnt vmcnt({15-kk})")
            for Tt in range(2):
                a(f"v_smfmac_f32_16x16x64_bf16 {vr(ACC+4*Tt,4)}, {vr(A+64*buf+4*kk,4)}, {ar((2*kk+Tt)*8,8)}, v{vIDX}")
        a.label(f"OP_RED{buf}")
        for r in range(4): a(f"v_permlane32_swap_b32 v{ACC+r}, v{ACC+4+r}")
        for r in range(4): a(f"v_add_f32 v{ACC+r}, v{ACC+r}, v{ACC+4+r}")
        a(f"""ds_write_b128 v{vRW}, {vr(ACC,4)}
        s_waitcnt lgkmcnt(0)
        s_barrier
        s_cmp_lg_u32 s{sW}, 0
        s_cbranch_scc1 OP_NEXT{buf}""")
        for w in range(1, 4): a(f"ds_read_b128 {vr(TMP+4*w,4)}, v{vRW} offset:{1024*w}")
        a("s_waitcnt lgkmcnt(0)")
        for r in range(4):
            a(f"v_add_f32 v{ACC+r}, v{ACC+r}, v{TMP+4+r}")
            a(f"v_add_f32 v{TMP+8+r}, v{TMP+8+r}, v{TMP+12+r}")
        for r in range(4): a(f"v_add_f32 v{ACC+r}, v{ACC+r}, v{TMP+8+r}")
        for r in range(4): a(f"v_mov_b32_dpp v{TMP+r}, v{ACC+r} quad_perm:[1,0,3,2] row_mask:0xf bank_mask:0xf")
        a(f"""v_cvt_pk_bf16_f32 v{TMP+4}, v{ACC}, v{TMP}
        v_cvt_pk_bf16_f32 v{TMP+5}, v{ACC+1}, v{TMP+1}
        v_cvt_pk_bf16_f32 v{TMP+6}, v{TMP+2}, v{ACC+2}
        v_cvt_pk_bf16_f32 v{TMP+7}, v{TMP+3}, v{ACC+3}
        s_mov_b32 vcc_lo, 0xaaaaaaaa
        s_mov_b32 vcc_hi, 0xaaaaaaaa
        v_cndmask_b32 v{TMP+4}, v{TMP+4}, v{TMP+6}, vcc
        v_cndmask_b32 v{TMP+5}, v{TMP+5}, v{TMP+7}, vcc
        buffer_store_dword v{TMP+4}, v{vST}, {T}, s{sOUT} offen sc1
        buffer_store_dword v{TMP+5}, v{vST}, {T}, s{sOUT} offen offset:2048 sc1""")
        a.label(f"OP_NEXT{buf}")
        a(f"""v_xor_b32 v{vRW}, 4096, v{vRW}
        s_lshr_b32 s{sT0}, s{sINC+buf}, 2
        s_add_u32 s{sOUT}, s{sOUT}, s{sT0}""")
    a(f"""s_cmp_lt_u32 s{sS}, s{sEND}
    s_cbranch_scc1 OP_LOOP""")
    rt(a, 7, 200)
    until(a, 'TEND')
    a("""s_waitcnt vmcnt(0)
    s_endpgm""")
```

```python
from asmlib import *
from layout import *
from chain import (S_BX, S_WQ, S_WK, S_WV, S_DBG, SRD_WS, SRD_T, sW, sROLE, W, set_srd, LdsQ, SPIN_MAX, rt, RT)

sH, sJ, sN, sT0, sT1, sT2, sCNT, sXO, sPA, sPB, sC, sFKV, sFO, sFM, sKXo, sMo, sOo, sL = range(48, 66)
sMASK = 66
T = f"s[{SRD_T}:{SRD_T+3}]"

vL16, vXS, vKS, vVS, vKM, vVM, vOS, vZ = range(8)
vA = 8
ACC, XR, TMP = 16, 64, 96
L_PEND = 65536
L_MT = L_PEND + 3 * 24576
MP = 1024 + 32
L_KMF = L_MT + 8 * MP
KP = 1024 + 64
vMW = TMP + 24

def join_init(a, t0, t1, val="1"):
    a(f"""v_mov_b32 v{t0}, {val}
    v_mov_b32 v{t1}, 8
    s_mov_b64 exec, 1
    global_atomic_add v{t1}, v{t0}, s[{S_DBG}:{S_DBG+1}]
    s_mov_b64 exec, -1""")

INIT_TARGET = 128

def wait_dbg(a, name, off, target, t0, t1, sC_, sT_, fail, mask=False):
    a(f"""s_mov_b32 s{sC_}, 0
    v_mov_b32 v{t0}, {off}""")
    a.label(name)
    a(f"""global_load_dword v{t1}, v{t0}, s[{S_DBG}:{S_DBG+1}] sc1
    s_add_u32 s{sC_}, s{sC_}, 1
    s_cmp_gt_u32 s{sC_}, {SPIN_MAX}
    s_cbranch_scc1 {fail}
    s_waitcnt vmcnt(0)
    v_readfirstlane_b32 s{sT_}, v{t1}""")
    if mask: a(f"s_and_b32 s{sT_}, s{sT_}, 0xffff")
    a(f"""s_cmp_ge_u32 s{sT_}, {target}
    s_cbranch_scc1 {name}_OK
    s_sleep 4
    s_branch {name}""")
    a.label(name + "_OK")

def stage_consts(a, vD, vTR, lane, t0, t1, t2, rowshift):
    a(f"""v_lshrrev_b32 v{t0}, 4, v{lane}
    v_lshlrev_b32 v{t1}, 2, v{t0}
    v_and_b32 v{t2}, 15, v{lane}
    v_xor_b32 v{t1}, v{t1}, v{t2}
    v_lshlrev_b32 v{t1}, 4, v{t1}
    s_lshl_b32 s{sT0}, s{sW}, 2
    v_add_u32 v{t2}, s{sT0}, v{t0}
    v_lshl_add_u32 v{vD}, v{t2}, {rowshift}, v{t1}
    v_bfe_u32 v{t1}, v{lane}, 2, 2
    v_and_b32 v{t2}, 1, v{t0}
    v_lshl_add_u32 v{t2}, v{t1}, 1, v{t2}
    v_lshlrev_b32 v{t2}, 5, v{t2}
    v_lshl_add_u32 v{t2}, v{t1}, 8, v{t2}
    v_and_b32 v{t1}, 3, v{lane}
    v_lshl_add_u32 v{t2}, v{t1}, 3, v{t2}
    v_lshrrev_b32 v{t0}, 1, v{t0}
    v_lshl_add_u32 v{vTR}, v{t0}, 11, v{t2}""")

def x_consts(a, lane, t0, t1):
    a(f"""s_and_b32 s{sT0}, s{sW}, 1
    s_lshl_b32 s{sT0}, s{sT0}, 3
    v_xor_b32 v{vXS}, s{sT0}, v{lane}
    v_lshlrev_b32 v{vXS}, 4, v{vXS}
    v_and_b32 v{t0}, 15, v{lane}
    v_lshrrev_b32 v{t1}, 5, v{lane}
    v_xor_b32 v{t0}, v{t0}, v{t1}
    v_lshlrev_b32 v{t0}, 4, v{t0}
    v_and_b32 v{t1}, 31, v{lane}
    v_lshl_add_u32 v{vA}, v{t1}, 10, v{t0}""")
    for v in range(1, 8): a(f"v_xor_b32 v{vA+v}, {32*v}, v{vA}")

def x_issue(a, sRow0, rowstride, sLds, tmp):
    for r in range(8):
        a(f"""v_xor_b32 v{tmp+(r&1)}, {16*r}, v{vXS}
        s_add_u32 m0, s{sLds}, {1024*r}
        s_add_u32 s{sT1}, s{sRow0}, {rowstride*r}
        buffer_load_dwordx4 v{tmp+(r&1)}, {T}, s{sT1} offen lds""")

def wf(mat, ks): return wr(128 + (mat * 32 + ks) * 4, 4)

def flag_store(a, name, sOff, sVal, t0):
    a(f"""s_cmp_lg_u32 s{sW}, 0
    s_cbranch_scc1 {name}
    v_mov_b32 v{t0}, s{sVal}
    s_mov_b64 exec, 1
    buffer_store_dword v{t0}, v{vZ}, {W}, s{sOff} offen sc1
    s_mov_b64 exec, -1""")
    a.label(name)

def phase_a(a, tag):
    q = LdsQ(a)
    a(f"""s_waitcnt vmcnt(0)
    s_barrier
    s_cmp_ge_u32 s{sN}, {64 // NG - 1}
    s_cbranch_scc1 QA_NOX_{tag}
    s_add_u32 s{sXO}, s{sXO}, {NG * 32 * 1024}
    s_xor_b32 s{sL}, s{sL}, 32768""")
    x_issue(a, sXO, 1024, sL, TMP)
    a.label(f"QA_NOX_{tag}")
    rd = lambda ks: f"ds_read_b128 {vr(XR + 4*(ks & 7), 4)}, v{vA + (ks & 7)} offset:{256 * (ks >> 3)}"
    tk = {}
    for ks in range(6): tk[ks] = q.op(rd(ks))
    for ks in range(32):
        q.wait(tk[ks])
        x = vr(XR + 4*(ks & 7), 4)
        for mat in range(3):
            acc = vr(ACC + 16*mat, 16)
            c = "0" if ks == 0 else acc
            if mat < 2: a(f"v_mfma_f32_32x32x16_bf16 {acc}, {wf(mat, ks)}, {x}, {c}")
            else: a(f"v_mfma_f32_32x32x16_bf16 {acc}, {x}, {wf(mat, ks)}, {c}")
            if mat == 0 and ks + 6 < 32: tk[ks + 6] = q.op(rd(ks + 6))
    for v in range(8): a(f"v_xor_b32 v{vA+v}, 0x8000, v{vA+v}")
    a(f"v_add_u32 v{XR}, s{sPA}, v{vL16}")
    ORD = (0, 1, 4, 5, 2, 3, 6, 7)
    for mat in range(3):
        for i in range(8):
            d = ORD[i] if mat == 2 else i
            a(f"v_cvt_pk_bf16_f32 v{TMP + 8*mat + i}, v{ACC + 16*mat + 2*d}, v{ACC + 16*mat + 2*d + 1}")
        for h in range(2):
            if mat == 1: a(f"buffer_store_dwordx4 {vr(TMP+8+4*h,4)}, v{vKS}, {W}, s{sKXo} offen offset:{512*h} sc1")
            if mat == 2: a(f"buffer_store_dwordx4 {vr(TMP+16+4*h,4)}, v{vVS}, {W}, s{sKXo} offen offset:{512*h} sc1")
            a(f"ds_write_b128 v{XR}, {vr(TMP+8*mat+4*h,4)} offset:{8192*mat + 1024*h}")
    a(f"""s_add_u32 s{sKXo}, s{sKXo}, {NG * 256 * KB}
    s_add_u32 s{sPA}, s{sPA}, 24576
    s_cmp_ge_u32 s{sPA}, {L_PEND + 3 * 24576}
    s_cbranch_scc0 QA_PA_{tag}
    s_sub_u32 s{sPA}, s{sPA}, {3 * 24576}""")
    a.label(f"QA_PA_{tag}")
    a(f"""s_add_u32 s{sN}, s{sN}, 1
    s_waitcnt vmcnt(0) lgkmcnt(0)
    s_barrier""")
    flag_store(a, f"QA_FA_{tag}", sFKV, sN, TMP)

def phase_b(a, tag):
    SX, SM, O = ACC, ACC + 16, ACC + 32
    q = LdsQ(a)
    a(f"""s_lshl_b32 s{sT0}, s{sW}, 11
    s_sub_u32 s{sT0}, s{sPB}, s{sT0}
    v_add_u32 v{O}, s{sT0}, v{vL16}
    v_add_u32 v{O+1}, s{sPB}, v{vL16}""")
    QF, KF = XR, TMP
    tk = []
    for k in range(8):
        q.op(f"ds_read_b128 {vr(QF+4*k,4)}, v{O} offset:{1024*k}")
        tk.append(q.op(f"ds_read_b128 {vr(KF+4*k,4)}, v{O} offset:{8192 + 1024*k}"))
        if k == 5:
            for kk in range(3):
                q.wait(tk[kk])
                a(f"v_mfma_f32_32x32x16_bf16 {vr(SX,16)}, {vr(KF+4*kk,4)}, {vr(QF+4*kk,4)}, {'0' if kk == 0 else vr(SX,16)}")
    for kk in range(3, 8):
        q.wait(tk[kk])
        a(f"v_mfma_f32_32x32x16_bf16 {vr(SX,16)}, {vr(KF+4*kk,4)}, {vr(QF+4*kk,4)}, {vr(SX,16)}")
    KA, VA = SM, O
    VAD = TMP + 28
    a(f"v_mov_b32 v{VAD}, v{O+1}")
    a(f"v_mov_b32 v{VAD+1}, 0xff800000")
    for r in range(16): a(f"v_cndmask_b32 v{SX+r}, v{VAD+1}, v{SX+r}, s[{sMASK+2*r}:{sMASK+2*r+1}]")
    m_, t_ = VAD + 2, VAD + 3
    a(f"v_max3_f32 v{m_}, v{SX}, v{SX+1}, v{SX+2}")
    for i in range(3, 15, 2): a(f"v_max3_f32 v{m_}, v{m_}, v{SX+i}, v{SX+i+1}")
    a(f"v_max_f32 v{m_}, v{m_}, v{SX+15}")
    a(f"""v_bfe_u32 v{vMW}, v{vL16}, 6, 2
    v_bfe_u32 v{t_}, v{vL16}, 4, 1
    v_lshl_add_u32 v{vMW}, v{vMW}, 1, v{t_}
    v_mul_u32_u24 v{vMW}, {MP}, v{vMW}
    v_bfe_u32 v{t_}, v{vL16}, 9, 1
    v_lshl_add_u32 v{vMW}, v{t_}, 6, v{vMW}
    v_bfe_u32 v{t_}, v{vL16}, 8, 1
    v_lshl_add_u32 v{vMW}, v{t_}, 2, v{vMW}
    v_and_b32 v{t_}, 32, v{vL16}
    s_lshl_b32 s{sT0}, s{sW}, 8
    s_add_u32 s{sT0}, s{sT0}, {L_MT}
    v_add3_u32 v{vMW}, v{vMW}, v{t_}, s{sT0}""")
    IDX, vKR = TMP + 25, TMP + 26
    a(f"""v_mov_b32 v{IDX}, 0x4444
    v_mov_b32 v{vKR}, 0xeeee
    v_and_b32 v{t_}, 128, v{vL16}
    v_cmp_ne_u32 vcc, 0, v{t_}
    v_cndmask_b32 v{IDX}, v{IDX}, v{vKR}, vcc
    v_bfe_u32 v{vKR}, v{vL16}, 4, 1
    v_mul_u32_u24 v{vKR}, {KP}, v{vKR}
    v_bfe_u32 v{t_}, v{vL16}, 6, 2
    v_lshl_add_u32 v{vKR}, v{t_}, 3, v{vKR}
    v_bfe_u32 v{t_}, v{vL16}, 9, 1
    v_lshl_add_u32 v{vKR}, v{t_}, 5, v{vKR}
    v_add_u32 v{vKR}, {L_KMF}, v{vKR}""")
    for i in range(0, 8, 2): a(f"v_mov_b64 {vr(KA+i,2)}, 0\nv_mov_b64 {vr(VA+i,2)}, 0")
    a(f"s_mov_b32 s{sCNT}, 0")
    a.label(f"QA_W1_{tag}")
    a(f"""buffer_load_dwordx4 {vr(KF,4)}, v{vL16}, {W}, s{sMo} offen sc1
    buffer_load_dwordx4 {vr(KF+4,4)}, v{vL16}, {W}, s{sMo} offen offset:1024 sc1
    s_add_u32 s{sCNT}, s{sCNT}, 1
    s_cmp_gt_u32 s{sCNT}, {SPIN_MAX}
    s_cbranch_scc1 EXIT
    s_waitcnt vmcnt(0)
    v_max3_u32 v{t_}, v{KF}, v{KF+1}, v{KF+2}
    v_max3_u32 v{t_}, v{t_}, v{KF+3}, v{KF+4}
    v_max3_u32 v{t_}, v{t_}, v{KF+5}, v{KF+6}
    v_max_u32 v{t_}, v{t_}, v{KF+7}
    v_cmp_eq_u32 vcc, -1, v{t_}
    s_cbranch_vccz QA_W2_{tag}
    s_sleep 2
    s_branch QA_W1_{tag}""")
    a.label(f"QA_W2_{tag}")
    a(f"""s_mov_b32 s{sT0}, 0x05040100
    s_mov_b32 s{sT1}, 0x07060302""")
    for k in range(2):
        for hh in range(2):
            for c in range(2): a(f"v_perm_b32 v{KF+8+4*k+2*hh+c}, v{KF+4*k+2*c+1}, v{KF+4*k+2*c}, s{sT0+hh}")
            a(f"ds_write2_b32 v{vMW}, v{KF+8+4*k+2*hh}, v{KF+8+4*k+2*hh+1} offset0:{2*k + 32*hh} offset1:{2*k + 32*hh + 4}")
    a(f"""s_waitcnt lgkmcnt(0)
    s_barrier""")
    q = LdsQ(a)
    NR = 4
    rd = lambda n: f"ds_read_b128 {vr(KF + 4*(n % NR), 4)}, v{vKM} offset:{64*(n & 15)}"
    tk = {}
    for n in range(3): tk[n] = q.op(rd(n))
    def mm(n, fill=()):
        q.wait(tk[n])
        a(f"v_smfmac_f32_32x32x32_bf16 {vr(KA if n < 16 else VA,16)}, {vr(KF + 4*(n % NR), 4)}, {wr(128 + ((1 + (n >> 4)) * 32 + 2 * (n & 15)) * 4, 8)}, v{IDX}")
        if n + 3 < 32: tk[n + 3] = q.op(rd(n + 3))
        for l in fill: a(l)
    KR = KF + 16
    for n in range(18): mm(n)
    for i in range(4): a(f"v_add_f32 v{KA+i}, v{KA+i}, v{KA+4+i}")
    a(f"""v_cvt_pk_bf16_f32 v{KR}, v{KA}, v{KA+1}
    v_cvt_pk_bf16_f32 v{KR+1}, v{KA+2}, v{KA+3}""")
    kw = q.op(f"ds_write_b64 v{vVM}, {vr(KR,2)}")
    for n in range(18, 21): mm(n)
    q.wait(kw)
    a("s_barrier")
    def krd(k):
        for m in range(2): t = q.op(f"ds_read_b64_tr_b16 {vr(KR + 4*(k % 2) + 2*m, 2)}, v{vKR} offset:{128*k + 64*m}")
        return t
    kt = {k: krd(k) for k in range(2)}
    for n in range(21, 23): mm(n)
    for k in range(8):
        q.wait(kt[k])
        a(f"v_mfma_f32_32x32x16_bf16 {vr(SM,16)}, {vr(KR + 4*(k % 2),4)}, {vr(QF+4*k,4)}, {'0' if k == 0 else vr(SM,16)}")
        if k + 2 < 8: kt[k + 2] = krd(k + 2)
    VF, P, L = XR, XR + 12, SM + 4
    mm(23)
    q.op(f"ds_read_b128 {vr(VF,4)}, v{VAD} offset:16384")
    q.op(f"ds_read_b128 {vr(VF+4,4)}, v{VAD} offset:17408")
    ORD = (0, 1, 4, 5, 2, 3, 6, 7)
    sv = [f"v_max3_f32 v{m_}, v{m_}, v{SM}, v{SM+1}", f"v_max3_f32 v{m_}, v{m_}, v{SM+2}, v{SM+3}", f"v_mov_b32 v{t_}, v{m_}",
          f"v_mov_b64 {vr(P+10,2)}, 0", f"v_mov_b64 {vr(VF+10,2)}, 0",
          f"v_permlane32_swap_b32 v{m_}, v{t_}", f"v_max_f32 v{m_}, v{m_}, v{t_}", f"v_mul_f32 v{m_}, s{sC}, v{m_}"]
    sv += [f"v_fma_f32 v{SX+r}, v{SX+r}, s{sC}, -v{m_}" for r in range(20)]
    sv += [f"v_exp_f32 v{SX+r}, v{SX+r}" for r in range(20)]
    sv += [f"v_cvt_pk_bf16_f32 v{P+i}, v{SX+2*ORD[i]}, v{SX+2*ORD[i]+1}" for i in range(8)]
    sv += [f"v_cvt_pk_bf16_f32 v{P+8}, v{SM}, v{SM+1}", f"v_cvt_pk_bf16_f32 v{P+9}, v{SM+2}, v{SM+3}"]
    sv += [f"v_add_f32 v{L}, v{SX}, v{SX+1}"] + [f"v_add_f32 v{L}, v{L}, v{SX+r}" for r in range(2, 20)]
    sv += [f"v_mov_b32 v{L+1}, v{L}", "s_nop 1", f"v_permlane32_swap_b32 v{L}, v{L+1}", f"v_add_f32 v{L}, v{L}, v{L+1}", f"v_rcp_f32 v{L}, v{L}"]
    for n in range(24, 32):
        fill, c = [], 0
        while sv and c < 36 and not sv[0].startswith(f"v_add_f32 v{L},"):
            c += 8 if sv[0].startswith(("v_exp", "v_perm", "v_rcp", "s_nop")) else 4
            fill.append(sv.pop(0))
        mm(n, fill)
    while not sv[0].startswith(f"v_add_f32 v{L},"): a(sv.pop(0))
    a("s_waitcnt lgkmcnt(0)")
    OX = TMP
    for k in range(2):
        a(f"v_mfma_f32_32x32x16_bf16 {vr(OX,16)}, {vr(VF+4*k,4)}, {vr(P+4*k,4)}, {'0' if k == 0 else vr(OX,16)}")
        if k == 0:
            for l in sv[:6]: a(l)
    for i in range(4): a(f"v_add_f32 v{VA+i}, v{VA+i}, v{VA+4+i}")
    a(f"""v_cvt_pk_bf16_f32 v{VF+8}, v{VA}, v{VA+1}
    v_cvt_pk_bf16_f32 v{VF+9}, v{VA+2}, v{VA+3}""")
    for l in sv[6:8]: a(l)
    a(f"v_mfma_f32_32x32x16_bf16 {vr(OX,16)}, {vr(VF+8,4)}, {vr(P+8,4)}, {vr(OX,16)}")
    for l in sv[8:]: a(l)
    O = OX
    for r in range(16): a(f"v_mul_f32 v{O+r}, v{O+r}, v{L}")
    for i in range(8): a(f"v_cvt_pk_bf16_f32 v{SX+i}, v{O+2*i}, v{O+2*i+1}")
    a(f"""buffer_store_dwordx4 {vr(SX,4)}, v{vOS}, {W}, s{sOo} offen sc1
    buffer_store_dwordx4 {vr(SX+4,4)}, v{vOS}, {W}, s{sOo} offen offset:512 sc1
    s_add_u32 s{sOo}, s{sOo}, {NG * 256 * KB}
    s_add_u32 s{sMo}, s{sMo}, {NG * 8192}
    s_add_u32 s{sPB}, s{sPB}, 24576
    s_cmp_ge_u32 s{sPB}, {L_PEND + 3 * 24576}
    s_cbranch_scc0 QA_PB_{tag}
    s_sub_u32 s{sPB}, s{sPB}, {3 * 24576}""")
    a.label(f"QA_PB_{tag}")
    a(f"""s_add_u32 s{sT2}, s{sT2}, 1
    s_waitcnt vmcnt(0)
    s_barrier""")
    flag_store(a, f"QA_FB_{tag}", sFO, sT2, TMP)

def qa_role(a):
    a.label("QA")
    lane, vD, vTR, t0, t1, t2, vTA = 16, 17, 18, 19, 20, 21, 22
    a(f"""s_sub_u32 s{sT0}, s{sROLE}, 32
    s_lshr_b32 s{sH}, s{sT0}, 2
    s_and_b32 s{sJ}, s{sT0}, 3
    v_and_b32 v{lane}, 63, v0
    v_mov_b32 v{vZ}, 0
    s_lshl_b32 s{sFM}, s{sH}, 7
    s_lshl_b32 s{sT0}, s{sJ}, 2
    s_add_u32 s{sFKV}, s{sFM}, s{sT0}
    s_add_u32 s{sFKV}, s{sFKV}, {WS_FLAGS + F_KV}
    s_add_u32 s{sFM}, s{sFM}, {WS_FLAGS + F_M}
    s_lshl_b32 s{sFO}, s{sJ}, 7
    s_lshl_b32 s{sT0}, s{sH}, 2
    s_add_u32 s{sFO}, s{sFO}, s{sT0}
    s_add_u32 s{sFO}, s{sFO}, {WS_FLAGS + F_O}
    """)
    stage_consts(a, vD, vTR, lane, t0, t1, t2, 13)
    a(f"""s_lshl_b32 s{sT0}, s{sH}, 8
    v_add_u32 v{vD}, s{sT0}, v{vD}
    s_lshl_b32 s{sT0}, s{sW}, 6
    v_xor_b32 v{vTR}, s{sT0}, v{vTR}
    v_add_u32 v{vTA}, 0x10000, v{vTR}
    s_lshl_b32 s{sT2}, s{sW}, 10""")
    order = [1, 2, 0]
    ptrs = [S_WQ, S_WK, S_WV]
    def issue(u):
        if u & 3 == 0: set_srd(a, SRD_T, ptrs[order[u >> 2]], 4 * MB)
        for i in range(8):
            a(f"""s_add_u32 m0, s{sT2}, {(u & 3) * 32768 + i * 4096}
            s_mov_b32 s{sT0}, {(128 * (u & 3) + 16 * i) * 8192}
            buffer_load_dwordx4 v{vD}, {T}, s{sT0} offen lds""")
    for u in range(4): issue(u)
    x_consts(a, lane, t0, t1)
    a(f"""v_lshlrev_b32 v{vL16}, 4, v{lane}
    v_and_b32 v{t0}, 15, v{lane}
    v_lshrrev_b32 v{t1}, 5, v{lane}
    v_lshlrev_b32 v{t0}, 4, v{t0}
    v_lshl_add_u32 v{t0}, v{t1}, 8, v{t0}
    v_bfe_u32 v{t2}, v{lane}, 4, 1
    v_lshl_add_u32 v{vKS}, v{t2}, 12, v{t0}
    v_add_u32 v{vKS}, s{sT2}, v{vKS}
    v_lshl_add_u32 v{vVS}, v{t2}, 10, v{t0}
    s_lshl_b32 s{sT0}, s{sW}, 11
    s_add_u32 s{sPA}, s{sT0}, {L_PEND}
    s_mov_b32 s{sPB}, s{sPA}
    s_add_u32 s{sT0}, s{sT0}, {WS_VX - WS_KX}
    v_add_u32 v{vVS}, s{sT0}, v{vVS}
    """)
    a(f"""v_and_b32 v{t0}, 7, v{lane}
    v_mul_u32_u24 v{t0}, {MP}, v{t0}
    v_lshl_add_u32 v{vKM}, v{t1}, 5, v{t0}
    v_bfe_u32 v{t0}, v{lane}, 3, 1
    v_lshl_add_u32 v{vKM}, v{t0}, 4, v{vKM}
    v_add_u32 v{vKM}, {L_MT}, v{vKM}
    v_and_b32 v{t0}, 31, v{lane}
    v_mul_u32_u24 v{vVM}, {KP}, v{t1}
    v_lshl_add_u32 v{vVM}, v{t0}, 3, v{vVM}
    s_lshl_b32 s{sT0}, s{sW}, 8
    s_add_u32 s{sT0}, s{sT0}, {L_KMF}
    v_add_u32 v{vVM}, s{sT0}, v{vVM}
    v_and_b32 v{t0}, 7, v{lane}
    v_lshlrev_b32 v{t0}, 4, v{t0}
    v_lshl_add_u32 v{t0}, v{t1}, 8, v{t0}
    v_bfe_u32 v{vOS}, v{lane}, 3, 2
    v_lshl_add_u32 v{vOS}, v{vOS}, 16, v{t0}
    s_lshr_b32 s{sT0}, s{sW}, 1
    s_lshl_b32 s{sT0}, s{sT0}, 10
    s_and_b32 s{sT1}, s{sW}, 1
    s_lshl_b32 s{sT1}, s{sT1}, 7
    s_add_u32 s{sT0}, s{sT0}, s{sT1}
    v_add_u32 v{vOS}, s{sT0}, v{vOS}
    v_and_b32 v{t0}, 31, v{lane}
    v_lshlrev_b32 v{t1}, 2, v{t1}
    v_sub_u32 v{t0}, v{t0}, v{t1}""")
    for r in range(16): a(f"v_cmp_le_i32 s[{sMASK+2*r}:{sMASK+2*r+1}], {8*(r>>2) + (r&3)}, v{t0}")
    a(f"""s_lshl_b32 s{sT0}, s{sJ}, 5
    s_add_u32 s{sT0}, s{sT0}, s{sH}
    s_lshl_b32 s{sKXo}, s{sT0}, 13
    s_add_u32 s{sKXo}, s{sKXo}, {WS_KX}
    s_lshl_b32 s{sMo}, s{sJ}, 2
    s_add_u32 s{sMo}, s{sMo}, s{sW}
    s_lshl_b32 s{sMo}, s{sMo}, 11
    s_add_u32 s{sMo}, s{sMo}, {WS_MH}
    s_lshl_b32 s{sOo}, s{sJ}, 18
    s_lshl_b32 s{sT0}, s{sH}, 11
    s_add_u32 s{sOo}, s{sOo}, s{sT0}
    s_add_u32 s{sOo}, s{sOo}, {WS_O}
    s_mov_b32 s{sC}, 0x3e0293ee
    s_lshl_b32 s{sL}, s{sW}, 13
    s_lshl_b32 s{sXO}, s{sJ}, 15
    s_add_u32 s{sXO}, s{sXO}, s{sL}
    s_mov_b32 s{sN}, 0""")
    for u in range(12):
        a(f"s_waitcnt vmcnt({8 * min(3, 12 - u)})")
        a("s_barrier")
        for i in range(8):
            d = 128 + (order[u >> 2] * 32 + 8 * (u & 3) + i) * 4
            for m in range(2):
                a(f"ds_read_b64_tr_b16 {wr(d + 2*m, 2)}, v{vTA if u & 2 else vTR} offset:{(u & 1)*32768 + i*4096 + m*1024}")
        a("s_waitcnt lgkmcnt(0)")
        a("s_barrier")
        if u == 7: a(f"global_load_dword v{t2}, v{vZ}, s[{S_DBG}:{S_DBG+1}] offset:{D_INIT} sc1")
        if u + 4 < 12: issue(u + 4)
        if u == 8:
            set_srd(a, SRD_T, S_BX, 2 * MB)
            x_issue(a, sXO, 1024, sL, t0)
    a(f"""v_readfirstlane_b32 s{sT0}, v{t2}
    s_cmp_ge_u32 s{sT0}, {INIT_TARGET}
    s_cbranch_scc1 QA_INIT_OK""")
    wait_dbg(a, "QA_INIT", D_INIT, INIT_TARGET, t0, t1, sCNT, sT0, "EXIT")
    rt(a, 3)
    a(f"s_mov_b32 s{sT2}, 0")
    a.label("QA_LOOP")
    a(f"""s_cmp_ge_u32 s{sN}, {64 // NG}
    s_cbranch_scc1 QA_B""")
    phase_a(a, "l")
    if RT["on"]:
        a(f"s_cmp_lg_u32 s{sN}, 1\ns_cbranch_scc1 QA_RT")
        rt(a, 4)
        a.label("QA_RT")
    a(f"""s_cmp_lt_u32 s{sN}, 3
    s_cbranch_scc1 QA_LOOP""")
    a.label("QA_B")
    phase_b(a, "l")
    a(f"""s_cmp_lt_u32 s{sT2}, {64 // NG}
    s_cbranch_scc1 QA_LOOP""")
    rt(a, 7)
    a("""s_waitcnt vmcnt(0)
    s_endpgm""")
```

```python
import sys
from asmlib import *
from layout import *
import chain
from chain import *
import qa, op, pa

KNAME = "concat_heads__spectral_gfnet__memory_aug_recurrent_mem_tr__prompt_kernel"

def prologue(a):
    a(f"""
    s_cmp_ge_u32 s2, 256
    s_cbranch_scc1 EXIT
    s_load_dwordx16 s[8:23], s[0:1], 0
    s_load_dwordx8 s[24:31], s[0:1], 64
    s_load_dwordx2 s[32:33], s[0:1], 96
    v_lshrrev_b32 v1, 6, v0
    s_getreg_b32 s{sXCC}, hwreg(HW_REG_XCC_ID, 0, 4)
    v_readfirstlane_b32 s{sW}, v1
    s_waitcnt lgkmcnt(0)
    """)
    set_srd(a, SRD_WS, S_WS, WS_END)
    if os.environ.get("FAKEX"):
        a(f"""s_mul_hi_u32 s48, s2, {(1 << 32) // 11 + 1}
        s_mul_i32 s48, s48, 11
        s_sub_u32 s{sXCC}, s2, s48""")
    a(f"""s_sub_u32 s48, s{sXCC}, 5
    s_cmp_ge_u32 s48, 2
    s_cbranch_scc1 NOWARM
    s_bfe_u32 s49, s2, 0x50003
    s_lshl_b32 s49, s49, 1
    s_add_u32 s48, s48, s49
    s_lshl_b32 s48, s48, 15
    v_lshlrev_b32 v8, 7, v0
    v_add_u32 v8, s48, v8
    v_add_u32 v9, {2 * MB}, v8""")
    n = 0
    for ptr in (S_WK, S_WV, S_WQ):
        set_srd(a, SRD_T, ptr, 4 * MB)
        for v in (8, 9):
            a(f"buffer_load_dword v{20 + n}, v{v}, s[{SRD_T}:{SRD_T+3}], 0 offen"); n += 1
    a.label("NOWARM")
    a(f"""
    v_mov_b32 v2, 163836
    s_cmp_lg_u32 s{sW}, 0
    s_cbranch_scc1 ROLE_OTHER
    s_mov_b64 exec, 1
    v_mov_b32 v3, 1
    s_min_u32 s48, s{sXCC}, 8
    s_lshl_b32 s49, s48, 2
    s_add_u32 s49, s49, {D_TICK - 4}
    s_cmp_eq_u32 s48, 0
    s_cselect_b32 s49, 0, s49
    v_mov_b32 v4, s49
    global_atomic_add v6, v4, v3, s[{S_DBG}:{S_DBG+1}] sc0
    s_mov_b64 exec, -1""")
    early_touch(a, "A")
    a(f"""s_mov_b64 exec, 1
    s_lshl_b32 s{sROLE}, s48, 5
    s_waitcnt vmcnt({NT})
    v_readfirstlane_b32 s49, v6
    s_add_u32 s{sROLE}, s{sROLE}, s49
    s_cmp_lt_u32 s49, 32
    s_cselect_b32 s49, s48, 8
    s_cmp_lt_u32 s49, 8
    s_cbranch_scc1 ROLE_SET
    v_mov_b32 v4, {D_OVF}
    global_atomic_add v6, v4, v3, s[{S_DBG}:{S_DBG+1}] sc0
    s_waitcnt vmcnt(0)
    v_readfirstlane_b32 s50, v6
    s_mov_b64 exec, -1
    """)
    all_arrived(a, "ROLE_ALL", 4, 6, 51, 52, "ROLE_NONE")
    a("s_mov_b32 s53, 0")
    a.label("ROLE_SCAN")
    a(f"""v_readlane_b32 s48, v6, s53
    s_min_u32 s48, s48, 32
    s_sub_u32 s49, 32, s48
    s_lshl_b32 s{sROLE}, s53, 5
    s_add_u32 s{sROLE}, s{sROLE}, s48
    s_add_u32 s{sROLE}, s{sROLE}, s50
    s_cmp_lt_u32 s50, s49
    s_cbranch_scc1 ROLE_SET
    s_sub_u32 s50, s50, s49
    s_add_u32 s53, s53, 1
    s_cmp_lt_u32 s53, 8
    s_cbranch_scc1 ROLE_SCAN
    """)
    a.label("ROLE_NONE")
    a(f"s_mov_b32 s{sROLE}, 256")
    a.label("ROLE_SET")
    a(f"""
    v_mov_b32 v3, s{sROLE}
    ds_write_b32 v2, v3
    s_waitcnt lgkmcnt(0)
    s_mov_b64 exec, -1
    """)
    a("s_branch ROLE_WAIT")
    a.label("ROLE_OTHER")
    a("s_nop 15")
    early_touch(a, "B")
    a.label("ROLE_WAIT")
    a(f"""
    s_waitcnt vmcnt({NT})
    s_barrier
    ds_read_b32 v3, v2
    s_waitcnt lgkmcnt(0)
    v_readfirstlane_b32 s{sROLE}, v3
    s_barrier
    """)

NT = int(os.environ.get("NT", "1"))
def early_touch(a, tag):
    set_srd(a, SRD_T, S_WK, 4 * MB)
    a(f"""s_bfe_u32 s49, s2, 0x50003
    s_lshl_b32 s49, s49, 2
    s_add_u32 s49, s49, s{sW}
    s_and_b32 s50, s49, 7
    s_bfe_u32 s51, s49, 0x10003
    s_lshl_b32 s51, s51, 4
    s_add_u32 s50, s50, s51
    s_lshr_b32 s51, s49, 4
    s_lshl_b32 s51, s51, 6
    s_add_u32 s50, s50, s51
    s_lshl_b32 s50, s50, 13
    s_cmp_eq_u32 s{sXCC}, 0
    s_cselect_b32 s50, s50, 0x40000000
    v_and_b32 v7, 63, v0
    v_lshlrev_b32 v7, 7, v7
    v_add_u32 v7, s50, v7""")
    for i in range(NT):
        a(f"""buffer_load_dword v{250 + i}, v7, s[{SRD_T}:{SRD_T+3}], 0 offen
        v_add_u32 v7, {32 * 8192}, v7""")

def build(prof=False, roles=("chain",)):
    a = Asm()
    RT["on"] = bool(prof)
    if os.environ.get("TEND") or os.environ.get("TSTART"): a("s_memrealtime s[2+0:3]".replace("2+0:3", "34:35") + "\ns_waitcnt lgkmcnt(0)\ns_mov_b32 s3, s34")
    if prof: a("s_memrealtime s[4:5]")
    prologue(a)
    if prof:
        a(f"""v_mov_b32 v10, s4
        s_lshl_b32 s2, s{sROLE}, 6
        s_add_u32 s2, s2, {WS_PROF + 640*KB}
        v_mov_b32 v11, 0
        buffer_store_dword v10, v11, {W}, s2 offen""")
        if os.environ.get("RTDBG"):
            a(f"""s_cmp_lg_u32 s{sROLE}, 0
            s_cbranch_scc1 RTD0
            v_and_b32 v10, 0xffffff, v10
            global_store_dword v11, v10, s[{S_DBG}:{S_DBG+1}]""")
            a.label("RTD0")
        rt(a, 1)
    a(f"""s_cmp_lt_u32 s{sROLE}, 32
    s_cbranch_scc1 TOCHAIN
    s_waitcnt vmcnt(0)""")
    a.label("TOCHAIN")
    a(f"""s_cmp_ge_u32 s{sROLE}, 160
    s_cbranch_scc1 REST
    s_cmp_ge_u32 s{sROLE}, 32
    s_cbranch_scc1 QA
    s_mov_b32 s{sH}, s{sROLE}
    """)
    chain_role(a, prof)
    qa.qa_role(a)
    a.label("REST")
    a(f"""s_cmp_ge_u32 s{sROLE}, 224
    s_cbranch_scc1 INIT""")
    pa.pa_role(a, 160)
    op.op_role(a, 160)
    init_role(a)
    a.label("EXIT")
    a("s_endpgm")
    L = fix_hazards(a.lines, verbose=True)
    if int(os.environ.get("ALN", "1")):
        L, left = fix_straddles(L, "CH_TOP_fast", "CH_TOP_slow")
        print("straddles left:", left)
    body = render(L)
    hdr = open("concat_heads__spectral_gfnet__memory_aug_recurrent_mem_tr__prompt.s.ref").read().split("\n")
    head = [l for l in hdr if l.startswith(";") and "@launch" not in l][:15]
    txt = "\n".join(head) + "\n; @launch grid=(256,1,1) block=(256,1,1) lds=163840\n"
    txt += f""".amdgcn_target "amdgcn-amd-amdhsa--gfx950"
.text
.globl {KNAME}
.p2align 8
.type {KNAME},@function
{KNAME}:
""" + body + f""".section .rodata,"a"
.p2align 6
.amdhsa_kernel {KNAME}
  .amdhsa_next_free_vgpr 512
  .amdhsa_next_free_sgpr 102
  .amdhsa_accum_offset 256
  .amdhsa_group_segment_fixed_size 0
  .amdhsa_kernarg_size 104
  .amdhsa_user_sgpr_count 2
  .amdhsa_user_sgpr_kernarg_segment_ptr 1
  .amdhsa_system_sgpr_workgroup_id_x 1
.end_amdhsa_kernel
"""
    return txt

if __name__ == "__main__":
    out = sys.argv[1]
    prof = True if "prof" in sys.argv[2:] else ("rt" if "rt" in sys.argv[2:] else False)
    open(out, "w").write(build(prof=prof))
```
